```python
import torch

def _softmax(x, axis=-1):
    return torch.softmax(x, dim=axis)
def _gelu(x):
    return torch.nn.functional.gelu(x, approximate="tanh")
def _silu(x):
    return torch.nn.functional.silu(x)
def _sigmoid(x):
    return torch.sigmoid(x)
def _layernorm(x, axis=-1, eps=1e-5):
    m = x.mean(dim=axis, keepdim=True)
    v = x.var(dim=axis, keepdim=True, unbiased=False)
    return (x - m) / torch.sqrt(v + eps)
def _scatter_add(tgt, idx, src, axis=0):
    return tgt.clone().index_add_(axis, idx, src)
def _segment_sum(src, seg, n):
    out = torch.zeros((n,) + src.shape[1:], dtype=src.dtype)
    return out.index_add_(0, seg, src)
def _pad(x, pw):
    flat = tuple(v for pair in reversed(pw) for v in pair)
    return torch.nn.functional.pad(x, flat)

kernel_name = 'standalone__cheap_equivariant_egnn__graph'

def setup_inputs():

    _w = (lambda a: (lambda t: t.to(torch.bfloat16) if t.is_floating_point() else t)(torch.as_tensor(a)))
    N, deg, D, De = 25000, 32, 64, max(0, 1)
    E = N * deg
    return {
        "h": _w((lambda *s: torch.randn(*s, dtype=torch.bfloat16) * 0.2)(N, D)),
        "pos": _w((lambda *s: torch.randn(*s, dtype=torch.bfloat16) * 0.8)(N, 3)),
        "e_attr": _w((lambda *s: torch.randn(*s, dtype=torch.bfloat16) * 0.8)(E, De)),
        "src": _w((lambda lo, hi, *s: torch.randint(lo, hi, s))(0, N, E).to(torch.int64)),
        "dst": _w((lambda lo, hi, *s: torch.randint(lo, hi, s))(0, N, E).to(torch.int64)),
        "w_e": _w(0.1 * (lambda *s: torch.randn(*s, dtype=torch.bfloat16) * 0.8)(2 * D + 1 + De, D)),
        "w_x": _w(0.1 * (lambda *s: torch.randn(*s, dtype=torch.bfloat16) * 0.2)(D, 1)),
        "w_h": _w(0.1 * (lambda *s: torch.randn(*s, dtype=torch.bfloat16) * 0.2)(2 * D, D)),
    }

def reference(h, pos, e_attr, src, dst, w_e, w_x, w_h):
    N, D = h.shape[0], h.shape[1]
    diff = pos[dst] - pos[src]
    dist2 = torch.sum(diff * diff, axis=-1, keepdims=True)
    e_in = torch.concatenate([h[dst], h[src], dist2, e_attr], axis=-1)
    m_ij = _silu(e_in @ w_e)
    coord_scale = m_ij @ w_x
    pos_new = pos + _segment_sum(diff * coord_scale, dst, N)
    m_i = _segment_sum(m_ij, dst, N)
    h_new = h + _silu(torch.concatenate([h, m_i], axis=-1) @ w_h)
    return h_new, pos_new
```

```python
import re

TRANS = ("v_exp_f32", "v_log_f32", "v_rcp_f32", "v_rsq_f32", "v_sqrt_f32", "v_sin_f32", "v_cos_f32")


def regs_of(tok):
    tok = tok.strip()
    tok = tok.lstrip("-")
    if tok.startswith("abs(") or tok.startswith("|"):
        tok = tok.replace("abs(", "").replace(")", "").replace("|", "")
    m = re.fullmatch(r"([vsa])(\d+)", tok)
    if m:
        return {m.group(1) + m.group(2)}
    m = re.fullmatch(r"([vsa])\[(\d+):(\d+)\]", tok)
    if m:
        return {m.group(1) + str(i) for i in range(int(m.group(2)), int(m.group(3)) + 1)}
    if tok == "vcc":
        return {"vcc"}
    if tok in ("vcc_lo", "vcc_hi"):
        return {"vcc"}
    if tok in ("exec", "exec_lo", "exec_hi"):
        return {"exec"}
    if tok == "m0":
        return {"m0"}
    return set()


class Ins:
    def __init__(self, text):
        self.text = text
        t = text.split(";")[0].strip()
        self.is_label = t.endswith(":")
        self.is_dir = t.startswith(".")
        self.op = ""
        self.w = set()
        self.r = set()
        self.kind = "other"
        self.srcc = set()
        self.srcab = set()
        self.passes = 0
        self.states = 1
        if self.is_label or self.is_dir or not t:
            self.states = 0
            return
        parts = t.split(None, 1)
        self.op = op = parts[0]
        rest = parts[1] if len(parts) > 1 else ""
        ops = []
        cur = ""
        depth = 0
        for ch in rest:
            if ch == "[":
                depth += 1
            if ch == "]":
                depth -= 1
            if ch == "," and depth == 0:
                ops.append(cur.strip())
                cur = ""
            else:
                cur += ch
        if cur.strip():
            ops.append(cur.strip())
        mods = ""
        if ops:
            sp = ops[-1].split(None, 1)
            ops[-1] = sp[0]
            mods = sp[1] if len(sp) > 1 else ""
        self.mods = mods
        self.ops = ops
        R = [regs_of(o) for o in ops]
        if op == "s_nop":
            self.states = int(ops[0], 0) + 1
            self.kind = "salu"
        elif op.startswith("v_mfma"):
            self.kind = "mfma"
            self.w = R[0]
            self.srcab = R[1] | R[2]
            self.srcc = R[3]
            self.r = self.srcab | self.srcc
            self.passes = 8 if "32x32" in op else 4
        elif op.startswith("v_"):
            self.kind = "valu"
            if op.startswith("v_cmpx"):
                self.w = R[0] | {"exec"}
                self.r = set().union(*R[1:])
            elif op.startswith("v_permlane"):
                self.w = R[0] | R[1]
                self.r = R[0] | R[1]
            elif op.startswith(("v_add_co", "v_sub_co", "v_addc_co", "v_subb_co")):
                self.w = R[0] | R[1]
                self.r = set().union(*R[2:])
            else:
                self.w = R[0]
                self.r = set().union(*R[1:]) if len(R) > 1 else set()
                if op.startswith(("v_fmac", "v_dot2c")) or "UNUSED_PRESERVE" in mods or "dpp" in op or "row_" in mods:
                    self.r |= R[0]
                if op.startswith("v_writelane"):
                    self.r |= R[0]
        elif op.startswith("ds_"):
            self.kind = "ds"
            if op.startswith(("ds_read", "ds_bpermute", "ds_permute", "ds_swizzle")) or "_rtn" in op:
                self.w = R[0]
                self.r = set().union(*R[1:])
                if "d16" in op:
                    self.r |= R[0]
            else:
                self.r = set().union(*R)
        elif op.startswith(("buffer_", "global_")):
            self.kind = "vmem"
            lds = bool(re.search(r"\blds\b", mods))
            self.lds = lds
            if "load" in op and not lds:
                self.w = R[0]
                self.r = set().union(*R[1:])
                if "d16" in op:
                    self.r |= R[0]
            else:
                self.r = set().union(*R) if R else set()
                if lds:
                    self.r |= {"m0"}
                if "atomic" in op and "sc0" in mods:
                    self.w = R[0]
        elif op.startswith("s_"):
            self.kind = "salu"
            if op.startswith(("s_cmp", "s_waitcnt", "s_barrier", "s_branch", "s_cbranch", "s_endpgm", "s_setprio", "s_sleep", "s_bitcmp")):
                self.r = set().union(*R) if R else set()
            elif op.startswith(("s_load", "s_memtime", "s_memrealtime", "s_buffer_load")):
                self.kind = "smem"
                self.w = R[0]
                self.r = set().union(*R[1:]) if len(R) > 1 else set()
            else:
                self.w = R[0] if R else set()
                self.r = set().union(*R[1:]) if len(R) > 1 else set()
                if "saveexec" in op:
                    self.w |= {"exec"}


def isv(x):
    return x[0] in "va" and x != "vcc"


def need(prod, cons):
    n = 0
    pw = prod.w
    if prod.kind == "valu":
        vw = {x for x in pw if isv(x)}
        sw = {x for x in pw if not isv(x)}
        if cons.kind == "mfma" and (vw & cons.r):
            n = max(n, 2)
        if cons.kind == "mfma" and "exec" in sw:
            n = max(n, 4)
        if cons.kind == "valu":
            dpp = "dpp" in cons.op or "row_" in getattr(cons, "mods", "") or "quad_perm" in getattr(cons, "mods", "")
            if dpp and (vw & cons.r):
                n = max(n, 2)
            if dpp and "exec" in sw:
                n = max(n, 5)
            if cons.op.startswith("v_permlane") and (vw & cons.r):
                n = max(n, 2)
            if cons.op.startswith("v_permlane") and "exec" in sw:
                n = max(n, 4)
            if cons.op.startswith(("v_readlane", "v_readfirstlane")) and (vw & cons.r):
                n = max(n, 1)
            if cons.op.startswith(("v_readlane", "v_readfirstlane", "v_writelane")) and "exec" in sw:
                n = max(n, 4)
            if (sw - {"exec"}) & cons.r:
                n = max(n, 4 if cons.op.startswith(("v_readlane", "v_writelane")) else 2)
            if prod.op.startswith(TRANS) and not cons.op.startswith(TRANS) and (vw & cons.r):
                n = max(n, 1)
            if ("sdwa" in prod.op and "dst_sel:DWORD" not in prod.mods) and (vw & (cons.r | cons.w)):
                n = max(n, 1)
        if cons.kind in ("vmem",) and (sw & cons.r):
            n = max(n, 5)
        if cons.kind in ("salu", "smem") and (sw & cons.r):
            n = max(n, 1)
    if prod.kind == "salu" and "m0" in pw and cons.kind in ("vmem", "ds") and "m0" in cons.r:
        n = max(n, 1)
    if prod.kind == "vmem" and "store" in prod.op and ("x3" in prod.op or "x4" in prod.op):
        data = regs_of(prod.ops[0]) if prod.op.startswith("buffer_") else regs_of(prod.ops[1])
        if data & cons.w:
            n = max(n, 2)
    if prod.kind == "ds" and prod.op.startswith("ds_write") and ("b128" in prod.op or "b96" in prod.op):
        if (regs_of(prod.ops[1]) & cons.w) and cons.kind == "valu":
            n = max(n, 2)
    if prod.kind == "mfma":
        p8 = prod.passes == 8
        if cons.kind == "mfma":
            if pw & cons.srcab:
                n = max(n, 12 if p8 else 8)
            if pw & cons.srcc:
                if not (pw == cons.srcc and prod.passes == cons.passes):
                    n = max(n, 10 if p8 else 6)
            elif pw & cons.w:
                n = max(n, 12 if p8 else 8)
        elif cons.kind in ("valu", "ds", "vmem"):
            if pw & (cons.r | cons.w):
                n = max(n, 12 if p8 else 8)
            if cons.kind == "valu" and (prod.srcc & cons.w):
                n = max(n, 7 if p8 else 3)
    return n


class Asm:
    def __init__(self):
        self.lines = []

    def __call__(self, text):
        for l in text.split("\n"):
            l = l.rstrip()
            if l.strip():
                self.lines.append(l.strip())

    def label(self, name):
        self.lines.append(name + ":")

    def render(self, pad=True):
        out = []
        hist = []
        for l in self.lines:
            ins = Ins(l)
            if ins.states and pad:
                dist = 0
                req = 0
                for p in reversed(hist):
                    if dist >= 20:
                        break
                    k = need(p, ins)
                    if k - dist > req:
                        req = k - dist
                    dist += p.states
                if req > 0:
                    nop = Ins(f"s_nop {req - 1}")
                    hist.append(nop)
                    out.append(nop)
            if ins.states:
                hist.append(ins)
                if ins.op in ("s_branch", "s_endpgm"):
                    hist = []
            out.append(ins)
        self.out = out
        self.check_edges()
        txt = []
        for i in out:
            txt.append(i.text if (i.is_label or i.is_dir) else "    " + i.text)
        return "\n".join(txt) + "\n"

    def check_edges(self):
        out = self.out
        labels = {i.text.split(";")[0].strip()[:-1]: k for k, i in enumerate(out) if i.is_label}
        for k, ins in enumerate(out):
            if ins.op.startswith(("s_branch", "s_cbranch")):
                tgt = labels[ins.ops[0]]
                prods = []
                dist = 0
                j = k
                while j >= 0 and dist < 20:
                    p = out[j]
                    if p.states:
                        if j != k and p.op in ("s_branch", "s_endpgm"):
                            break
                        prods.append((p, dist))
                        dist += p.states
                    j -= 1
                d2 = 0
                j = tgt
                while j < len(out) and d2 < 20:
                    c = out[j]
                    if c.states:
                        for p, dp in prods:
                            between = dp + d2
                            if need(p, c) > between:
                                raise RuntimeError(f"hazard across branch '{ins.text}': '{p.text}' -> '{c.text}' needs {need(p, c)} has {between}")
                        d2 += c.states
                        if c.op in ("s_branch", "s_endpgm"):
                            break
                    j += 1
```

```python
import struct
import sys
from asmlib import Asm

N = 25000
E = 800000
BN = 98
CH = 3128
CHB = 25088
CAP = 320
WS_B = 4096
WS_PAY = 4 << 20
WS_OFF = 12 << 20
WS_LUT = 13 << 20
WS_POS = 14 << 20
WS_END = 16 << 20


def f2u(x):
    return struct.unpack("<I", struct.pack("<f", x))[0]


LOG2E = 1.4426950408889634
NLOG2E = hex(f2u(-LOG2E))
PLOG2E = hex(f2u(LOG2E))
NLN2 = hex(f2u(-0.6931471805599453))

OPT = dict(faithful_sq=True, prio=True, pk=True)


def srd(a, d, lo, hi, nbytes, off=0, word3="0x20000", stride=0):
    if off:
        a(f"s_add_u32 s{d}, s{lo}, {hex(off & 0xffffffff)}")
        a(f"s_addc_u32 s{d+1}, s{hi}, {0 if off >= 0 else -1}")
    else:
        a(f"s_mov_b32 s{d}, s{lo}")
        a(f"s_mov_b32 s{d+1}, s{hi}")
    if stride:
        a(f"s_and_b32 s{d+1}, s{d+1}, 0xffff")
        a(f"s_or_b32 s{d+1}, s{d+1}, {hex(stride << 16)}")
    a(f"s_mov_b32 s{d+2}, {hex(nbytes)}")
    a(f"s_mov_b32 s{d+3}, {word3}")


K1_HIST = 0
K1_PREF = 1024
K1_STAGE = 2048
K1_W2 = 28672
K1_LDS = K1_W2 + 8192


def kernel1():
    a = Asm()
    a("s_cmp_gt_u32 s2, 256")
    a("s_cbranch_scc1 K1_END")
    a("s_load_dwordx8 s[4:11], s[0:1], 0")
    a("s_load_dwordx4 s[12:15], s[0:1], 32")
    a("s_load_dwordx2 s[16:17], s[0:1], 80")
    a("v_lshrrev_b32 v1, 6, v0")
    a("v_and_b32 v2, 63, v0")
    a("v_readfirstlane_b32 s3, v1")
    a("s_and_b32 s18, s2, 7")
    a("s_lshl_b32 s18, s18, 5")
    a("s_lshr_b32 s19, s2, 3")
    a("s_add_u32 s18, s18, s19")
    a("s_cmp_eq_u32 s2, 256")
    a("s_cbranch_scc1 K1_BPATH")
    a("s_cmp_ge_u32 s3, 13")
    a("s_cbranch_scc1 K1_BPATH")
    a(f"s_mul_i32 s19, s18, {CH}")
    a("v_lshl_add_u32 v3, v0, 2, s19")
    a(f"v_cmp_gt_u32 vcc, {CH // 4}, v0")
    a(f"s_mov_b32 s56, {E}")
    a("v_cmp_gt_u32 s[58:59], s56, v3")
    a("s_and_b64 s[58:59], s[58:59], vcc")
    a("v_lshlrev_b32 v4, 2, v3")
    a("v_lshlrev_b32 v5, 1, v3")
    a("v_lshlrev_b32 v6, 2, v0")
    a("v_mov_b32 v7, 0")
    a("s_waitcnt lgkmcnt(0)")
    srd(a, 20, 12, 13, E * 4)
    srd(a, 24, 10, 11, E * 4)
    srd(a, 28, 8, 9, E * 2)
    a("buffer_load_dwordx4 v[8:11], v4, s[20:23], 0 offen")
    a("buffer_load_dwordx4 v[12:15], v4, s[24:27], 0 offen")
    a("buffer_load_dwordx2 v[16:17], v5, s[28:31], 0 offen")
    srd(a, 32, 16, 17, WS_END)
    a("s_cmp_ge_u32 s3, 4")
    a("s_cbranch_scc1 K1_NOZ")
    a(f"ds_write_b32 v6, v7 offset:{K1_HIST}")
    a.label("K1_NOZ")
    a("s_mov_b32 s56, 43826197")
    a(f"s_mov_b32 s57, {-BN}")
    a("s_mov_b32 s60, 128")
    a("s_mov_b32 s61, 0xffff0000")
    a("v_mov_b32 v18, 1")
    a("s_waitcnt lgkmcnt(0)")
    a("s_barrier")
    a("s_mov_b64 exec, s[58:59]")
    a("s_waitcnt vmcnt(2)")
    for i in range(4):
        a(f"v_mul_hi_u32 v{20+i}, v{8+i}, s56")
    for i in range(4):
        a(f"v_mad_i32_i24 v{8+i}, v{20+i}, s57, v{8+i}")
        a(f"v_lshlrev_b32 v{20+i}, 2, v{20+i}")
        a(f"ds_add_rtn_u32 v{24+i}, v{20+i}, v18 offset:{K1_HIST}")
    a("s_waitcnt vmcnt(0)")
    for i in range(4):
        a(f"v_lshl_add_u32 v{28+2*i}, v{12+i}, 7, s60")
        if i % 2 == 0:
            a(f"v_lshl_or_b32 v{29+2*i}, v{16+i//2}, 16, v{8+i}")
        else:
            a(f"v_and_or_b32 v{29+2*i}, v{16+i//2}, s61, v{8+i}")
    a("s_mov_b64 exec, -1")
    a("s_waitcnt lgkmcnt(0)")
    a("s_barrier")
    a("s_cmp_lg_u32 s3, 0")
    a("s_cbranch_scc1 K1_NOSCAN")
    a("v_lshlrev_b32 v36, 4, v2")
    a(f"ds_read_b128 v[40:43], v36 offset:{K1_HIST}")
    a("s_lshl_b32 s62, s18, 2")
    a(f"s_add_u32 s62, s62, {WS_OFF}")
    a("v_lshlrev_b32 v37, 12, v2")
    a("s_waitcnt lgkmcnt(0)")
    a("v_add_u32 v45, v40, v41")
    a("v_add_u32 v46, v45, v42")
    a("v_add_u32 v47, v46, v43")
    a("v_mov_b32 v48, v47")
    for sh in (1, 2, 4, 8):
        a(f"v_add_u32_dpp v48, v48, v48 row_shr:{sh} row_mask:0xf bank_mask:0xf bound_ctrl:1")
    a("v_add_u32_dpp v48, v48, v48 row_bcast:15 row_mask:0xa bank_mask:0xf")
    a("v_add_u32_dpp v48, v48, v48 row_bcast:31 row_mask:0xc bank_mask:0xf")
    a("v_sub_u32 v52, v48, v47")
    a("v_add_u32 v53, v52, v40")
    a("v_add_u32 v54, v52, v45")
    a("v_add_u32 v55, v52, v46")
    a(f"ds_write_b128 v36, v[52:55] offset:{K1_PREF}")
    for i in range(4):
        a(f"v_lshl_or_b32 v{40+i}, v{40+i}, 16, v{52+i}")
        a(f"buffer_store_dword v{40+i}, v37, s[32:35], s62 offen offset:{1024*i}")
    a("s_waitcnt lgkmcnt(0)")
    a.label("K1_NOSCAN")
    a("s_barrier")
    a("s_mov_b64 exec, s[58:59]")
    for i in range(4):
        a(f"ds_read_b32 v{20+i}, v{20+i} offset:{K1_PREF}")
    for i in range(4):
        a("s_waitcnt lgkmcnt(3)")
        a(f"v_add_lshl_u32 v{20+i}, v{20+i}, v{24+i}, 3")
        a(f"ds_write_b64 v{20+i}, v[{28+2*i}:{29+2*i}] offset:{K1_STAGE}")
    a("s_mov_b64 exec, -1")
    a("v_lshlrev_b32 v4, 4, v0")
    a(f"s_mul_i32 s62, s18, {CHB}")
    a(f"s_add_u32 s62, s62, {WS_PAY}")
    a(f"s_add_u32 s63, s62, {832*16}")
    a(f"v_cmp_gt_u32 vcc, {CH*8//16 - 832}, v0")
    a("s_waitcnt lgkmcnt(0)")
    a("s_barrier")
    a(f"ds_read_b128 v[8:11], v4 offset:{K1_STAGE}")
    a(f"ds_read_b128 v[12:15], v4 offset:{K1_STAGE + 832*16}")
    a("s_waitcnt lgkmcnt(1)")
    a("buffer_store_dwordx4 v[8:11], v4, s[32:35], s62 offen")
    a("s_and_b64 exec, exec, vcc")
    a("s_cbranch_execz K1_END")
    a("s_waitcnt lgkmcnt(0)")
    a("buffer_store_dwordx4 v[12:15], v4, s[32:35], s63 offen")
    a("s_endpgm")
    a.label("K1_BPATH")
    a("s_mul_i32 s19, s18, 3")
    a("s_add_u32 s19, s19, s3")
    a("s_sub_u32 s19, s19, 13")
    a("s_add_u32 s56, s3, 768")
    a("s_cmp_eq_u32 s2, 256")
    a("s_cselect_b32 s19, s56, s19")
    a("s_lshl_b32 s19, s19, 12")
    a("v_and_b32 v3, 31, v2")
    a("v_lshrrev_b32 v4, 5, v2")
    a("v_lshlrev_b32 v5, 7, v3")
    a("v_lshl_add_u32 v5, v4, 4, v5")
    a("v_add_u32 v5, s19, v5")
    a("v_lshrrev_b32 v6, 2, v2")
    a("v_lshlrev_b32 v6, 7, v6")
    a("v_and_b32 v7, 3, v2")
    a("v_lshl_add_u32 v6, v7, 4, v6")
    a("s_waitcnt lgkmcnt(0)")
    srd(a, 36, 4, 5, N * 128)
    srd(a, 40, 14, 15, 130 * 128)
    for s in range(4):
        a(f"buffer_load_dwordx4 v[{16+4*s}:{19+4*s}], v5, s[36:39], 0 offen offset:{32*s}")
    srd(a, 32, 16, 17, WS_END)
    srd(a, 44, 6, 7, N * 6)
    srd(a, 48, 16, 17, N * 128, off=WS_B)
    srd(a, 52, 16, 17, N * 8, off=WS_POS)
    a("s_cmp_lt_u32 s3, 13")
    a("s_cbranch_scc1 K1_B_NODMA")
    a("s_sub_u32 s56, s3, 13")
    a("s_mul_i32 s56, s56, 3")
    for d in range(3):
        if d == 2:
            a("s_cmp_eq_u32 s3, 15")
            a("s_cbranch_scc1 K1_B_DMA_DONE")
        a(f"s_add_u32 s57, s56, {d}")
        a("s_lshl_b32 s60, s57, 10")
        a(f"s_add_u32 m0, s60, {K1_W2}")
        a("s_and_b32 s60, s57, 3")
        a("s_lshl_b32 s60, s60, 11")
        a("s_lshr_b32 s61, s57, 2")
        a("s_lshl_b32 s61, s61, 6")
        a("s_add_u32 s60, s60, s61")
        a("s_add_u32 s60, s60, 8192")
        a("buffer_load_dwordx4 v6, s[40:43], s60 offen lds")
    a.label("K1_B_DMA_DONE")
    a("s_cmp_eq_u32 s2, 256")
    a("s_cbranch_scc1 K1_B_NODMA")
    a("s_cmp_eq_u32 s3, 13")
    a("s_cbranch_scc1 K1_B_LUT")
    a("s_sub_u32 s56, s3, 14")
    a("s_lshl_b32 s56, s56, 6")
    a("v_add_u32 v8, s56, v2")
    a(f"v_cmp_gt_u32 vcc, {BN}, v8")
    a(f"s_mul_i32 s56, s18, {BN}")
    a("v_add_u32 v8, s56, v8")
    a("v_mul_u32_u24 v9, 6, v8")
    a("v_lshlrev_b32 v8, 3, v8")
    a("s_and_b64 exec, exec, vcc")
    a("buffer_load_ushort v10, v9, s[44:47], 0 offen")
    a("buffer_load_ushort v12, v9, s[44:47], 0 offen offset:2")
    a("buffer_load_ushort v11, v9, s[44:47], 0 offen offset:4")
    a("s_barrier")
    a("s_waitcnt vmcnt(0)")
    a("v_lshl_or_b32 v10, v12, 16, v10")
    a("buffer_store_dwordx2 v[10:11], v8, s[52:55], 0 offen")
    a("s_mov_b64 exec, -1")
    a("s_branch K1_B_AFTER1")
    a.label("K1_B_LUT")
    a("s_lshl_b32 s56, s18, 7")
    a("v_lshl_add_u32 v8, v2, 1, s56")
    a("v_lshlrev_b32 v9, 1, v8")
    a("v_lshlrev_b32 v10, 16, v8")
    a("v_add_u32 v11, 0x10000, v10")
    a("s_mov_b32 s57, 0x7f800000")
    for r in (10, 11):
        a(f"v_mul_f32 v{r+2}, {PLOG2E}, v{r}")
    for r in (10, 11):
        a(f"v_exp_f32 v{r+2}, v{r+2}")
    for r in (10, 11):
        a(f"v_add_f32 v{r+2}, 1.0, v{r+2}")
    for r in (10, 11):
        a(f"v_rcp_f32 v{r+2}, v{r+2}")
    for r in (10, 11):
        a(f"v_mul_f32 v{r+2}, v{r}, v{r+2}")
        a(f"v_cmp_eq_u32 vcc, s57, v{r}")
        a(f"v_cndmask_b32 v{r+2}, v{r+2}, 0, vcc")
    a("v_cvt_pk_bf16_f32 v12, -v12, -v13")
    a(f"s_mov_b32 s56, {WS_LUT}")
    a("s_barrier")
    a("s_waitcnt vmcnt(0)")
    a("buffer_store_dword v12, v9, s[32:35], s56 offen")
    a("s_branch K1_B_AFTER1")
    a.label("K1_B_NODMA")
    a("s_barrier")
    a("s_waitcnt vmcnt(0)")
    a.label("K1_B_AFTER1")
    a("v_bfe_u32 v14, v2, 2, 2")
    a("v_lshl_add_u32 v14, v4, 3, v14")
    a("v_lshlrev_b32 v14, 6, v14")
    a("v_bfe_u32 v15, v2, 4, 1")
    a("v_lshl_add_u32 v14, v15, 5, v14")
    a("v_lshl_add_u32 v14, v7, 3, v14")
    a("v_lshlrev_b32 v15, 9, v4")
    a("v_lshl_add_u32 v15, v3, 2, v15")
    a("v_add_u32 v15, s19, v15")
    a("s_mov_b32 s60, 0xffff0000")
    a("s_mov_b32 s61, 0x80000000")
    a("s_barrier")

    def rd(k):
        s_, t = k >> 1, k & 1
        r = 4 * (k % 3)
        for q in range(2):
            a(f"ds_read_b64_tr_b16 v[{r+2*q}:{r+2*q+1}], v14 offset:{K1_W2 + t*4096 + s_*1024 + q*256}")
    for k in range(3):
        rd(k)
    for k in range(8):
        s_, t = k >> 1, k & 1
        a(f"s_waitcnt lgkmcnt({min(4, 2*(7-k))})")
        d = 32 + 16 * t
        r = 4 * (k % 3)
        c = "0" if s_ == 0 else f"v[{d}:{d+15}]"
        a(f"v_mfma_f32_32x32x16_bf16 v[{d}:{d+15}], v[{16+4*s_}:{19+4*s_}], v[{r}:{r+3}], {c}")
        if k + 3 < 8:
            rd(k + 3)
    a("s_barrier")
    for q in range(16):
        if q == 4:
            a("s_barrier")
        g, r = q >> 2, q & 3
        lo, y, t = 0, 1, 2
        a(f"v_cvt_pk_bf16_f32 v{lo}, v{32+q}, 0")
        a(f"v_mul_f32 v{y}, {NLOG2E}, v{48+q}")
        a(f"v_sub_u32 v{t}, 0x8000, v{lo}")
        a(f"v_and_b32 v3, 0x7fffffff, v{y}")
        a(f"v_add_u32 v{t}, v{t}, v3")
        a(f"v_max_i32 v{t}, 0, v{t}")
        a(f"v_and_or_b32 v{t}, v{t}, s60, v{lo}")
        a(f"v_and_or_b32 v{32+q}, v{y}, s61, v{t}")
        a(f"buffer_store_dword v{32+q}, v15, s[48:51], 0 offen offset:{(8*g + r)*128}")
    a.label("K1_END")
    a("s_endpgm")
    return a


L_SRC = 0
L_INF = 16 * CAP * 4
L_CNT = 2 * L_INF
L_TAB = L_CNT + 128
L_WH2 = L_TAB + 4096
L_WX = L_WH2 + 8192
L_LUT = L_WX + 128
L_OH = L_LUT + 65536
L_W1 = L_OH
L_WH1 = L_OH + 8192
K2_LDS = L_OH + 32768
assert L_LUT < 65536 and L_OH % 64 == 0 and K2_LDS <= 163840

ACC0, ACC1, RAW, X0, T, PK, OH, LA, XE, WE0, WE1, CC, VV, ZZ, PS = 96, 112, 80, 64, 56, 48, 40, 36, 30, 18, 24, 14, 12, 10, 8
vINF, vOHA, vTRA, vGA, vPA, vLB, vCL = 7, 6, 5, 4, 3, 2, 1
sB, sW, sN, sREM, sJ, sFL = 18, 19, 20, 21, 22, 23
sM = 24
sLO, sHI = 40, 42
SRD_B, SRD_POS, SRD_WS, SRD_H, SRD_WE, SRD_WH, SRD_OH, SRD_OP = 44, 48, 52, 56, 60, 64, 68, 72
sTB, sSEL, sT0, sT1, sT2, sT3, sNODE = 76, 77, 78, 79, 80, 81, 82


def P(a, p):
    if OPT["prio"]:
        a(f"s_setprio {p}")


def vr(b, n):
    return f"v[{b}:{b+n-1}]"


def emit_G(a, imm):
    for g in range(4):
        a(f"ds_read_b128 {vr(RAW+4*g, 4)}, v{vGA} offset:{L_SRC + imm + 32*g}")
    for g in range(4):
        a(f"s_waitcnt lgkmcnt({3-g})")
        for r in range(4):
            q = RAW + 4 * g + r
            a(f"buffer_load_dword v{q}, v{q}, s[{SRD_B}:{SRD_B+3}], 0 offen")


def emit_PA_reads(a):
    a(f"ds_read_b32 v{PS}, v{vPA} offset:{L_SRC}")
    a(f"ds_read_b32 v{vINF}, v{vPA} offset:{L_INF}")


def emit_PA_issue(a):
    a(f"v_lshrrev_b32 v{PS}, 4, v{PS}")
    a(f"v_add_u32 v{PS}, v{PS}, v{vCL}")
    a(f"v_add_u32 v{vPA}, 256, v{vPA}")
    a(f"buffer_load_dwordx2 {vr(PS, 2)}, v{PS}, s[{SRD_POS}:{SRD_POS+3}], 0 offen")


def emit_PB(a):
    t0, ta = LA, LA + 1
    a(f"v_and_b32 v{t0}, 0x70, v{vINF}")
    a(f"v_lshl_add_u32 v{ta}, v{t0}, 1, s{sTB}")
    a(f"ds_read_b128 {vr(T, 4)}, v{ta} offset:16")
    a(f"ds_read_b64 {vr(XE, 2)}, v{ta}")
    a(f"ds_read_b64 {vr(XE+4, 2)}, v{ta} offset:8")
    a(f"v_lshrrev_b32 v{t0}, 1, v{t0}")
    a(f"v_xor_b32 v{vOHA}, v{t0}, v{vLB}")
    a(f"v_perm_b32 v{XE+3}, v{vINF}, v{vINF}, s{sSEL}")
    a(f"v_lshlrev_b32 v{T+4}, 16, v{PS}")
    a(f"v_and_b32 v{T+5}, 0xffff0000, v{PS}")
    a(f"v_lshlrev_b32 v{T+6}, 16, v{PS+1}")
    a("s_waitcnt lgkmcnt(2)")
    for i in range(3):
        a(f"v_sub_f32 v{T+i}, v{T+i}, v{T+4+i}")
    a(f"v_cvt_pk_bf16_f32 v{VV}, v{T}, v{T+1}")
    a(f"v_cvt_pk_bf16_f32 v{VV+1}, v{T+2}, 1.0")
    a(f"v_lshlrev_b32 v{T}, 16, v{VV}")
    a(f"v_and_b32 v{T+1}, 0xffff0000, v{VV}")
    a(f"v_lshlrev_b32 v{T+2}, 16, v{VV+1}")
    if OPT["faithful_sq"]:
        for i in range(3):
            a(f"v_mul_f32 v{T+i}, v{T+i}, v{T+i}")
        a(f"v_cvt_pk_bf16_f32 v{T+4}, v{T}, v{T+1}")
        a(f"v_cvt_pk_bf16_f32 v{T+2}, 0, v{T+2}")
        a(f"v_lshlrev_b32 v{T}, 16, v{T+4}")
        a(f"v_and_b32 v{T+1}, 0xffff0000, v{T+4}")
        a(f"v_add_f32 v{T}, v{T}, v{T+1}")
        a(f"v_add_f32 v{T}, v{T}, v{T+2}")
    else:
        a(f"v_mul_f32 v{T}, v{T}, v{T}")
        a(f"v_fmac_f32 v{T}, v{T+1}, v{T+1}")
        a(f"v_fmac_f32 v{T}, v{T+2}, v{T+2}")
    a(f"v_cvt_pk_bf16_f32 v{XE+2}, v{T}, v{T}")
    a("s_waitcnt lgkmcnt(0)")
    a(f"v_permlane32_swap_b32 v{XE}, v{XE+4}")
    a(f"v_permlane32_swap_b32 v{XE+1}, v{XE+5}")


def emit_masks(a):
    a(f"s_min_u32 s{sT0}, s{sREM}, 63")
    a(f"s_bfm_b64 s[{sT2}:{sT2+1}], s{sT0}, 0")
    a(f"s_cmp_ge_u32 s{sREM}, 64")
    a(f"s_cselect_b64 s[{sT2}:{sT2+1}], -1, s[{sT2}:{sT2+1}]")
    a(f"s_mov_b32 s{sLO}, s{sT2}")
    a(f"s_mov_b32 s{sHI+1}, s{sT2+1}")


def lut_half(a, h):
    b = X0 + 8 * h
    for i in range(4):
        a(f"v_cvt_pk_bf16_f32 v{b+i}, v{b+2*i}, v{b+2*i+1}")
    for i in range(4):
        a(f"v_lshlrev_b16 v{b+4+i}, 1, v{b+i}")
        a(f"v_lshlrev_b16_sdwa v{LA+i}, 1, v{b+i} dst_sel:DWORD dst_unused:UNUSED_PAD src0_sel:DWORD src1_sel:WORD_1")
        a(f"ds_read_u16 v{b+4+i}, v{b+4+i} offset:{L_LUT}")
        a(f"ds_read_u16_d16_hi v{LA+i}, v{LA+i} offset:{L_LUT}")
    for i in range(4):
        a(f"v_pk_max_i16 v{b+i}, v{b+i}, 0")


def lut_merge(a, h):
    b = X0 + 8 * h
    for i in range(4):
        a(f"v_or_b32 v{b+4+i}, v{b+4+i}, v{LA+i}")


def valu_half(a, h):
    xs = [RAW + 8 * h + i for i in range(8)]
    ts = [T + i for i in range(8)]
    P(a, 1)
    for x, t in zip(xs, ts):
        a(f"v_exp_f32 v{t}, v{x}")
    if OPT["pk"]:
        for t in ts[::2]:
            a(f"v_pk_add_f32 {vr(t, 2)}, {vr(t, 2)}, 1.0 op_sel_hi:[1,0]")
    else:
        P(a, 0)
        for t in ts:
            a(f"v_add_f32 v{t}, 1.0, v{t}")
        P(a, 1)
    for t in ts:
        a(f"v_rcp_f32 v{t}, v{t}")
    if OPT["pk"]:
        for x, t in zip(xs[::2], ts[::2]):
            a(f"v_pk_mul_f32 {vr(t, 2)}, {vr(t, 2)}, {vr(x, 2)}")
    else:
        P(a, 0)
        for x, t in zip(xs, ts):
            a(f"v_mul_f32 v{t}, v{x}, v{t}")
        P(a, 1)
    for i in range(4):
        a(f"v_cvt_pk_bf16_f32 v{PK+4*h+i}, v{ts[2*i]}, v{ts[2*i+1]}")


def seg(a, acc, op, h):
    a(f"v_mfma_f32_32x32x16_bf16 {vr(acc, 16)}, {vr(op, 4)}, {vr(OH+4*h, 4)}, {vr(acc, 16)}")


def emit_tile(a, par):
    L = f"K2_T{par}"
    m = sLO if par == 0 else sHI
    a(f"s_mov_b64 exec, s[{m}:{m+1}]")
    a(f"ds_write_b64 v{vOHA}, {vr(VV, 2)}")
    a("s_mov_b64 exec, -1")
    for q in range(4):
        a(f"ds_read_b64_tr_b16 {vr(OH+2*q, 2)}, v{vTRA} offset:{512*q}")
    a(f"s_mov_b64 exec, s[{m}:{m+1}]")
    a(f"ds_write_b64 v{vOHA}, {vr(ZZ, 2)}")
    a("s_mov_b64 exec, -1")
    if par == 0:
        a(f"s_cmp_le_u32 s{sREM}, 64")
        a(f"s_cbranch_scc1 {L}_NOPA1")
        emit_PA_reads(a)
        a.label(f"{L}_NOPA1")
    a("s_waitcnt vmcnt(0)")
    P(a, 0)
    for q in range(16):
        a(f"v_lshlrev_b32 v{X0+q}, 16, v{RAW+q}")
    P(a, 1)
    xe = XE if par == 0 else XE + 2
    wo = 2 if par == 0 else 0
    a(f"v_mfma_f32_32x32x16_bf16 {vr(X0, 16)}, {vr(xe, 4)}, {vr(WE0+wo, 4)}, {vr(X0, 16)}")
    a(f"v_mfma_f32_32x32x16_bf16 {vr(RAW, 16)}, {vr(xe, 4)}, {vr(WE1+wo, 4)}, {vr(RAW, 16)}")
    a("s_waitcnt lgkmcnt(0)")
    if par == 0:
        a(f"s_cmp_le_u32 s{sREM}, 64")
        a(f"s_cbranch_scc1 {L}_NOPA2")
        emit_PA_issue(a)
        a.label(f"{L}_NOPA2")
        a("s_nop 7")
    lut_half(a, 0)
    valu_half(a, 0)
    a("s_waitcnt lgkmcnt(0)")
    lut_merge(a, 0)
    a(f"s_cmp_le_u32 s{sREM}, 16")
    a(f"s_cbranch_scc1 {L}_HALF")
    lut_half(a, 1)
    seg(a, ACC0, X0, 0)
    seg(a, ACC1, PK, 0)
    seg(a, ACC0, X0 + 4, 0)
    valu_half(a, 1)
    a(f"s_cmp_le_u32 s{sREM}, 32")
    a(f"s_cbranch_scc1 {L}_LAST")
    emit_G(a, 128 if par == 0 else 256)
    lut_merge(a, 1)
    seg(a, ACC0, X0 + 8, 1)
    seg(a, ACC1, PK + 4, 1)
    seg(a, ACC0, X0 + 12, 1)
    a(f"s_sub_u32 s{sREM}, s{sREM}, 32")
    if par == 1:
        a(f"v_add_u32 v{vGA}, 256, v{vGA}")
        emit_PB_guarded(a)
        emit_masks(a)
        a("s_branch K2_T0")
    else:
        a("s_branch K2_T1")
    a.label(f"{L}_LAST")
    a("s_waitcnt lgkmcnt(0)")
    lut_merge(a, 1)
    seg(a, ACC0, X0 + 8, 1)
    seg(a, ACC1, PK + 4, 1)
    seg(a, ACC0, X0 + 12, 1)
    a("s_branch K2_LOOP_DONE")
    a.label(f"{L}_HALF")
    seg(a, ACC0, X0, 0)
    seg(a, ACC1, PK, 0)
    seg(a, ACC0, X0 + 4, 0)
    a("s_branch K2_LOOP_DONE")


def emit_PB_guarded(a):
    emit_PB(a)


def kernel2():
    a = Asm()
    a("s_cmp_ge_u32 s2, 256")
    a("s_cbranch_scc1 K2_END")
    a("s_load_dwordx2 s[4:5], s[0:1], 0")
    a("s_load_dwordx8 s[8:15], s[0:1], 40")
    a("s_load_dwordx2 s[16:17], s[0:1], 80")
    a("v_lshrrev_b32 v1, 6, v0")
    a("v_and_b32 v0, 63, v0")
    a(f"v_readfirstlane_b32 s{sW}, v1")
    a(f"s_and_b32 s{sB}, s2, 7")
    a(f"s_lshl_b32 s{sB}, s{sB}, 5")
    a("s_lshr_b32 s3, s2, 3")
    a(f"s_add_u32 s{sB}, s{sB}, s3")
    a(f"s_mul_i32 s{sNODE}, s{sB}, {BN}")
    a(f"s_add_u32 s{sNODE}, s{sNODE}, s{sW}")
    a(f"s_mov_b32 s{sJ}, 0")
    vG, vHF, vJ, vR, vC, vG1 = 32, 33, 34, 35, 36, 37
    a(f"v_lshrrev_b32 v{vG}, 4, v0")
    a(f"v_lshrrev_b32 v{vHF}, 5, v0")
    a(f"v_and_b32 v{vJ}, 31, v0")
    a(f"v_bfe_u32 v{vR}, v0, 2, 2")
    a(f"v_and_b32 v{vC}, 3, v0")
    a(f"v_and_b32 v{vG1}, 1, v{vG}")
    a(f"s_lshl_b32 s{sT0}, s{sB}, 10")
    a(f"s_lshl_b32 s{sT1}, s{sW}, 6")
    a(f"s_add_u32 s{sT0}, s{sT0}, s{sT1}")
    a(f"s_add_u32 s{sT0}, s{sT0}, {WS_OFF}")
    a(f"v_lshlrev_b32 v38, 4, v{vG}")
    a("s_waitcnt lgkmcnt(0)")
    srd(a, SRD_WS, 16, 17, WS_END)
    a(f"buffer_load_dwordx4 v[60:63], v38, s[{SRD_WS}:{SRD_WS+3}], s{sT0} offen")
    srd(a, SRD_WE, 8, 9, 130 * 128)
    srd(a, SRD_WH, 12, 13, 128 * 128)
    srd(a, SRD_H, 4, 5, N * 128)
    a("v_lshrrev_b32 v39, 2, v0")
    a("v_lshlrev_b32 v39, 7, v39")
    a(f"v_lshl_add_u32 v39, v{vC}, 4, v39")
    a(f"s_and_b32 s{sT1}, s{sW}, 3")
    a(f"s_lshl_b32 s{sT1}, s{sT1}, 11")
    a(f"s_bfe_u32 s{sT2}, s{sW}, 0x10002")
    a(f"s_lshl_b32 s{sT2}, s{sT2}, 6")
    a(f"s_add_u32 s{sT1}, s{sT1}, s{sT2}")
    a(f"s_lshl_b32 s{sT2}, s{sW}, 10")
    a(f"s_add_u32 m0, s{sT2}, {L_W1}")
    a(f"s_cmp_ge_u32 s{sW}, 8")
    a("s_cbranch_scc1 K2_DMA_HI")
    a(f"buffer_load_dwordx4 v39, s[{SRD_WE}:{SRD_WE+3}], s{sT1} offen lds")
    a(f"s_add_u32 m0, s{sT2}, {L_WH2}")
    a(f"s_add_u32 s{sT1}, s{sT1}, 8192")
    a(f"buffer_load_dwordx4 v39, s[{SRD_WH}:{SRD_WH+3}], s{sT1} offen lds")
    a("s_branch K2_DMA_DONE")
    a.label("K2_DMA_HI")
    a(f"buffer_load_dwordx4 v39, s[{SRD_WH}:{SRD_WH+3}], s{sT1} offen lds")
    a.label("K2_DMA_DONE")
    a(f"s_lshl_b32 s{sT1}, s{sNODE}, 7")
    a(f"v_lshlrev_b32 v40, 11, v{vJ}")
    a(f"v_lshl_add_u32 v40, v{vHF}, 4, v40")
    a(f"v_cmp_gt_u32 vcc, 8, v{vJ}")
    a("s_mov_b64 exec, vcc")
    for s in range(4):
        a(f"buffer_load_dwordx4 {vr(80+4*s, 4)}, v40, s[{SRD_H}:{SRD_H+3}], s{sT1} offen offset:{32*s}")
    a("s_mov_b64 exec, -1")
    a(f"v_lshlrev_b32 v41, 1, v{vJ}")
    a(f"s_mov_b32 s{sT2}, {128*128}")
    for i, off in enumerate((0, 64, 128, 192)):
        a(f"buffer_load_ushort v{8+i}, v41, s[{SRD_WE}:{SRD_WE+3}], s{sT2} offen offset:{off}")
    srd(a, SRD_POS, 16, 17, N * 8, off=WS_POS)
    a(f"s_lshl_b32 s{sT1}, s{sNODE}, 3")
    a("v_lshlrev_b32 v42, 7, v0")
    a("s_mov_b64 exec, 0xff")
    a(f"buffer_load_dwordx2 v[12:13], v42, s[{SRD_POS}:{SRD_POS+3}], s{sT1} offen")
    a("s_mov_b64 exec, -1")
    a("v_lshlrev_b32 v43, 2, v0")
    a(f"s_cmp_lg_u32 s{sW}, 15")
    a("s_cbranch_scc1 K2_NOWX")
    srd(a, SRD_OH, 10, 11, 128)
    a(f"s_mov_b32 m0, {L_WX}")
    a("s_mov_b64 exec, 0xffffffff")
    a(f"buffer_load_dword v43, s[{SRD_OH}:{SRD_OH+3}], 0 offen lds")
    a("s_mov_b64 exec, -1")
    a.label("K2_NOWX")
    srd(a, SRD_B, 16, 17, 0x10000, off=WS_B - 128, word3="0x800000", stride=4)
    srd(a, SRD_OH, 14, 15, N * 128)
    srd(a, SRD_OP, 14, 15, N * 6, off=N * 128)
    a("v_mov_b32 v44, 0")
    a(f"s_cmp_lg_u32 s{sW}, 0")
    a("s_cbranch_scc1 K2_NOCNT")
    a("s_mov_b64 exec, 0xffffffff")
    a(f"ds_write_b32 v43, v44 offset:{L_CNT}")
    a("s_mov_b64 exec, -1")
    a.label("K2_NOCNT")
    a(f"s_lshl_b32 s{sTB}, s{sW}, 8")
    a(f"s_add_u32 s{sTB}, s{sTB}, {L_TAB}")
    a("v_and_b32 v45, 1, v0")
    a("v_lshlrev_b32 v45, 4, v45")
    a("v_mov_b32 v46, 0x3f80")
    a("v_lshlrev_b32 v45, v45, v46")
    a("v_lshrrev_b32 v46, 1, v0")
    for d in range(4):
        a(f"v_cmp_eq_u32 s[{sM+2*d}:{sM+2*d+1}], {d}, v46")
    for d in range(4):
        a(f"v_cndmask_b32 v{48+d}, 0, v45, s[{sM+2*d}:{sM+2*d+1}]")
    a(f"v_lshl_add_u32 v47, v0, 5, s{sTB}")
    a("s_mov_b64 exec, 0xff")
    a("ds_write_b128 v47, v[48:51]")
    a("s_mov_b64 exec, -1")
    a(f"s_lshl_b32 s{sT0}, s{sW}, 11")
    a(f"s_add_u32 s{sT0}, s{sT0}, {L_OH}")
    a(f"v_bfe_u32 v45, v0, 1, 2")
    a(f"v_lshlrev_b32 v{vLB}, 6, v{vJ}")
    a(f"v_lshl_add_u32 v{vLB}, v45, 3, v{vLB}")
    a(f"v_add_u32 v{vLB}, s{sT0}, v{vLB}")
    a(f"v_lshl_add_u32 v45, v{vHF}, 2, v{vR}")
    a(f"v_lshl_add_u32 v46, v{vG1}, 2, v{vC}")
    a("v_bfe_u32 v52, v45, 1, 2")
    a("v_xor_b32 v46, v46, v52")
    a(f"v_lshlrev_b32 v{vTRA}, 6, v45")
    a(f"v_lshl_add_u32 v{vTRA}, v46, 3, v{vTRA}")
    a(f"v_add_u32 v{vTRA}, s{sT0}, v{vTRA}")
    a(f"v_and_b32 v{vCL}, 4, v0")
    a(f"v_lshlrev_b32 v{vCL}, 1, v{vCL}")
    a(f"v_subrev_u32 v{vCL}, 8, v{vCL}")
    a(f"s_mov_b32 s{sSEL}, 0x03020302")
    a(f"s_mov_b32 s{sLO+1}, 0")
    a(f"s_mov_b32 s{sHI}, 0")
    a(f"v_lshl_add_u32 v45, v{vHF}, 3, v{vR}")
    a("v_lshlrev_b32 v45, 6, v45")
    a(f"v_lshl_add_u32 v45, v{vG1}, 5, v45")
    a(f"v_lshl_add_u32 v45, v{vC}, 3, v45")
    a(f"v_add_u32 v{vINF}, {L_W1}, v45")
    a(f"v_mov_b32 v{vOHA}, v{vHF}")

    def payload_issue(first):
        a("v_and_b32 v52, 15, v0")
        a("v_lshlrev_b32 v52, 1, v52")
        a(f"s_lshl_b32 s{sT1}, s{sJ}, 5")
        a(f"v_add_u32 v52, s{sT1}, v52")
        a("v_add_u32 v53, 1, v52")
        a("v_lshrrev_b32 v54, 4, v0")
        a(f"s_mov_b32 s{sT2}, {4*CHB}")
        a(f"v_mul_u32_u24 v54, s{sT2}, v54")
        a(f"s_mul_i32 s{sT2}, s{sW}, {16*CHB}")
        a(f"s_add_u32 s{sT2}, s{sT2}, {WS_PAY}")
        if not first:
            a(f"s_and_b32 s{sT1}, s{sFL}, 1")
        for i in range(4):
            a(f"v_lshrrev_b32 v55, 16, v{60+i}")
            a(f"v_and_b32 v{60+i}, 0xffff, v{60+i}")
            if not first:
                a(f"s_cmp_lg_u32 s{sT1}, 0")
                a(f"s_cbranch_scc1 K2_KEEPM{i}")
            a(f"v_cmp_lt_u32 s[{sM+4*i}:{sM+4*i+1}], v52, v55")
            a(f"v_cmp_lt_u32 s[{sM+4*i+2}:{sM+4*i+3}], v53, v55")
            if not first:
                a.label(f"K2_KEEPM{i}")
            a(f"v_max_u32 v59, v59, v55" if i else "v_mov_b32 v59, v55")
            a(f"v_add_u32 v{60+i}, v{60+i}, v52")
            a(f"v_lshl_add_u32 v{60+i}, v{60+i}, 3, v54")
            a(f"s_or_b64 exec, s[{sM+4*i}:{sM+4*i+1}], s[{sM+4*i+2}:{sM+4*i+3}]")
            a(f"buffer_load_dwordx4 {vr(64+4*i, 4)}, v{60+i}, s[{SRD_WS}:{SRD_WS+3}], s{sT2} offen")
            a("s_mov_b64 exec, -1")
            a(f"s_add_u32 s{sT2}, s{sT2}, {CHB}")
        a(f"s_lshl_b32 s{sT1}, s{sJ}, 5")
        a(f"s_add_u32 s{sT1}, s{sT1}, 32")
        a(f"v_cmp_lt_u32 s[{sT2}:{sT2+1}], s{sT1}, v59")

    a("s_waitcnt vmcnt(10)")
    payload_issue(True)
    a(f"s_mov_b64 s[84:85], s[{sT2}:{sT2+1}]")
    a("v_lshlrev_b32 v52, 4, v0")
    a(f"s_lshl_b32 s{sT0}, s{sW}, 12")
    a(f"s_add_u32 s{sT1}, s{sT0}, {WS_LUT}")
    a(f"s_add_u32 m0, s{sT0}, {L_LUT}")
    for i in range(4):
        a(f"buffer_load_dwordx4 v52, s[{SRD_WS}:{SRD_WS+3}], s{sT1} offen offset:{1024*i} lds")
    a("s_waitcnt vmcnt(8)")
    a("v_lshlrev_b32 v48, 16, v12")
    a("v_and_b32 v49, 0xffff0000, v12")
    a("v_lshlrev_b32 v50, 16, v13")
    a("v_mov_b32 v51, 0")
    a("s_mov_b64 exec, 0xff")
    a("ds_write_b128 v47, v[48:51] offset:16")
    a("s_mov_b64 exec, -1")
    a(f"v_cmp_eq_u32 s[{sT2}:{sT2+1}], 0, v{vOHA}")
    for i, r in enumerate((9, 11)):
        a(f"v_lshlrev_b32 v{r}, 16, v{r}")
        a(f"v_mul_f32 v{r}, {NLOG2E}, v{r}")
        a(f"v_cvt_pk_bf16_f32 v48, v{r}, 0")
        a("v_lshlrev_b32 v48, 16, v48")
        a(f"v_sub_f32 v49, v{r}, v48")
        a(f"v_cvt_pk_bf16_f32 v{r}, v48, v49")
    for we, (d, e) in ((WE0, (8, 10)), (WE1, (9, 11))):
        a(f"v_cndmask_b32 v{we+4}, 0, v{d}, s[{sT2}:{sT2+1}]")
        a(f"v_cndmask_b32 v{we+5}, 0, v{e}, s[{sT2}:{sT2+1}]")
        a(f"v_cndmask_b32 v{we}, v{d}, 0, s[{sT2}:{sT2+1}]")
        a(f"v_cndmask_b32 v{we+1}, v{e}, 0, s[{sT2}:{sT2+1}]")
    a("s_waitcnt lgkmcnt(0)")
    a("s_barrier")
    for mat in range(2):
        for s in range(4):
            for t in range(2):
                for q in range(2):
                    r = 32 + 8 * s + 4 * t + 2 * q
                    a(f"ds_read_b64_tr_b16 {vr(r, 2)}, v{vINF} offset:{mat*8192 + t*4096 + s*1024 + q*256}")
        if mat == 1:
            a(f"v_cvt_pk_bf16_f32 v{WE0+2}, v96, v97")
            a(f"v_cvt_pk_bf16_f32 v{WE0+3}, v98, v99")
            for r in range(4):
                a(f"v_mul_f32 v{112+r}, {NLOG2E}, v{112+r}")
            a(f"v_cvt_pk_bf16_f32 v{WE1+2}, v112, v113")
            a(f"v_cvt_pk_bf16_f32 v{WE1+3}, v114, v115")
        for s in range(4):
            a(f"s_waitcnt lgkmcnt({12 - 4*s})")
            for t in range(2):
                d = 96 + 16 * t
                r = 32 + 8 * s + 4 * t
                c = "0" if s == 0 else vr(d, 16)
                a(f"v_mfma_f32_32x32x16_bf16 {vr(d, 16)}, {vr(80+4*s, 4)}, {vr(r, 4)}, {c}")
    a(f"v_mov_b32 v{ZZ}, 0")
    a(f"v_mov_b32 v{ZZ+1}, 0")
    a(f"v_cvt_pk_bf16_f32 v{CC}, v96, v97")
    a(f"v_cvt_pk_bf16_f32 v{CC+1}, v98, v99")
    a(f"v_cvt_pk_bf16_f32 v{CC+2}, v112, v113")
    a(f"v_cvt_pk_bf16_f32 v{CC+3}, v114, v115")
    for i in range(32):
        a(f"v_mov_b32 v{96+i}, 0")
    a("s_waitcnt vmcnt(4)")
    a.label("K2_APPEND")
    a("v_mov_b32 v48, 4")
    a(f"s_mov_b32 s{sT0}, {CAP}")
    a(f"s_mov_b32 s{sT1}, {CAP*4}")
    for u in range(8):
        a(f"s_mov_b64 exec, s[{sM+2*u}:{sM+2*u+1}]")
        a(f"v_and_b32 v{32+u}, 15, v{65+2*u}")
        a(f"v_lshlrev_b32 v{32+u}, 2, v{32+u}")
        a(f"ds_add_rtn_u32 v{40+u}, v{32+u}, v48 offset:{L_CNT}")
    a(f"s_mov_b64 s[{sT2}:{sT2+1}], 0")
    for u in range(8):
        a(f"s_mov_b64 exec, s[{sM+2*u}:{sM+2*u+1}]")
        a(f"s_waitcnt lgkmcnt({min(15, 7 - u + 2*u)})")
        a(f"v_cmp_gt_u32 vcc, s{sT1}, v{40+u}")
        a(f"v_mad_u32_u24 v{32+u}, v{32+u}, s{sT0}, v{40+u}")
        a(f"v_and_b32 v{40+u}, 16, v{40+u}")
        a(f"v_mad_i32_i24 v{64+2*u}, v{40+u}, -8, v{64+2*u}")
        a(f"s_andn2_b64 s[{sM+2*u}:{sM+2*u+1}], exec, vcc")
        a("s_mov_b64 exec, vcc")
        a(f"ds_write_b32 v{32+u}, v{64+2*u} offset:{L_SRC}")
        a(f"ds_write_b32 v{32+u}, v{65+2*u} offset:{L_INF}")
        a(f"s_or_b64 s[{sT2}:{sT2+1}], s[{sT2}:{sT2+1}], s[{sM+2*u}:{sM+2*u+1}]")
    a(f"s_mov_b64 exec, s[{sT2}:{sT2+1}]")
    a("s_cbranch_execz K2_NOF1")
    a(f"ds_write_b32 v{ZZ}, v48 offset:{L_CNT + 64}")
    a.label("K2_NOF1")
    a("s_mov_b64 exec, s[84:85]")
    a("s_cbranch_execz K2_NOF2")
    a(f"ds_write_b32 v{ZZ}, v48 offset:{L_CNT + 68}")
    a.label("K2_NOF2")
    a("s_mov_b64 exec, -1")
    a("s_waitcnt vmcnt(0) lgkmcnt(0)")
    a("s_barrier")
    a(f"s_lshl_b32 s{sT0}, s{sW}, 2")
    a(f"v_mov_b32 v32, s{sT0}")
    a(f"ds_read_b32 v33, v32 offset:{L_CNT}")
    a(f"ds_read_b64 v[34:35], v{ZZ} offset:{L_CNT + 64}")
    a(f"s_lshl_b32 s{sT0}, s{sW}, 11")
    a(f"s_add_u32 s{sT0}, s{sT0}, {L_OH}")
    a(f"v_lshl_add_u32 v36, v0, 4, s{sT0}")
    for i in range(4):
        a(f"v_mov_b32 v{40+i}, 0")
    a("ds_write_b128 v36, v[40:43]")
    a("ds_write_b128 v36, v[40:43] offset:1024")
    a(f"s_mul_i32 s{sT1}, s{sW}, {CAP*4}")
    a(f"v_lshl_add_u32 v{vPA}, v0, 2, s{sT1}")
    a("v_lshrrev_b32 v37, 5, v0")
    a(f"v_lshl_add_u32 v{vGA}, v37, 4, s{sT1}")
    a("s_waitcnt lgkmcnt(2)")
    a(f"v_readfirstlane_b32 s{sN}, v33")
    a(f"v_readfirstlane_b32 s{sT2}, v34")
    a(f"v_readfirstlane_b32 s{sT3}, v35")
    a(f"s_lshr_b32 s{sN}, s{sN}, 2")
    a(f"s_min_u32 s{sN}, s{sN}, {CAP}")
    a(f"s_cmp_lg_u32 s{sT2}, 0")
    a(f"s_cselect_b32 s{sFL}, 1, 0")
    a(f"s_cmp_lg_u32 s{sT3}, 0")
    a(f"s_cselect_b32 s{sT3}, 2, 0")
    a(f"s_or_b32 s{sFL}, s{sFL}, s{sT3}")
    a(f"s_cmp_eq_u32 s{sN}, 0")
    a("s_cbranch_scc1 K2_LOOP_DONE")
    a(f"s_and_b32 s{sT0}, s{sN}, 63")
    a("s_cbranch_scc0 K2_NOFILL")
    a(f"s_bfm_b64 s[{sT2}:{sT2+1}], s{sT0}, 0")
    a(f"s_andn2_b32 s{sT0}, s{sN}, 63")
    a(f"s_lshl_b32 s{sT0}, s{sT0}, 2")
    a(f"v_add_u32 v36, s{sT0}, v{vPA}")
    a(f"v_lshlrev_b32 v37, 4, v{vCL}")
    a(f"v_sub_u32 v37, 0, v37")
    a(f"s_not_b64 exec, s[{sT2}:{sT2+1}]")
    a(f"ds_write_b32 v36, v37 offset:{L_SRC}")
    a(f"ds_write_b32 v36, v{ZZ} offset:{L_INF}")
    a("s_mov_b64 exec, -1")
    a.label("K2_NOFILL")
    a(f"s_mov_b32 s{sREM}, s{sN}")
    emit_PA_reads(a)
    emit_G(a, 0)
    emit_PA_issue(a)
    emit_masks(a)
    a("s_waitcnt vmcnt(0)")
    emit_PB(a)
    a.label("K2_T0")
    emit_tile(a, 0)
    a.label("K2_T1")
    emit_tile(a, 1)
    a.label("K2_LOOP_DONE")
    P(a, 0)
    a(f"s_cmp_eq_u32 s{sFL}, 0")
    a("s_cbranch_scc1 K2_EPI")
    a("s_barrier")
    a(f"s_cmp_lg_u32 s{sW}, 0")
    a("s_cbranch_scc1 K2_NOCNT2")
    a("v_lshlrev_b32 v32, 2, v0")
    a("s_mov_b64 exec, 0xffffffff")
    a(f"ds_write_b32 v32, v{ZZ} offset:{L_CNT}")
    a("s_mov_b64 exec, -1")
    a.label("K2_NOCNT2")
    a(f"s_lshl_b32 s{sT0}, s{sB}, 10")
    a(f"s_lshl_b32 s{sT1}, s{sW}, 6")
    a(f"s_add_u32 s{sT0}, s{sT0}, s{sT1}")
    a(f"s_add_u32 s{sT0}, s{sT0}, {WS_OFF}")
    a("v_lshrrev_b32 v38, 4, v0")
    a("v_lshlrev_b32 v38, 4, v38")
    a(f"buffer_load_dwordx4 v[60:63], v38, s[{SRD_WS}:{SRD_WS+3}], s{sT0} offen")
    a(f"s_and_b32 s{sT1}, s{sFL}, 1")
    a(f"s_xor_b32 s{sT1}, s{sT1}, 1")
    a(f"s_add_u32 s{sJ}, s{sJ}, s{sT1}")
    a("s_waitcnt vmcnt(0) lgkmcnt(0)")
    a("s_barrier")
    payload_issue(False)
    a(f"s_mov_b64 s[84:85], s[{sT2}:{sT2+1}]")
    a("s_waitcnt vmcnt(0)")
    a("s_branch K2_APPEND")
    a.label("K2_EPI")
    vJ, vHF = 32, 33
    a(f"v_and_b32 v{vJ}, 31, v0")
    a(f"v_lshrrev_b32 v{vHF}, 5, v0")
    a(f"v_lshlrev_b32 v34, 11, v{vHF}")
    a(f"v_lshl_add_u32 v34, v{vJ}, 1, v34")
    a(f"s_lshl_b32 s{sT0}, s{sNODE}, 7")
    for g in range(4):
        a(f"s_add_u32 s{sM+g}, s{sT0}, {g*4096}")
    HR = 40
    for g in range(4):
        for t in range(2):
            a(f"buffer_load_ushort v{HR+2*g+t}, v34, s[{SRD_H}:{SRD_H+3}], s{sM+g} offen offset:{64*t}")
    a(f"v_lshrrev_b32 v35, 2, v{vJ}")
    a(f"v_lshl_add_u32 v36, v35, 5, s{sTB}")
    a(f"v_lshl_add_u32 v37, v{vHF}, 3, v36")
    a("ds_read_b64 v[38:39], v37")
    a("v_and_b32 v37, 3, v0")
    a("v_lshl_add_u32 v36, v37, 2, v36")
    a("ds_read_b32 v30, v36 offset:16")
    a("v_bfe_u32 v36, v0, 2, 2")
    a(f"v_lshl_add_u32 v36, v{vHF}, 2, v36")
    a("v_lshlrev_b32 v36, 6, v36")
    a("v_bfe_u32 v31, v0, 4, 1")
    a("v_lshl_add_u32 v36, v31, 5, v36")
    a("v_lshl_add_u32 v36, v37, 3, v36")
    a(f"v_lshlrev_b32 v31, 3, v{vHF}")
    a("v_lshlrev_b32 v29, 4, v35")
    a(f"v_add_u32 v29, s{sW}, v29")
    a(f"s_mov_b32 s{sT1}, {BN}")
    a(f"v_cmp_gt_u32 s[84:85], s{sT1}, v29")
    a("v_cmp_gt_u32 vcc, 3, v37")
    a("s_and_b64 s[84:85], s[84:85], vcc")
    a("s_mov_b32 s85, 0")
    a(f"s_mul_i32 s{sT1}, s{sB}, {BN}")
    a(f"v_add_u32 v29, s{sT1}, v29")
    a("v_mul_u32_u24 v29, 6, v29")
    a("v_lshl_add_u32 v29, v37, 1, v29")
    SP = 48
    a("s_nop 7")
    for q in range(16):
        a(f"v_mul_f32 v{ACC1+q}, {NLN2}, v{ACC1+q}")
    for t in range(2):
        for i in range(8):
            b = (ACC0, ACC1)[t]
            a(f"v_cvt_pk_bf16_f32 v{SP+8*t+i}, v{b+2*i}, v{b+2*i+1}")
    D0, D1, D3 = 64, 80, 96
    a("s_waitcnt lgkmcnt(0)")
    a(f"v_mfma_f32_32x32x8bf16_1k {vr(D0, 16)}, v[38:39], {vr(CC, 2)}, 0")
    a(f"v_mfma_f32_32x32x8bf16_1k {vr(D1, 16)}, v[38:39], {vr(CC+2, 2)}, 0")
    BT = 112
    for ks in range(4):
        t, s = ks >> 1, ks & 1
        for tc in range(2):
            for q in range(2):
                a(f"ds_read_b64_tr_b16 {vr(BT+4*tc+2*q, 2)}, v36 offset:{L_WH2 + tc*4096 + (32*t + 16*s + 8*q)*64}")
        o = (L_WX + 64 * t + 32 * s) // 8
        a(f"ds_read_b64 {vr(BT+8, 2)}, v31 offset:{o*8}")
        a(f"ds_read_b64 {vr(BT+10, 2)}, v31 offset:{o*8 + 16}")
        a("s_waitcnt lgkmcnt(0)")
        sp = vr(SP + 4 * ks, 4)
        a(f"v_mfma_f32_32x32x16_bf16 {vr(D0, 16)}, {sp}, {vr(BT, 4)}, {vr(D0, 16)}")
        a(f"v_mfma_f32_32x32x16_bf16 {vr(D1, 16)}, {sp}, {vr(BT+4, 4)}, {vr(D1, 16)}")
        c = "0" if ks == 0 else vr(D3, 16)
        a(f"v_mfma_f32_32x32x16_bf16 {vr(D3, 16)}, {vr(BT+8, 4)}, {sp}, {c}")
    xs = [(D0, D1)[t] + 4 * g + 3 for g in range(4) for t in range(2)]
    ts = [48 + i for i in range(8)]
    for x, t in zip(xs, ts):
        a(f"v_mul_f32 v{t}, {NLOG2E}, v{x}")
    for t in ts:
        a(f"v_exp_f32 v{t}, v{t}")
    for t in ts:
        a(f"v_add_f32 v{t}, 1.0, v{t}")
    for t in ts:
        a(f"v_rcp_f32 v{t}, v{t}")
    a("s_waitcnt vmcnt(0)")
    for i in range(8):
        a(f"v_lshlrev_b32 v{HR+i}, 16, v{HR+i}")
    for i, (x, t) in enumerate(zip(xs, ts)):
        a(f"v_fmac_f32 v{HR+i}, v{x}, v{t}")
    for i in range(8):
        a(f"v_cvt_pk_bf16_f32 v{HR+i}, v{HR+i}, v{HR+i}")
    for g in range(3):
        for t in range(2):
            a(f"buffer_store_short v{HR+2*g+t}, v34, s[{SRD_OH}:{SRD_OH+3}], s{sM+g} offen offset:{64*t}")
    a(f"v_add_f32 v30, v30, v{D3}")
    a("v_cvt_pk_bf16_f32 v30, v30, v30")
    a("s_mov_b64 exec, s[84:85]")
    a(f"buffer_store_short v30, v29, s[{SRD_OP}:{SRD_OP+3}], 0 offen")
    a(f"s_cmp_ge_u32 s{sW}, {BN - 96}")
    a("s_cbranch_scc1 K2_END")
    a("s_mov_b64 exec, 0xffffffff")
    for t in range(2):
        a(f"buffer_store_short v{HR+6+t}, v34, s[{SRD_OH}:{SRD_OH+3}], s{sM+3} offen offset:{64*t}")
    a.label("K2_END")
    a("s_endpgm")
    return a


HEADER = """; EGNN layer on gfx950: launch 1 bins the edges by destination bucket and builds per-node tables,
"""


def desc(name, vg, sg):
    return f""".p2align 6
.amdhsa_kernel {name}
  .amdhsa_next_free_vgpr {vg}
  .amdhsa_next_free_sgpr {sg}
  .amdhsa_accum_offset {vg}
  .amdhsa_group_segment_fixed_size 0
  .amdhsa_kernarg_size 88
  .amdhsa_user_sgpr_count 2
  .amdhsa_user_sgpr_kernarg_segment_ptr 1
  .amdhsa_system_sgpr_workgroup_id_x 1
  .amdhsa_float_denorm_mode_32 3
.end_amdhsa_kernel
"""


def build(extra_empty=0):
    s = HEADER
    s += f"; @launch kernel=bin_kernel grid=(257,1,1) block=(1024,1,1) lds={K1_LDS}\n"
    for i in range(extra_empty):
        s += "; @launch kernel=nop_kernel grid=(256,1,1) block=(64,1,1) lds=0\n"
    s += f"; @launch kernel=edge_kernel grid=(256,1,1) block=(1024,1,1) lds={K2_LDS}\n"
    s += '.amdgcn_target "amdgcn-amd-amdhsa--gfx950"\n.text\n'
    ks = [("bin_kernel", kernel1(), 64, 64), ("edge_kernel", kernel2(), 128, 96)]
    if extra_empty:
        e = Asm()
        e("s_endpgm")
        ks.append(("nop_kernel", e, 8, 16))
    for name, k, vg, sg in ks:
        s += f".globl {name}\n.p2align 8\n.type {name},@function\n{name}:\n" + k.render()
    s += '.section .rodata,"a"\n'
    for name, k, vg, sg in ks:
        s += desc(name, vg, sg)
    return s


if __name__ == "__main__":
    out = sys.argv[1] if len(sys.argv) > 1 else "standalone__cheap_equivariant_egnn__graph.s"
    extra = 0
    for arg in sys.argv[2:]:
        k, v = arg.split("=")
        if k == "extra":
            extra = int(v)
        else:
            OPT[k] = int(v)
    open(out, "w").write(build(extra))
    print("wrote", out)
```

```python
import re

TRANS = ("v_exp_f32", "v_log_f32", "v_rcp_f32", "v_rsq_f32", "v_sqrt_f32", "v_sin_f32", "v_cos_f32")


def regs_of(tok):
    tok = tok.strip()
    tok = tok.lstrip("-")
    if tok.startswith("abs(") or tok.startswith("|"):
        tok = tok.replace("abs(", "").replace(")", "").replace("|", "")
    m = re.fullmatch(r"([vsa])(\d+)", tok)
    if m:
        return {m.group(1) + m.group(2)}
    m = re.fullmatch(r"([vsa])\[(\d+):(\d+)\]", tok)
    if m:
        return {m.group(1) + str(i) for i in range(int(m.group(2)), int(m.group(3)) + 1)}
    if tok == "vcc":
        return {"vcc"}
    if tok in ("vcc_lo", "vcc_hi"):
        return {"vcc"}
    if tok in ("exec", "exec_lo", "exec_hi"):
        return {"exec"}
    if tok == "m0":
        return {"m0"}
    return set()


class Ins:
    def __init__(self, text):
        self.text = text
        t = text.split(";")[0].strip()
        self.is_label = t.endswith(":")
        self.is_dir = t.startswith(".")
        self.op = ""
        self.w = set()
        self.r = set()
        self.kind = "other"
        self.srcc = set()
        self.srcab = set()
        self.passes = 0
        self.states = 1
        if self.is_label or self.is_dir or not t:
            self.states = 0
            return
        parts = t.split(None, 1)
        self.op = op = parts[0]
        rest = parts[1] if len(parts) > 1 else ""
        ops = []
        cur = ""
        depth = 0
        for ch in rest:
            if ch == "[":
                depth += 1
            if ch == "]":
                depth -= 1
            if ch == "," and depth == 0:
                ops.append(cur.strip())
                cur = ""
            else:
                cur += ch
        if cur.strip():
            ops.append(cur.strip())
        mods = ""
        if ops:
            sp = ops[-1].split(None, 1)
            ops[-1] = sp[0]
            mods = sp[1] if len(sp) > 1 else ""
        self.mods = mods
        self.ops = ops
        R = [regs_of(o) for o in ops]
        if op == "s_nop":
            self.states = int(ops[0], 0) + 1
            self.kind = "salu"
        elif op.startswith("v_mfma"):
            self.kind = "mfma"
            self.w = R[0]
            self.srcab = R[1] | R[2]
            self.srcc = R[3]
            self.r = self.srcab | self.srcc
            self.passes = 8 if "32x32" in op else 4
        elif op.startswith("v_"):
            self.kind = "valu"
            if op.startswith("v_cmpx"):
                self.w = R[0] | {"exec"}
                self.r = set().union(*R[1:])
            elif op.startswith("v_permlane"):
                self.w = R[0] | R[1]
                self.r = R[0] | R[1]
            elif op.startswith(("v_add_co", "v_sub_co", "v_addc_co", "v_subb_co")):
                self.w = R[0] | R[1]
                self.r = set().union(*R[2:])
            else:
                self.w = R[0]
                self.r = set().union(*R[1:]) if len(R) > 1 else set()
                if op.startswith(("v_fmac", "v_dot2c")) or "UNUSED_PRESERVE" in mods or "dpp" in op or "row_" in mods:
                    self.r |= R[0]
                if op.startswith("v_writelane"):
                    self.r |= R[0]
        elif op.startswith("ds_"):
            self.kind = "ds"
            if op.startswith(("ds_read", "ds_bpermute", "ds_permute", "ds_swizzle")) or "_rtn" in op:
                self.w = R[0]
                self.r = set().union(*R[1:]) if len(R) > 1 else set()
                if "d16" in op:
                    self.r |= R[0]
            else:
                self.r = set().union(*R)
            if "addtid" in op:
                self.r |= {"m0"}
        elif op.startswith(("buffer_", "global_")):
            self.kind = "vmem"
            lds = bool(re.search(r"\blds\b", mods)) or "_lds_" in op
            self.lds = lds
            if "load" in op and not lds:
                self.w = R[0]
                self.r = set().union(*R[1:])
                if "d16" in op:
                    self.r |= R[0]
            else:
                self.r = set().union(*R) if R else set()
                if lds:
                    self.r |= {"m0"}
                if "atomic" in op and "sc0" in mods:
                    self.w = R[0]
        elif op.startswith("s_"):
            self.kind = "salu"
            if op.startswith(("s_cmp", "s_waitcnt", "s_barrier", "s_branch", "s_cbranch", "s_endpgm", "s_setprio", "s_sleep", "s_bitcmp")):
                self.r = set().union(*R) if R else set()
            elif op.startswith(("s_load", "s_memtime", "s_memrealtime", "s_buffer_load")):
                self.kind = "smem"
                self.w = R[0]
                self.r = set().union(*R[1:]) if len(R) > 1 else set()
            else:
                self.w = R[0] if R else set()
                self.r = set().union(*R[1:]) if len(R) > 1 else set()
                if "saveexec" in op:
                    self.w |= {"exec"}


def isv(x):
    return x[0] in "va" and x != "vcc"


def need(prod, cons):
    n = 0
    pw = prod.w
    if prod.kind == "valu":
        vw = {x for x in pw if isv(x)}
        sw = {x for x in pw if not isv(x)}
        if cons.kind == "mfma" and (vw & cons.r):
            n = max(n, 2)
        if cons.kind == "mfma" and "exec" in sw:
            n = max(n, 4)
        if cons.kind == "valu":
            dpp = "dpp" in cons.op or "row_" in getattr(cons, "mods", "") or "quad_perm" in getattr(cons, "mods", "")
            if dpp and (vw & cons.r):
                n = max(n, 2)
            if dpp and "exec" in sw:
                n = max(n, 5)
            if cons.op.startswith("v_permlane") and (vw & cons.r):
                n = max(n, 2)
            if cons.op.startswith("v_permlane") and "exec" in sw:
                n = max(n, 4)
            if cons.op.startswith(("v_readlane", "v_readfirstlane")) and (vw & cons.r):
                n = max(n, 1)
            if cons.op.startswith(("v_readlane", "v_readfirstlane", "v_writelane")) and "exec" in sw:
                n = max(n, 4)
            if (sw - {"exec"}) & cons.r:
                n = max(n, 4 if cons.op.startswith(("v_readlane", "v_writelane")) else 2)
            if prod.op.startswith(TRANS) and not cons.op.startswith(TRANS) and (vw & cons.r):
                n = max(n, 1)
            if ("sdwa" in prod.op and "dst_sel:DWORD" not in prod.mods) and (vw & (cons.r | cons.w)):
                n = max(n, 1)
        if cons.kind in ("vmem",) and (sw & cons.r):
            n = max(n, 5)
        if cons.kind in ("salu", "smem") and (sw & cons.r):
            n = max(n, 1)
    if prod.kind == "salu" and "m0" in pw and cons.kind in ("vmem", "ds") and "m0" in cons.r:
        n = max(n, 1)
    if prod.kind == "vmem" and "store" in prod.op and ("x3" in prod.op or "x4" in prod.op):
        data = regs_of(prod.ops[0]) if prod.op.startswith("buffer_") else regs_of(prod.ops[1])
        if data & cons.w:
            n = max(n, 2)
    if prod.kind == "ds" and prod.op.startswith("ds_write") and ("b128" in prod.op or "b96" in prod.op):
        if (regs_of(prod.ops[1]) & cons.w) and cons.kind == "valu":
            n = max(n, 2)
    if prod.kind == "mfma":
        p8 = prod.passes == 8
        if cons.kind == "mfma":
            if pw & cons.srcab:
                n = max(n, 12 if p8 else 8)
            if pw & cons.srcc:
                if not (pw == cons.srcc and prod.passes == cons.passes):
                    n = max(n, 10 if p8 else 6)
            elif pw & cons.w:
                n = max(n, 12 if p8 else 8)
        elif cons.kind in ("valu", "ds", "vmem"):
            if pw & (cons.r | cons.w):
                n = max(n, 12 if p8 else 8)
            if cons.kind == "valu" and (prod.srcc & cons.w):
                n = max(n, 7 if p8 else 3)
    return n


class Asm:
    def __init__(self):
        self.lines = []

    def __call__(self, text):
        for l in text.split("\n"):
            l = l.rstrip()
            if l.strip():
                self.lines.append(l.strip())

    def label(self, name):
        self.lines.append(name + ":")

    def render(self, pad=True):
        out = []
        hist = []
        for l in self.lines:
            ins = Ins(l)
            if ins.states and pad:
                dist = 0
                req = 0
                for p in reversed(hist):
                    if dist >= 20:
                        break
                    k = need(p, ins)
                    if k - dist > req:
                        req = k - dist
                    dist += p.states
                if req > 0:
                    nop = Ins(f"s_nop {req - 1}")
                    hist.append(nop)
                    out.append(nop)
            if ins.states:
                hist.append(ins)
                if ins.op in ("s_branch", "s_endpgm"):
                    hist = []
            out.append(ins)
        self.out = out
        self.check_edges()
        txt = []
        for i in out:
            txt.append(i.text if (i.is_label or i.is_dir) else "    " + i.text)
        return "\n".join(txt) + "\n"

    def check_edges(self):
        out = self.out
        labels = {i.text.split(";")[0].strip()[:-1]: k for k, i in enumerate(out) if i.is_label}
        for k, ins in enumerate(out):
            if ins.op.startswith(("s_branch", "s_cbranch")):
                tgt = labels[ins.ops[0]]
                prods = []
                dist = 0
                j = k
                while j >= 0 and dist < 20:
                    p = out[j]
                    if p.states:
                        if j != k and p.op in ("s_branch", "s_endpgm"):
                            break
                        prods.append((p, dist))
                        dist += p.states
                    j -= 1
                d2 = 0
                j = tgt
                while j < len(out) and d2 < 20:
                    c = out[j]
                    if c.states:
                        for p, dp in prods:
                            between = dp + d2
                            if need(p, c) > between:
                                raise RuntimeError(f"hazard across branch '{ins.text}': '{p.text}' -> '{c.text}' needs {need(p, c)} has {between}")
                        d2 += c.states
                        if c.op in ("s_branch", "s_endpgm"):
                            break
                    j += 1
```

```python
import struct
import sys
from asmlib import Asm

N = 25000
E = 800000
BN = 98
CH = 3128
CHB = 25088
K1_THREADS = 832
WS_B = 0
WS_PAY = 4 << 20
WS_OFF = 12 << 20
WS_IMG = 13 << 20
WS_POS = 14 << 20
WS_DIAG = 20 << 20
I_CNT = 0
I_EARLY = 9216
I_WX = 256
I_WH2 = 512
I_LUT = I_EARLY
I_W = I_LUT + 65536
I_LANE = I_W + 16384
I_OHT = I_LANE + 4096

CAPS = [320, 320] + [256] * 14
BASES = [sum(CAPS[:g]) * 4 for g in range(17)]
L_SRC = 0
L_INF = BASES[16]
L_EARLY = 2 * L_INF
L_CNT = L_EARLY + I_CNT
L_WX = L_EARLY + I_WX
L_WH2 = L_EARLY + I_WH2
L_TAB = L_EARLY + I_EARLY
L_LUT = L_TAB + 4096
L_HIMG = L_LUT + 65536
L_OH = L_HIMG + 16384
K2_LDS = L_OH + 32768
assert L_LUT < 65536 and L_OH % 64 == 0 and L_HIMG % 128 == 0 and K2_LDS <= 163840, K2_LDS


def f2u(x):
    return struct.unpack("<I", struct.pack("<f", x))[0]


LOG2E = 1.4426950408889634
NLOG2E = hex(f2u(-LOG2E))
PLOG2E = hex(f2u(LOG2E))
NLN2 = hex(f2u(-0.6931471805599453))

OPT = dict(faithful_sq=1, prio=1, pk=1, diag=0, abl_lut=0, abl_g=0, abl_trans=0, startprio=0)


def stamp(a, base, i):
    if OPT["diag"]:
        a("s_waitcnt lgkmcnt(0)")
        a(f"s_memrealtime s[{base+8}:{base+9}]")
        a("s_waitcnt lgkmcnt(0)")
        a(f"s_mov_b32 s{base+i}, s{base+8}")


def stamps_out(a, base, kidx, swave):
    if OPT["diag"]:
        a("s_waitcnt vmcnt(0)")
        stamp(a, base, 7)
        a("s_mov_b64 exec, 1")
        a(f"s_lshl_b32 s{base+8}, s2, 4")
        a(f"s_add_u32 s{base+8}, s{base+8}, s{swave}")
        a(f"s_lshl_b32 s{base+8}, s{base+8}, 5")
        a(f"s_add_u32 s{base+8}, s{base+8}, {WS_DIAG + kidx * (1 << 20)}")
        a(f"v_mov_b32 v0, s{base+8}")
        for i in range(8):
            a(f"v_mov_b32 v1, s{base+i}")
            a(f"global_store_dword v0, v1, s[16:17] offset:{4*i}")


def vr(b, n):
    return f"v[{b}:{b+n-1}]"


K1_HIST = 0
K1_PREF = 1024
K1_STAGE = 2048
K1_LDS = 32768
NTILE = (N + 31) // 32


def k1_bin(a):
    a("s_and_b32 s18, s2, 7")
    a("s_lshl_b32 s18, s18, 5")
    a("s_lshr_b32 s19, s2, 3")
    a("s_add_u32 s18, s18, s19")
    a(f"s_mul_i32 s19, s18, {CH}")
    a("v_lshl_add_u32 v3, v0, 2, s19")
    a(f"v_cmp_gt_u32 vcc, {CH // 4}, v0")
    a(f"s_mov_b32 s20, {E}")
    a("v_cmp_gt_u32 s[22:23], s20, v3")
    a("v_lshlrev_b32 v4, 2, v3")
    a("v_lshlrev_b32 v5, 1, v3")
    a("s_and_b64 s[22:23], s[22:23], vcc")
    a("s_mov_b64 exec, s[22:23]")
    a("s_waitcnt lgkmcnt(0)")
    a("global_load_dwordx4 v[8:11], v4, s[12:13]")
    a("global_load_dwordx4 v[12:15], v4, s[10:11]")
    a("global_load_dwordx2 v[16:17], v5, s[8:9]")
    a("s_mov_b64 exec, -1")
    a("v_lshlrev_b32 v6, 2, v0")
    a("v_mov_b32 v7, 0")
    a("s_cmp_ge_u32 s3, 4")
    a("s_cbranch_scc1 K1_NOZ")
    a(f"ds_write_b32 v6, v7 offset:{K1_HIST}")
    a.label("K1_NOZ")
    a("s_mov_b32 s24, 43826197")
    a(f"s_mov_b32 s25, {-BN}")
    a("v_mov_b32 v18, 1")
    a("v_lshlrev_b32 v6, 4, v0")
    a(f"s_mul_i32 s26, s18, {CHB}")
    a(f"s_add_u32 s26, s26, {WS_PAY}")
    a("v_add_u32 v7, s26, v6")
    a("s_waitcnt lgkmcnt(0)")
    a("s_barrier")
    stamp(a, 64, 1)
    a("s_mov_b64 exec, s[22:23]")
    a("s_waitcnt vmcnt(2)")
    stamp(a, 64, 2)
    for i in range(4):
        a(f"v_mul_hi_u32 v{20+i}, v{8+i}, s24")
    for i in range(4):
        a(f"v_mad_i32_i24 v{8+i}, v{20+i}, s25, v{8+i}")
        a(f"v_lshlrev_b32 v{20+i}, 2, v{20+i}")
        a(f"ds_add_rtn_u32 v{24+i}, v{20+i}, v18 offset:{K1_HIST}")
    a("s_waitcnt vmcnt(0)")
    for i in range(4):
        a(f"v_lshlrev_b32 v{28+2*i}, 2, v{12+i}")
        if i % 2 == 0:
            a(f"v_lshlrev_b32 v{29+2*i}, 16, v{16+i//2}")
        else:
            a(f"v_and_b32 v{29+2*i}, 0xffff0000, v{16+i//2}")
        a(f"v_lshl_or_b32 v{29+2*i}, v{8+i}, 5, v{29+2*i}")
    a("s_mov_b64 exec, -1")
    a("s_waitcnt lgkmcnt(0)")
    stamp(a, 64, 3)
    a("s_barrier")
    stamp(a, 64, 4)
    a("s_cmp_lg_u32 s3, 0")
    a("s_cbranch_scc1 K1_NOSCAN")
    a(f"ds_read_b128 v[40:43], v6 offset:{K1_HIST}")
    a("s_lshl_b32 s26, s18, 2")
    a(f"s_add_u32 s26, s26, {WS_OFF}")
    a("v_lshl_add_u32 v37, v0, 12, s26")
    a("s_waitcnt lgkmcnt(0)")
    a("v_add_u32 v45, v40, v41")
    a("v_add_u32 v46, v45, v42")
    a("v_add_u32 v47, v46, v43")
    a("v_mov_b32 v48, v47")
    for sh in (1, 2, 4, 8):
        a(f"v_add_u32_dpp v48, v48, v48 row_shr:{sh} row_mask:0xf bank_mask:0xf bound_ctrl:1")
    a("v_add_u32_dpp v48, v48, v48 row_bcast:15 row_mask:0xa bank_mask:0xf")
    a("v_add_u32_dpp v48, v48, v48 row_bcast:31 row_mask:0xc bank_mask:0xf")
    a("v_sub_u32 v52, v48, v47")
    a("v_add_u32 v53, v52, v40")
    a("v_add_u32 v54, v52, v45")
    a("v_add_u32 v55, v52, v46")
    a(f"ds_write_b128 v6, v[52:55] offset:{K1_PREF}")
    for i in range(4):
        a(f"v_lshl_or_b32 v{40+i}, v{40+i}, 16, v{52+i}")
        a(f"global_store_dword v37, v{40+i}, s[16:17] offset:{1024*i}")
    a("s_waitcnt lgkmcnt(0)")
    a.label("K1_NOSCAN")
    a("s_barrier")
    stamp(a, 64, 5)
    a("s_mov_b64 exec, s[22:23]")
    for i in range(4):
        a(f"ds_read_b32 v{20+i}, v{20+i} offset:{K1_PREF}")
    for i in range(4):
        a("s_waitcnt lgkmcnt(3)")
        a(f"v_add_lshl_u32 v{20+i}, v{20+i}, v{24+i}, 3")
        a(f"ds_write_b64 v{20+i}, v[{28+2*i}:{29+2*i}] offset:{K1_STAGE}")
    a("s_mov_b64 exec, -1")
    a(f"v_add_u32 v5, {K1_THREADS*16}, v7")
    a(f"v_cmp_gt_u32 vcc, {CH*8//16 - K1_THREADS}, v0")
    a("s_waitcnt lgkmcnt(0)")
    a("s_barrier")
    stamp(a, 64, 6)
    a(f"ds_read_b128 v[8:11], v6 offset:{K1_STAGE}")
    a(f"ds_read_b128 v[12:15], v6 offset:{K1_STAGE + K1_THREADS*16}")
    a("s_waitcnt lgkmcnt(1)")
    a("global_store_dwordx4 v7, v[8:11], s[16:17]")
    a("s_and_b64 exec, exec, vcc")
    a("s_cbranch_execz K1_FIN")
    a("s_waitcnt lgkmcnt(0)")
    a("global_store_dwordx4 v5, v[12:15], s[16:17]")
    a.label("K1_FIN")
    stamps_out(a, 64, 0, 3)
    a("s_endpgm")


def k1_btile(a):
    a("s_lshl_b32 s19, s18, 2")
    a("s_add_u32 s19, s19, s3")
    a(f"s_cmp_ge_u32 s19, {NTILE}")
    a("s_cbranch_scc1 K1_END")
    a("s_lshl_b32 s19, s19, 12")
    a("v_and_b32 v3, 31, v2")
    a("v_lshrrev_b32 v4, 5, v2")
    a("v_lshl_add_u32 v5, v3, 7, s19")
    a(f"v_min_u32 v5, {(N - 1) * 128}, v5")
    a("v_lshl_add_u32 v5, v4, 4, v5")
    a("v_lshrrev_b32 v6, 2, v2")
    a("v_lshlrev_b32 v6, 7, v6")
    a("v_and_b32 v7, 3, v2")
    a("v_lshl_add_u32 v6, v7, 4, v6")
    a("v_add_u32 v6, 8192, v6")
    a("s_lshl_b32 s20, s3, 13")
    a("s_waitcnt lgkmcnt(0)")
    for s in range(4):
        a(f"global_load_dwordx4 v[{16+4*s}:{19+4*s}], v5, s[4:5] offset:{32*s}")
    for i in range(8):
        t, kq = i >> 2, i & 3
        if i == 2:
            a("v_add_u32 v8, 4096, v6")
        go = t * 64 + (kq & 1) * 2048
        a(f"s_add_u32 m0, s20, {i*1024 - go + 4096}")
        a(f"global_load_lds_dwordx4 v{6 if kq < 2 else 8}, s[14:15] offset:{go}")
    a("v_bfe_u32 v14, v2, 2, 2")
    a("v_lshl_add_u32 v14, v4, 3, v14")
    a("v_lshlrev_b32 v14, 6, v14")
    a("v_bfe_u32 v15, v2, 4, 1")
    a("v_lshl_add_u32 v14, v15, 5, v14")
    a("v_lshl_add_u32 v14, v7, 3, v14")
    a("v_add_u32 v14, s20, v14")
    a("v_lshlrev_b32 v15, 9, v4")
    a("v_lshl_add_u32 v15, v3, 2, v15")
    a("v_add_u32 v15, s19, v15")
    a("s_mov_b32 s28, s16")
    a("s_mov_b32 s29, s17")
    a(f"s_mov_b32 s30, {N*128}")
    a("s_mov_b32 s31, 0x20000")
    a("s_mov_b32 s24, 0xffff0000")
    a("s_mov_b32 s25, 0x80000000")
    a("s_waitcnt vmcnt(0)")
    stamp(a, 64, 2)

    def rd(k):
        s_, t = k >> 1, k & 1
        r = 4 * (k % 3)
        for q in range(2):
            a(f"ds_read_b64_tr_b16 v[{r+2*q}:{r+2*q+1}], v14 offset:{4096 + t*4096 + s_*1024 + q*256}")
    for k in range(3):
        rd(k)
    for k in range(8):
        s_, t = k >> 1, k & 1
        a(f"s_waitcnt lgkmcnt({min(4, 2*(7-k))})")
        d = 32 + 16 * t
        r = 4 * (k % 3)
        c = "0" if s_ == 0 else f"v[{d}:{d+15}]"
        a(f"v_mfma_f32_32x32x16_bf16 v[{d}:{d+15}], v[{16+4*s_}:{19+4*s_}], v[{r}:{r+3}], {c}")
        if k + 3 < 8:
            rd(k + 3)
    stamp(a, 64, 3)
    for q0 in range(0, 16, 4):
        R = range(4)
        for i in R:
            a(f"v_cvt_pk_bf16_f32 v{i}, v{32+q0+i}, 0")
        for i in R:
            a(f"v_mul_f32 v{4+i}, {NLOG2E}, v{48+q0+i}")
        for i in R:
            a(f"v_sub_u32 v{8+i}, 0x8000, v{i}")
        for i in R:
            a(f"v_and_b32 v{16+i}, 0x7fffffff, v{4+i}")
        for i in R:
            a(f"v_add_u32 v{8+i}, v{8+i}, v{16+i}")
        for i in R:
            a(f"v_max_i32 v{8+i}, 0, v{8+i}")
        for i in R:
            a(f"v_and_or_b32 v{8+i}, v{8+i}, s24, v{i}")
        for i in R:
            a(f"v_and_or_b32 v{32+q0+i}, v{4+i}, s25, v{8+i}")
            a(f"buffer_store_dword v{32+q0+i}, v15, s[28:31], 0 offen offset:{(2*q0 + i)*128}")
    stamps_out(a, 64, 0, 3)
    a("s_endpgm")


def k1_lut(a):
    a("s_lshl_b32 s19, s18, 7")
    a("v_lshl_add_u32 v8, v2, 1, s19")
    a(f"s_mov_b32 s20, {WS_IMG + I_LUT}")
    a("v_lshl_add_u32 v9, v8, 1, s20")
    a("v_lshlrev_b32 v10, 16, v8")
    a("v_add_u32 v11, 0x10000, v10")
    a("s_mov_b32 s21, 0x7f800000")
    for r in (10, 11):
        a(f"v_mul_f32 v{r+2}, {PLOG2E}, v{r}")
    for r in (10, 11):
        a(f"v_exp_f32 v{r+2}, v{r+2}")
    for r in (10, 11):
        a(f"v_add_f32 v{r+2}, 1.0, v{r+2}")
    for r in (10, 11):
        a(f"v_rcp_f32 v{r+2}, v{r+2}")
    for r in (10, 11):
        a(f"v_mul_f32 v{r+2}, v{r}, v{r+2}")
        a(f"v_cmp_eq_u32 vcc, s21, v{r}")
        a(f"v_cndmask_b32 v{r+2}, v{r+2}, 0, vcc")
    a("v_cvt_pk_bf16_f32 v12, -v12, -v13")
    a("s_waitcnt lgkmcnt(0)")
    a("global_store_dword v9, v12, s[16:17]")
    a("s_endpgm")


def k1_pos(a):
    a("s_sub_u32 s19, s3, 5")
    a("s_lshl_b32 s19, s19, 6")
    a("v_add_u32 v8, s19, v2")
    a(f"v_cmp_gt_u32 vcc, {BN}, v8")
    a("v_lshrrev_b32 v15, 4, v8")
    a("v_lshlrev_b32 v15, 3, v15")
    a(f"s_mul_i32 s19, s18, {BN}")
    a("v_add_u32 v8, s19, v8")
    a("s_mov_b64 exec, vcc")
    a(f"v_cmp_gt_u32 vcc, {N}, v8")
    a("v_mul_u32_u24 v9, 6, v8")
    a(f"s_mov_b32 s20, {WS_POS}")
    a("v_lshl_add_u32 v8, v8, 4, s20")
    a("s_mov_b64 exec, vcc")
    a("s_cbranch_execz K1_END")
    a("s_waitcnt lgkmcnt(0)")
    for i in range(3):
        a(f"global_load_ushort v{12+i}, v9, s[6:7] offset:{2*i}")
    a("s_waitcnt vmcnt(0)")
    for i in range(3):
        a(f"v_lshlrev_b32 v{12+i}, 16, v{12+i}")
    a("global_store_dwordx4 v8, v[12:15], s[16:17]")
    a("s_endpgm")


def k1_img(a):
    a("s_cmp_gt_u32 s18, 25")
    a("s_cbranch_scc1 K1_END")
    a("s_load_dwordx4 s[24:27], s[0:1], 48")
    a("v_and_b32 v3, 31, v2")
    a("v_lshrrev_b32 v4, 5, v2")
    a("v_lshlrev_b32 v5, 4, v2")
    a("s_cmp_eq_u32 s18, 24")
    a("s_cbranch_scc1 K1_IMG_LANE")
    a("s_cmp_eq_u32 s18, 25")
    a("s_cbranch_scc1 K1_IMG_MISC")
    a("s_cmp_ge_u32 s18, 16")
    a("s_cbranch_scc1 K1_IMG_WH2")
    a("s_and_b32 s19, s18, 3")
    a("s_lshl_b32 s19, s19, 11")
    a("v_lshl_add_u32 v6, v4, 10, s19")
    a("s_bfe_u32 s20, s18, 0x10002")
    a("s_lshl_b32 s21, s18, 10")
    a(f"s_add_u32 s21, s21, {WS_IMG + I_W}")
    a("s_waitcnt lgkmcnt(0)")
    a("s_cmp_ge_u32 s18, 8")
    a("s_cbranch_scc1 K1_IMG_C")
    a("s_lshl_b32 s20, s20, 6")
    a("v_lshl_add_u32 v6, v3, 1, v6")
    a("v_add_u32 v6, s20, v6")
    a("s_mov_b64 s[22:23], s[14:15]")
    a("s_branch K1_IMG_LD")
    a.label("K1_IMG_C")
    a("s_lshl_b32 s20, s20, 1")
    a("v_lshl_add_u32 v6, v3, 2, v6")
    a("v_add_u32 v6, s20, v6")
    a("s_mov_b64 s[22:23], s[26:27]")
    a.label("K1_IMG_LD")
    for kk in range(8):
        a(f"global_load_ushort v{8+kk}, v6, s[22:23] offset:{kk*128}")
    a("s_branch K1_IMG_ST")
    a.label("K1_IMG_WH2")
    a("s_sub_u32 s19, s18, 16")
    a("s_lshl_b32 s21, s19, 10")
    a(f"s_add_u32 s21, s21, {WS_IMG + I_WH2}")
    a("s_and_b32 s20, s19, 1")
    a("s_lshl_b32 s20, s20, 1")
    a("s_lshr_b32 s19, s19, 1")
    a("s_lshl_b32 s19, s19, 11")
    a("s_add_u32 s19, s19, s20")
    a("s_add_u32 s19, s19, 8192")
    a("v_lshl_add_u32 v6, v4, 9, s19")
    a("v_lshl_add_u32 v6, v3, 2, v6")
    a("s_waitcnt lgkmcnt(0)")
    for kk in range(8):
        a(f"global_load_ushort v{8+kk}, v6, s[26:27] offset:{(8*(kk >> 2) + (kk & 3))*128}")
    a.label("K1_IMG_ST")
    a("v_add_u32 v5, s21, v5")
    a("s_waitcnt vmcnt(0)")
    for i in range(4):
        a(f"v_lshl_or_b32 v{16+i}, v{9+2*i}, 16, v{8+2*i}")
    a("global_store_dwordx4 v5, v[16:19], s[16:17]")
    a("s_endpgm")
    a.label("K1_IMG_LANE")
    a("v_lshlrev_b32 v6, 1, v3")
    a("v_add_u32 v6, 0x4000, v6")
    a("s_waitcnt lgkmcnt(0)")
    for i, off in enumerate((0, 64, 128, 192)):
        a(f"global_load_ushort v{8+i}, v6, s[14:15] offset:{off}")
    a("v_lshlrev_b32 v16, 4, v4")
    a("v_bfe_u32 v20, v2, 1, 2")
    a("v_lshlrev_b32 v17, 6, v3")
    a("v_lshl_add_u32 v17, v20, 3, v17")
    a(f"v_add_u32 v17, {L_OH}, v17")
    a("v_bfe_u32 v20, v2, 2, 2")
    a("v_lshl_add_u32 v20, v4, 2, v20")
    a("v_bfe_u32 v21, v2, 4, 1")
    a("v_and_b32 v22, 3, v2")
    a("v_lshl_add_u32 v21, v21, 2, v22")
    a("v_bfe_u32 v22, v20, 1, 2")
    a("v_xor_b32 v21, v21, v22")
    a("v_lshlrev_b32 v18, 6, v20")
    a("v_lshl_add_u32 v18, v21, 3, v18")
    a(f"v_add_u32 v18, {L_OH}, v18")
    a("v_and_b32 v20, 7, v2")
    a("v_xor_b32 v20, v20, v4")
    a("v_lshlrev_b32 v19, 7, v3")
    a("v_lshl_add_u32 v19, v20, 4, v19")
    a(f"v_add_u32 v19, {L_HIMG}, v19")
    a(f"v_add_u32 v5, {WS_IMG + I_LANE}, v5")
    a("global_store_dwordx4 v5, v[16:19], s[16:17]")
    a("v_cmp_eq_u32 s[22:23], 0, v4")
    a("s_waitcnt vmcnt(1)")
    for r in (9, 11):
        a(f"v_lshlrev_b32 v{r}, 16, v{r}")
        a(f"v_mul_f32 v{r}, {NLOG2E}, v{r}")
        a(f"v_cvt_pk_bf16_f32 v20, v{r}, 0")
        a("v_lshlrev_b32 v20, 16, v20")
        a(f"v_sub_f32 v21, v{r}, v20")
        a(f"v_cvt_pk_bf16_f32 v{r}, v20, v21")
    for we, (d, e) in ((24, (8, 10)), (30, (9, 11))):
        a(f"v_cndmask_b32 v{we+4}, 0, v{d}, s[22:23]")
        a(f"v_cndmask_b32 v{we+5}, 0, v{e}, s[22:23]")
        a(f"v_cndmask_b32 v{we}, v{d}, 0, s[22:23]")
        a(f"v_cndmask_b32 v{we+1}, v{e}, 0, s[22:23]")
        a(f"v_mov_b32 v{we+2}, 0")
        a(f"v_mov_b32 v{we+3}, 0")
    for q in range(3):
        a(f"global_store_dwordx4 v5, {vr(24+4*q, 4)}, s[16:17] offset:{1024*(q+1)}")
    a("s_endpgm")
    a.label("K1_IMG_MISC")
    a("v_lshrrev_b32 v6, 3, v3")
    a("v_lshlrev_b32 v6, 5, v6")
    a("v_bfe_u32 v7, v3, 1, 1")
    a("v_lshl_add_u32 v6, v7, 4, v6")
    a("v_bfe_u32 v7, v3, 2, 1")
    a("v_lshl_add_u32 v6, v7, 3, v6")
    a("v_and_b32 v7, 1, v3")
    a("v_lshl_add_u32 v6, v7, 2, v6")
    a("s_waitcnt lgkmcnt(0)")
    a("global_load_dword v8, v6, s[24:25]")
    a("v_and_b32 v9, 15, v2")
    a("v_lshrrev_b32 v10, 4, v2")
    a("v_cmp_eq_u32 vcc, 3, v10")
    a("v_addc_co_u32 v9, vcc, 0, v9, vcc")
    a("v_min_u32 v11, 2, v9")
    a("v_lshlrev_b32 v11, 8, v11")
    a("v_lshl_add_u32 v11, v9, 10, v11")
    a("v_cmp_eq_u32 vcc, 1, v10")
    a("v_cndmask_b32 v11, v11, 0, vcc")
    a("v_lshlrev_b32 v12, 2, v2")
    a(f"v_add_u32 v13, {WS_IMG + I_CNT}, v12")
    a("global_store_dword v13, v11, s[16:17]")
    a("v_lshrrev_b32 v9, 2, v3")
    a("v_and_b32 v10, 1, v9")
    a("v_lshlrev_b32 v10, 4, v10")
    a("v_mov_b32 v11, 0x3f80")
    a("v_lshlrev_b32 v10, v10, v11")
    a("v_lshrrev_b32 v9, 1, v9")
    a("v_and_b32 v11, 3, v3")
    a("v_cmp_eq_u32 vcc, v9, v11")
    a("v_cndmask_b32 v10, 0, v10, vcc")
    a(f"v_add_u32 v14, {WS_IMG + I_OHT}, v12")
    a("s_mov_b64 exec, 0xffffffff")
    a("global_store_dword v14, v10, s[16:17]")
    a("s_waitcnt vmcnt(2)")
    a(f"global_store_dword v13, v8, s[16:17] offset:{I_WX}")
    a("s_endpgm")


def kernel1():
    a = Asm()
    a("s_cmp_ge_u32 s2, 512")
    a("s_cbranch_scc1 K1_END")
    a("s_load_dwordx8 s[4:11], s[0:1], 0")
    a("s_load_dwordx4 s[12:15], s[0:1], 32")
    a("s_load_dwordx2 s[16:17], s[0:1], 80")
    stamp(a, 64, 0)
    a("v_lshrrev_b32 v1, 6, v0")
    a("v_and_b32 v2, 63, v0")
    a("v_readfirstlane_b32 s3, v1")
    a("s_cmp_ge_u32 s2, 256")
    a("s_cbranch_scc1 K1_TAB")
    k1_bin(a)
    a.label("K1_TAB")
    a("s_sub_u32 s18, s2, 256")
    a("s_cmp_ge_u32 s3, 4")
    a("s_cbranch_scc1 K1_TAB2")
    k1_btile(a)
    a.label("K1_TAB2")
    a("s_cmp_gt_u32 s3, 7")
    a("s_cbranch_scc1 K1_END")
    a("s_cmp_eq_u32 s3, 7")
    a("s_cbranch_scc1 K1_IMG")
    a("s_cmp_eq_u32 s3, 4")
    a("s_cbranch_scc1 K1_LUT")
    k1_pos(a)
    a.label("K1_LUT")
    k1_lut(a)
    a.label("K1_IMG")
    k1_img(a)
    a.label("K1_END")
    a("s_endpgm")
    return a


assert BASES[:4] == [0, 1280, 2560, 3584]

ACC0, ACC1, RAWA, RAWB, X0, OH, T, LA, CC, WE0, WE1, XE, VV, PS = 96, 112, 64, 80, 48, 40, 36, 32, 28, 16, 22, 10, 8, 4
vINF, vOHA, vTRA, vLB, vGA = 7, 3, 2, 1, 0
sB, sW, sREM, sJ, sFL, sNODE = 18, 19, 20, 21, 22, 23
sM = 24
sLO, sHI = 40, 42
SRD_B, SRD_POS = 44, 48
sSEL, sBASE, sT0, sT1, sT2, sT3, sLONG = 52, 53, 54, 55, 56, 57, 58
SRD_O = 60


def P(a, p):
    if OPT["prio"]:
        a(f"s_setprio {p}")


def G_reads(a, dst, imm):
    for g in range(4):
        a(f"ds_read_b128 {vr(dst+4*g, 4)}, v{vGA} offset:{L_SRC + imm + 32*g}")


def G_issue(a, dst, younger):
    for g in range(4):
        a(f"s_waitcnt lgkmcnt({3 - g + younger})")
        for r in range(4):
            q = dst + 4 * g + r
            if OPT["abl_g"]:
                a("s_nop 0")
            else:
                a(f"buffer_load_dword v{q}, v{q}, s[{SRD_B}:{SRD_B+3}], 0 offen")


def PA_reads(a):
    a(f"ds_read_addtid_b32 v{PS} offset:{L_SRC}")
    a(f"ds_read_addtid_b32 v{vINF} offset:{L_INF}")


def PA_issue(a):
    a(f"buffer_load_dwordx3 {vr(PS, 3)}, v{PS}, s[{SRD_POS}:{SRD_POS+3}], 0 idxen")
    a("s_add_u32 m0, m0, 256")


def emit_PB(a):
    ta = LA
    a(f"v_and_b32 v{ta}, 0xfe0, v{vINF}")
    a(f"ds_read_b128 {vr(T, 4)}, v{ta} offset:{L_TAB + 16}")
    a(f"ds_read_b64 {vr(XE, 2)}, v{ta} offset:{L_TAB}")
    a(f"ds_read_b64 {vr(XE+4, 2)}, v{ta} offset:{L_TAB + 8}")
    a(f"v_perm_b32 v{XE+3}, v{vINF}, v{vINF}, s{sSEL}")
    a("s_waitcnt lgkmcnt(2)")
    for i in range(3):
        a(f"v_sub_f32 v{T+i}, v{T+i}, v{PS+i}")
    a(f"v_xor_b32 v{vOHA}, v{T+3}, v{vLB}")
    a(f"v_cvt_pk_bf16_f32 v{VV}, v{T}, v{T+1}")
    a(f"v_cvt_pk_bf16_f32 v{VV+1}, v{T+2}, 1.0")
    a(f"v_lshlrev_b32 v{T}, 16, v{VV}")
    a(f"v_and_b32 v{T+1}, 0xffff0000, v{VV}")
    a(f"v_lshlrev_b32 v{T+2}, 16, v{VV+1}")
    if OPT["faithful_sq"]:
        for i in range(3):
            a(f"v_mul_f32 v{T+i}, v{T+i}, v{T+i}")
        a(f"v_cvt_pk_bf16_f32 v{T+3}, v{T}, v{T+1}")
        a(f"v_cvt_pk_bf16_f32 v{T+2}, 0, v{T+2}")
        a(f"v_lshlrev_b32 v{T}, 16, v{T+3}")
        a(f"v_and_b32 v{T+1}, 0xffff0000, v{T+3}")
        a(f"v_add_f32 v{T}, v{T}, v{T+1}")
        a(f"v_add_f32 v{T}, v{T}, v{T+2}")
    else:
        a(f"v_mul_f32 v{T}, v{T}, v{T}")
        a(f"v_fmac_f32 v{T}, v{T+1}, v{T+1}")
        a(f"v_fmac_f32 v{T}, v{T+2}, v{T+2}")
    a(f"v_cvt_pk_bf16_f32 v{XE+2}, v{T}, v{T}")
    a("s_waitcnt lgkmcnt(0)")
    a(f"v_permlane32_swap_b32 v{XE}, v{XE+4}")
    a(f"v_permlane32_swap_b32 v{XE+1}, v{XE+5}")


def emit_masks(a):
    a(f"s_bfm_b64 s[{sT2}:{sT2+1}], s{sREM}, 0")
    a(f"s_cmp_ge_u32 s{sREM}, 64")
    a(f"s_cselect_b32 s{sLO}, -1, s{sT2}")
    a(f"s_cselect_b32 s{sHI+1}, -1, s{sT2+1}")


def lut_half(a, h):
    b = X0 + 8 * h
    for i in range(4):
        a(f"v_cvt_pk_bf16_f32 v{b+i}, v{b+2*i}, v{b+2*i+1}")
    for i in range(4):
        a(f"v_lshlrev_b16 v{b+4+i}, 1, v{b+i}")
        a(f"v_lshlrev_b16_sdwa v{LA+i}, 1, v{b+i} dst_sel:DWORD dst_unused:UNUSED_PAD src0_sel:DWORD src1_sel:WORD_1")
        if not OPT["abl_lut"]:
            a(f"ds_read_u16 v{b+4+i}, v{b+4+i} offset:{L_LUT}")
            a(f"ds_read_u16_d16_hi v{LA+i}, v{LA+i} offset:{L_LUT}")
    for i in range(4):
        a(f"v_pk_max_i16 v{b+i}, v{b+i}, 0")


def lut_merge(a, h):
    b = X0 + 8 * h
    for i in range(4):
        a(f"v_or_b32 v{b+4+i}, v{b+4+i}, v{LA+i}")


def valu_half(a, raw, h):
    if OPT["abl_trans"]:
        return
    for qq in range(2):
        xs = [raw + 8 * h + 4 * qq + i for i in range(4)]
        ts = [T + i for i in range(4)]
        for x, t in zip(xs, ts):
            a(f"v_exp_f32 v{t}, v{x}")
        if OPT["pk"]:
            for t in ts[::2]:
                a(f"v_pk_add_f32 {vr(t, 2)}, {vr(t, 2)}, 1.0 op_sel_hi:[1,0]")
        else:
            P(a, 0)
            for t in ts:
                a(f"v_add_f32 v{t}, 1.0, v{t}")
            P(a, 1)
        for t in ts:
            a(f"v_rcp_f32 v{t}, v{t}")
        if OPT["pk"]:
            for x, t in zip(xs[::2], ts[::2]):
                a(f"v_pk_mul_f32 {vr(t, 2)}, {vr(t, 2)}, {vr(x, 2)}")
        else:
            P(a, 0)
            for x, t in zip(xs, ts):
                a(f"v_mul_f32 v{t}, v{x}, v{t}")
            P(a, 1)
        for i in range(2):
            a(f"v_cvt_pk_bf16_f32 v{raw+8*h+2*qq+i}, v{ts[2*i]}, v{ts[2*i+1]}")


def seg3(a, raw, h):
    for acc, op in ((ACC0, X0 + 8 * h), (ACC1, raw + 8 * h), (ACC0, X0 + 8 * h + 4)):
        a(f"v_mfma_f32_32x32x16_bf16 {vr(acc, 16)}, {vr(op, 4)}, {vr(OH+4*h, 4)}, {vr(acc, 16)}")


def emit_tile(a, par):
    L = f"K2_T{par}"
    cur, nxt = (RAWA, RAWB) if par == 0 else (RAWB, RAWA)
    m = sLO if par == 0 else sHI
    zz = WE0 if par == 0 else WE0 + 4
    a(f"s_cmp_le_u32 s{sREM}, 32")
    a(f"s_cbranch_scc1 {L}_NG1")
    G_reads(a, nxt, 128 if par == 0 else 256)
    a.label(f"{L}_NG1")
    a(f"s_mov_b64 exec, s[{m}:{m+1}]")
    a(f"ds_write_b64 v{vOHA}, {vr(VV, 2)}")
    a("s_mov_b64 exec, -1")
    for q in range(4):
        a(f"ds_read_b64_tr_b16 {vr(OH+2*q, 2)}, v{vTRA} offset:{512*q}")
    a(f"s_mov_b64 exec, s[{m}:{m+1}]")
    a(f"ds_write_b64 v{vOHA}, {vr(zz, 2)}")
    a("s_mov_b64 exec, -1")
    if par == 0:
        PA_reads(a)
    a("s_waitcnt vmcnt(0)")
    P(a, 0)
    for q in range(16):
        a(f"v_lshlrev_b32 v{X0+q}, 16, v{cur+q}")
    P(a, 1)
    xe = XE if par == 0 else XE + 2
    wo = 2 if par == 0 else 0
    a(f"v_mfma_f32_32x32x16_bf16 {vr(X0, 16)}, {vr(xe, 4)}, {vr(WE0+wo, 4)}, {vr(X0, 16)}")
    a(f"v_mfma_f32_32x32x16_bf16 {vr(cur, 16)}, {vr(xe, 4)}, {vr(WE1+wo, 4)}, {vr(cur, 16)}")
    a(f"s_cmp_le_u32 s{sREM}, 32")
    a(f"s_cbranch_scc1 {L}_NG2")
    G_issue(a, nxt, 8 if par == 0 else 6)
    if par == 0:
        a(f"s_cmp_le_u32 s{sREM}, 64")
        a(f"s_cbranch_scc1 {L}_GO")
        a("s_waitcnt lgkmcnt(0)")
        PA_issue(a)
    a(f"s_branch {L}_GO")
    a.label(f"{L}_NG2")
    a("s_nop 9")
    a.label(f"{L}_GO")
    lut_half(a, 0)
    valu_half(a, cur, 0)
    a("s_waitcnt lgkmcnt(0)")
    lut_merge(a, 0)
    a(f"s_cmp_le_u32 s{sREM}, 16")
    a(f"s_cbranch_scc1 {L}_HALF")
    lut_half(a, 1)
    seg3(a, cur, 0)
    valu_half(a, cur, 1)
    a("s_waitcnt lgkmcnt(0)")
    lut_merge(a, 1)
    a(f"s_cmp_le_u32 s{sREM}, 32")
    seg3(a, cur, 1)
    a("s_cbranch_scc1 K2_LOOP_DONE")
    a(f"s_sub_u32 s{sREM}, s{sREM}, 32")
    if par == 1:
        a(f"v_add_u32 v{vGA}, 256, v{vGA}")
        emit_PB(a)
        emit_masks(a)
        a("s_branch K2_T0")
    else:
        a("s_branch K2_T1")
    a.label(f"{L}_HALF")
    seg3(a, cur, 0)
    a("s_branch K2_LOOP_DONE")


def lane_id(a, v):
    a(f"v_mbcnt_lo_u32_b32 v{v}, -1, 0")
    a(f"v_mbcnt_hi_u32_b32 v{v}, -1, v{v}")


def kernel2():
    a = Asm()
    vL = 60
    a("s_cmp_ge_u32 s2, 256")
    a("s_cbranch_scc1 K2_END")
    a("s_load_dwordx2 s[16:17], s[0:1], 80")
    a("s_load_dwordx2 s[4:5], s[0:1], 0")
    a("s_load_dwordx2 s[14:15], s[0:1], 64")
    stamp(a, 86, 0)
    a("v_lshrrev_b32 v1, 6, v0")
    a(f"v_and_b32 v{vL}, 63, v0")
    a(f"v_readfirstlane_b32 s{sW}, v1")
    a(f"s_and_b32 s{sB}, s2, 7")
    a(f"s_lshl_b32 s{sB}, s{sB}, 5")
    a("s_lshr_b32 s3, s2, 3")
    a(f"s_add_u32 s{sB}, s{sB}, s3")

    def offT_addr(v):
        a(f"s_lshl_b32 s{sT0}, s{sB}, 4")
        a(f"s_add_u32 s{sT0}, s{sT0}, s{sW}")
        a(f"s_lshl_b32 s{sT0}, s{sT0}, 6")
        a(f"s_add_u32 s{sT0}, s{sT0}, {WS_OFF}")
        a(f"v_and_b32 v{v}, 48, v{vL}")
        a(f"v_add_u32 v{v}, s{sT0}, v{v}")
    offT_addr(61)
    a(f"v_lshlrev_b32 v62, 4, v{vL}")
    a(f"s_mul_i32 s{sNODE}, s{sB}, {BN}")
    a(f"s_add_u32 s{sNODE}, s{sNODE}, s{sW}")
    a(f"v_add_u32 v63, {WS_IMG + I_LANE}, v62")
    a("s_waitcnt lgkmcnt(0)")
    a("global_load_dwordx4 v[56:59], v61, s[16:17]")
    a(f"v_lshrrev_b32 v32, 3, v{vL}")
    a(f"v_xor_b32 v33, v32, v{vL}")
    a("v_and_b32 v33, 7, v33")
    a(f"s_lshl_b32 s{sT0}, s{sNODE}, 7")
    a(f"v_lshl_add_u32 v32, v32, 11, s{sT0}")
    a(f"v_min_u32 v32, {(N - 1) * 128}, v32")
    a("v_lshl_add_u32 v32, v33, 4, v32")
    a(f"s_lshl_b32 s{sT1}, s{sW}, 10")
    a(f"s_add_u32 m0, s{sT1}, {L_HIMG}")
    a(f"s_and_b32 s{sT0}, s{sW}, 3")
    a("global_load_lds_dwordx4 v32, s[4:5]")
    a(f"s_lshl_b32 s{sT0}, s{sT0}, 12")
    a(f"s_add_u32 s{sT0}, s{sT0}, {WS_IMG + I_W}")
    a(f"v_add_u32 v33, s{sT0}, v62")
    for s in range(4):
        a(f"global_load_dwordx4 {vr(64+4*s, 4)}, v33, s[16:17] offset:{1024*s}")
    a("global_load_dwordx4 v[0:3], v63, s[16:17]")
    for q in range(3):
        a(f"global_load_dwordx4 {vr(WE0+4*q, 4)}, v63, s[16:17] offset:{1024*(q+1)}")
    a(f"s_cmp_ge_u32 s{sW}, 12")
    a("s_cbranch_scc1 K2_TABDMA")
    a(f"s_cmp_ge_u32 s{sW}, 9")
    a("s_cbranch_scc1 K2_DMA_DONE")
    a(f"s_add_u32 m0, s{sT1}, {L_EARLY}")
    a(f"s_add_u32 s{sT0}, s{sT1}, {WS_IMG}")
    a(f"v_add_u32 v33, s{sT0}, v62")
    a("global_load_lds_dwordx4 v33, s[16:17]")
    a("s_branch K2_DMA_DONE")
    a.label("K2_TABDMA")
    a(f"s_add_u32 m0, s{sT1}, {L_TAB - 12*1024}")
    a(f"s_lshl_b32 s{sT0}, s{sW}, 5")
    a(f"s_sub_u32 s{sT0}, s{sT0}, 384")
    a(f"v_lshrrev_b32 v33, 1, v{vL}")
    a(f"v_add_u32 v33, s{sT0}, v33")
    a("v_and_b32 v34, 0x70, v33")
    a(f"v_add_u32 v34, {WS_IMG + I_OHT}, v34")
    a(f"s_mul_i32 s{sT0}, s{sB}, {BN*16}")
    a(f"s_add_u32 s{sT0}, s{sT0}, {WS_POS}")
    a(f"v_lshl_add_u32 v33, v33, 4, s{sT0}")
    a(f"s_mov_b32 s{sT2}, 0xaaaaaaaa")
    a(f"s_mov_b32 s{sT3}, 0xaaaaaaaa")
    a(f"v_cndmask_b32 v33, v34, v33, s[{sT2}:{sT3}]")
    a("global_load_lds_dwordx4 v33, s[16:17]")
    a.label("K2_DMA_DONE")
    a(f"s_mov_b32 s{SRD_B}, s16")
    a(f"s_and_b32 s{SRD_B+1}, s17, 0xffff")
    a(f"s_or_b32 s{SRD_B+1}, s{SRD_B+1}, 0x80000000")
    a(f"s_mov_b32 s{SRD_B+2}, 0x100000")
    a(f"s_mov_b32 s{SRD_B+3}, 0xc00000")
    a(f"s_add_u32 s{SRD_POS}, s16, {WS_POS}")
    a(f"s_addc_u32 s{SRD_POS+1}, s17, 0")
    a(f"s_and_b32 s{SRD_POS+1}, s{SRD_POS+1}, 0xffff")
    a(f"s_or_b32 s{SRD_POS+1}, s{SRD_POS+1}, 0x40000")
    a(f"s_mov_b32 s{SRD_POS+2}, {N*16}")
    a(f"s_mov_b32 s{SRD_POS+3}, 0x20000")
    a(f"s_mov_b32 s{sSEL}, 0x03020302")
    a(f"s_mov_b32 s{sLO+1}, 0")
    a(f"s_mov_b32 s{sHI}, 0")
    a(f"s_mov_b32 s{sJ}, 0")
    a(f"s_mov_b32 s{sFL}, 0")
    a(f"s_min_u32 s{sBASE}, s{sW}, 2")
    a(f"s_lshl_b32 s{sBASE}, s{sBASE}, 8")
    a(f"s_add_u32 s{sBASE}, s{sBASE}, s{sT1}")

    def payload_addr():
        a(f"v_and_b32 v52, 15, v{vL}")
        a("v_lshlrev_b32 v52, 1, v52")
        a(f"v_lshrrev_b32 v54, 4, v{vL}")
        a(f"s_mul_i32 s{sT2}, s{sW}, {16*CHB}")
        a(f"s_add_u32 s{sT2}, s{sT2}, {WS_PAY}")
        a(f"v_mov_b32 v55, s{sT2}")
        a(f"s_mov_b32 s{sT2}, {4*CHB}")
        a(f"v_mad_u32_u24 v54, v54, s{sT2}, v55")

    def payload_issue(first):
        if not first:
            a(f"s_lshl_b32 s{sT1}, s{sJ}, 5")
            a(f"v_add_u32 v52, s{sT1}, v52")
            a(f"s_and_b32 s{sT1}, s{sFL}, 1")
        a("v_add_u32 v53, 1, v52")
        for i in range(4):
            c = 48 + i
            a(f"v_lshrrev_b32 v{c}, 16, v{56+i}")
            a(f"v_and_b32 v{56+i}, 0xffff, v{56+i}")
            if not first:
                a(f"s_cmp_lg_u32 s{sT1}, 0")
                a(f"s_cbranch_scc1 K2_KEEPM{i}")
            a(f"v_cmp_lt_u32 s[{sM+4*i}:{sM+4*i+1}], v52, v{c}")
            a(f"v_cmp_lt_u32 s[{sM+4*i+2}:{sM+4*i+3}], v53, v{c}")
            if not first:
                a.label(f"K2_KEEPM{i}")
            a(f"v_add_u32 v{56+i}, v{56+i}, v52")
            a(f"v_lshl_add_u32 v{56+i}, v{56+i}, 3, v54")
            if first:
                a(f"s_mov_b64 exec, s[{sM+4*i}:{sM+4*i+1}]")
            else:
                a(f"s_or_b64 exec, s[{sM+4*i}:{sM+4*i+1}], s[{sM+4*i+2}:{sM+4*i+3}]")
            a(f"global_load_dwordx4 {vr(80+4*i, 4)}, v{56+i}, s[16:17]")
            a("s_mov_b64 exec, -1")
            if i < 3:
                a(f"v_add_u32 v54, {CHB}, v54")
        a("v_max3_u32 v48, v48, v49, v50")
        a("v_max_u32 v48, v48, v51")
        if first:
            a(f"v_cmp_lt_u32 s[{sLONG}:{sLONG+1}], 32, v48")
        else:
            a(f"s_lshl_b32 s{sT1}, s{sJ}, 5")
            a(f"s_add_u32 s{sT1}, s{sT1}, 32")
            a(f"v_cmp_lt_u32 s[{sLONG}:{sLONG+1}], s{sT1}, v48")

    payload_addr()
    a("s_waitcnt vmcnt(9)")
    stamp(a, 86, 1)
    payload_issue(True)
    a(f"s_lshl_b32 s{sT0}, s{sW}, 12")
    a(f"s_add_u32 m0, s{sT0}, {L_LUT}")
    a(f"s_add_u32 s{sT0}, s{sT0}, {WS_IMG + I_LUT}")
    a(f"v_add_u32 v33, s{sT0}, v62")
    for i in range(4):
        a(f"global_load_lds_dwordx4 v33, s[16:17] offset:{1024*i}")
    a(f"s_lshl_b32 s{sT0}, s{sW}, 11")
    a(f"s_lshr_b32 s{sT1}, s{sW}, 2")
    a(f"s_lshl_b32 s{sT2}, s{sT1}, 12")
    a(f"s_lshl_b32 s{sT1}, s{sT1}, 13")
    a(f"s_and_b32 s{sT3}, s{sW}, 3")
    a(f"s_lshl_b32 s3, s{sT3}, 9")
    a(f"s_add_u32 s{sT1}, s{sT1}, s3")
    a(f"s_add_u32 s{sT1}, s{sT1}, {L_OH}")
    a(f"v_lshl_add_u32 v61, v{vL}, 3, s{sT1}")
    a(f"s_add_u32 s{sT1}, s{sT0}, {L_OH}")
    a(f"v_lshl_add_u32 v63, v{vL}, 3, s{sT1}")
    a("s_waitcnt vmcnt(8)")
    a(f"v_add_u32 v{vLB}, s{sT0}, v{vLB}")
    a(f"v_add_u32 v{vTRA}, s{sT0}, v{vTRA}")
    a(f"v_add_u32 v{vGA}, s{sBASE}, v{vGA}")
    a(f"v_add_u32 v3, s{sT2}, v3")
    for s in range(1, 4):
        a(f"v_xor_b32 v{3+s}, {32*s}, v3")
    a("s_barrier")
    stamp(a, 86, 2)
    for s in range(4):
        a(f"ds_read_b128 {vr(32+4*s, 4)}, v{3+s}")
    for s in range(4):
        a(f"s_waitcnt lgkmcnt({3-s})")
        c = "0" if s == 0 else vr(96, 16)
        a(f"v_mfma_f32_32x32x16_bf16 {vr(96, 16)}, {vr(32+4*s, 4)}, {vr(64+4*s, 4)}, {c}")
    for i in range(16):
        a(f"v_mov_b32 v{112+i}, 0")
    a(f"s_cmp_lg_u32 s{sT3}, 1")
    a("s_cbranch_scc1 K2_NOSC")
    for i in range(16):
        a(f"v_mul_f32 v{96+i}, {NLOG2E}, v{96+i}")
    a.label("K2_NOSC")
    for i in range(8):
        a(f"v_cvt_pk_bf16_f32 v{32+i}, v{96+2*i}, v{97+2*i}")
    for g in range(4):
        a(f"ds_write_b64 v61, {vr(32+2*g, 2)} offset:{2048*g}")
    for i in range(16):
        a(f"v_mov_b32 v{96+i}, 0")
    a("v_mov_b32 v48, 4")
    a("s_waitcnt vmcnt(4)")
    stamp(a, 86, 3)
    for u in range(8):
        a(f"s_mov_b64 exec, s[{sM+2*u}:{sM+2*u+1}]")
        a(f"v_lshrrev_b32 v{64+u}, 3, v{81+2*u}")
        a(f"v_and_b32 v{64+u}, 0x3c, v{64+u}")
        a(f"ds_add_rtn_u32 v{64+u}, v{64+u}, v48 offset:{L_CNT}")
    for u in range(8):
        a(f"s_mov_b64 exec, s[{sM+2*u}:{sM+2*u+1}]")
        a(f"s_waitcnt lgkmcnt({7 + u})")
        a(f"v_min_u32 v{64+u}, {L_INF - 4}, v{64+u}")
        a(f"ds_write_b32 v{64+u}, v{80+2*u} offset:{L_SRC}")
        a(f"ds_write_b32 v{64+u}, v{81+2*u} offset:{L_INF}")
    a(f"s_mov_b64 exec, s[{sLONG}:{sLONG+1}]")
    a("s_cbranch_execz K2_NOF0")
    a("v_mov_b32 v49, 0")
    a(f"ds_write_b32 v49, v48 offset:{L_CNT + 68}")
    a.label("K2_NOF0")
    a("s_mov_b64 exec, -1")
    a(f"v_lshlrev_b32 v50, 2, v{vL}")
    a("v_and_b32 v51, 63, v50")
    for i in range(4):
        a(f"v_mov_b32 v{40+i}, 0")
    a(f"s_lshl_b32 s{sT0}, s{sW}, 11")
    a(f"s_add_u32 s{sT0}, s{sT0}, {L_OH}")
    a(f"v_add_u32 v62, s{sT0}, v62")
    a("s_waitcnt vmcnt(0) lgkmcnt(0)")
    a("s_barrier")
    stamp(a, 86, 4)
    a(f"ds_read_b32 v33, v50 offset:{L_CNT}")
    a(f"ds_read_b32 v34, v51 offset:{L_CNT + 192}")
    a(f"ds_read_b64 {vr(WE0+2, 2)}, v63")
    a(f"ds_read_b64 {vr(WE1+2, 2)}, v63 offset:512")
    a(f"ds_read_b64 {vr(CC, 2)}, v63 offset:1024")
    a(f"ds_read_b64 {vr(CC+2, 2)}, v63 offset:1536")
    a("ds_write_b128 v62, v[40:43]")
    a("ds_write_b128 v62, v[40:43] offset:1024")
    a("s_waitcnt lgkmcnt(6)")
    a("v_cmp_gt_u32 vcc, v33, v34")
    a(f"v_readlane_b32 s{sREM}, v33, s{sW}")
    a(f"v_readlane_b32 s{sT0}, v33, 17")
    a("s_and_b32 s3, vcc_lo, 0xffff")
    a(f"s_or_b32 s3, s3, s{sT0}")
    a("s_cbranch_scc1 K2_SLOW")
    a.label("K2_START")
    if OPT["startprio"]:
        a(f"s_setprio {OPT['startprio']}")
    a(f"s_sub_u32 s{sREM}, s{sREM}, s{sBASE}")
    a(f"s_lshr_b32 s{sREM}, s{sREM}, 2")
    a("s_cbranch_scc0 K2_LOOP_DONE")
    a(f"s_and_b32 s{sT0}, s{sREM}, 63")
    a("s_cbranch_scc0 K2_NOFILL")
    a(f"s_bfm_b64 s[{sT2}:{sT3}], s{sT0}, 0")
    a(f"s_andn2_b32 s{sT0}, s{sREM}, 63")
    a(f"s_lshl2_add_u32 m0, s{sT0}, s{sBASE}")
    a(f"s_not_b64 exec, s[{sT2}:{sT3}]")
    a(f"ds_write_addtid_b32 v40 offset:{L_SRC}")
    a(f"ds_write_addtid_b32 v40 offset:{L_INF}")
    a("s_mov_b64 exec, -1")
    a.label("K2_NOFILL")
    a(f"s_mov_b32 m0, s{sBASE}")
    G_reads(a, RAWA, 0)
    PA_reads(a)
    G_issue(a, RAWA, 2)
    a("s_waitcnt lgkmcnt(0)")
    PA_issue(a)
    emit_masks(a)
    a("s_waitcnt vmcnt(0)")
    emit_PB(a)
    stamp(a, 86, 5)
    if OPT["diag"] == 2:
        a("s_getreg_b32 s87, hwreg(HW_REG_HW_ID)")
        a("s_memtime s[94:95]")
        a("s_waitcnt lgkmcnt(0)")
        a("s_mov_b32 s88, s94")
    a.label("K2_T0")
    emit_tile(a, 0)
    a.label("K2_T1")
    emit_tile(a, 1)
    a.label("K2_SLOW")
    a(f"s_mov_b32 s{sJ}, -1")
    a(f"s_mov_b32 s{sFL}, 2")
    a.label("K2_ROUND")
    P(a, 0)
    a("s_waitcnt lgkmcnt(0)")
    a("s_barrier")
    lane_id(a, vL)
    a(f"v_lshlrev_b32 v50, 2, v{vL}")
    a("v_and_b32 v51, 63, v50")
    a(f"s_cmp_lg_u32 s{sW}, 0")
    a("s_cbranch_scc1 K2_NOCNT2")
    a(f"ds_read_b32 v33, v51 offset:{L_CNT + 128}")
    a("v_mov_b32 v34, 0")
    a("s_waitcnt lgkmcnt(0)")
    a(f"ds_write_b32 v51, v33 offset:{L_CNT}")
    a(f"ds_write_b32 v51, v34 offset:{L_CNT + 64}")
    a.label("K2_NOCNT2")
    offT_addr(61)
    a("global_load_dwordx4 v[56:59], v61, s[16:17]")
    a(f"s_and_b32 s{sT1}, s{sFL}, 1")
    a(f"s_xor_b32 s{sT1}, s{sT1}, 1")
    a(f"s_add_u32 s{sJ}, s{sJ}, s{sT1}")
    payload_addr()
    a("s_waitcnt vmcnt(0) lgkmcnt(0)")
    a("s_barrier")
    payload_issue(False)
    a(f"v_lshlrev_b32 v50, 2, v{vL}")
    a("v_and_b32 v51, 63, v50")
    a("v_mov_b32 v48, 4")
    a("v_mov_b32 v49, 0")
    a(f"s_mov_b64 s[{sT2}:{sT3}], 0")
    a("s_waitcnt vmcnt(0)")
    for u in range(8):
        a(f"s_mov_b64 exec, s[{sM+2*u}:{sM+2*u+1}]")
        a(f"v_lshrrev_b32 v64, 3, v{81+2*u}")
        a("v_and_b32 v64, 0x3c, v64")
        a(f"ds_read_b32 v65, v64 offset:{L_CNT + 192}")
        a(f"ds_add_rtn_u32 v64, v64, v48 offset:{L_CNT}")
        a("s_waitcnt lgkmcnt(0)")
        a("v_cmp_lt_u32 vcc, v64, v65")
        a(f"s_andn2_b64 s[{sM+2*u}:{sM+2*u+1}], exec, vcc")
        a("s_mov_b64 exec, vcc")
        a(f"ds_write_b32 v64, v{80+2*u} offset:{L_SRC}")
        a(f"ds_write_b32 v64, v{81+2*u} offset:{L_INF}")
        a(f"s_or_b64 s[{sT2}:{sT3}], s[{sT2}:{sT3}], s[{sM+2*u}:{sM+2*u+1}]")
    a(f"s_mov_b64 exec, s[{sT2}:{sT3}]")
    a("s_cbranch_execz K2_NOF1")
    a(f"ds_write_b32 v49, v48 offset:{L_CNT + 64}")
    a.label("K2_NOF1")
    a(f"s_mov_b64 exec, s[{sLONG}:{sLONG+1}]")
    a("s_cbranch_execz K2_NOF2")
    a(f"ds_write_b32 v49, v48 offset:{L_CNT + 68}")
    a.label("K2_NOF2")
    a("s_mov_b64 exec, -1")
    a("s_waitcnt lgkmcnt(0)")
    a("s_barrier")
    a(f"ds_read_b32 v33, v50 offset:{L_CNT}")
    a(f"ds_read_b32 v34, v51 offset:{L_CNT + 192}")
    a(f"v_lshrrev_b32 v{vGA}, 5, v{vL}")
    a(f"v_lshl_add_u32 v{vGA}, v{vGA}, 4, s{sBASE}")
    a("v_mov_b32 v40, 0")
    a("s_waitcnt lgkmcnt(0)")
    a(f"v_readlane_b32 s{sT0}, v33, 16")
    a(f"v_readlane_b32 s{sT1}, v33, 17")
    a("v_min_u32 v33, v33, v34")
    a(f"s_cmp_lg_u32 s{sT0}, 0")
    a(f"s_cselect_b32 s{sFL}, 1, 0")
    a(f"s_cmp_lg_u32 s{sT1}, 0")
    a(f"s_cselect_b32 s{sT1}, 2, 0")
    a(f"s_or_b32 s{sFL}, s{sFL}, s{sT1}")
    a(f"v_readlane_b32 s{sREM}, v33, s{sW}")
    a("s_nop 1")
    a("s_branch K2_START")
    a.label("K2_LOOP_DONE")
    a(f"s_cmp_lg_u32 s{sFL}, 0")
    a("s_cbranch_scc1 K2_ROUND")
    stamp(a, 86, 6)
    if OPT["diag"] == 2:
        a("s_memtime s[94:95]")
        a("s_waitcnt lgkmcnt(0)")
        a("s_mov_b32 s89, s94")
    P(a, 0)
    vL, vJ, vHF = 4, 5, 6
    lane_id(a, vL)
    a(f"v_lshlrev_b32 v7, 4, v{vL}")
    BT = 64
    for ks in range(4):
        for tc in range(2):
            a(f"ds_read_b128 {vr(BT+8*ks+4*tc, 4)}, v7 offset:{L_WH2 + (2*ks + tc)*1024}")
    a(f"v_and_b32 v{vJ}, 31, v{vL}")
    a(f"v_lshrrev_b32 v{vHF}, 5, v{vL}")
    a(f"v_lshlrev_b32 v8, 4, v{vHF}")
    WX = 12
    for ks in range(4):
        a(f"ds_read_b128 {vr(WX+4*ks, 4)}, v8 offset:{L_WX + 32*ks}")
    a(f"v_lshrrev_b32 v9, 2, v{vJ}")
    a(f"v_lshl_add_u32 v9, v9, 4, s{sW}")
    a("v_lshlrev_b32 v10, 5, v9")
    a(f"v_lshl_add_u32 v11, v{vHF}, 3, v10")
    a(f"v_and_b32 v3, 3, v{vL}")
    a("v_lshl_add_u32 v10, v3, 2, v10")
    a(f"ds_read_b64 v[0:1], v11 offset:{L_TAB}")
    a(f"ds_read_b32 v2, v10 offset:{L_TAB + 16}")
    for q in range(16):
        a(f"v_mul_f32 v{ACC1+q}, {NLN2}, v{ACC1+q}")
    SP = 32
    for t in range(2):
        for i in range(8):
            b = (ACC0, ACC1)[t]
            a(f"v_cvt_pk_bf16_f32 v{SP+8*t+i}, v{b+2*i}, v{b+2*i+1}")
    D0, D1, D3 = 96, 112, 48
    a("s_waitcnt lgkmcnt(0)")
    a(f"v_mfma_f32_32x32x8bf16_1k {vr(D0, 16)}, v[0:1], {vr(CC, 2)}, 0")
    a(f"v_mfma_f32_32x32x8bf16_1k {vr(D1, 16)}, v[0:1], {vr(CC+2, 2)}, 0")
    a(f"s_lshl_b32 s{sT0}, s{sW}, 10")
    a(f"s_add_u32 s{sT0}, s{sT0}, {L_HIMG}")
    a(f"v_lshlrev_b32 v10, 2, v{vJ}")
    a("v_xor_b32 v11, v10, v8")
    a(f"v_lshl_add_u32 v11, v{vHF}, 7, v11")
    a(f"v_add_u32 v11, s{sT0}, v11")
    for ks in range(4):
        sp = vr(SP + 4 * ks, 4)
        a(f"v_mfma_f32_32x32x16_bf16 {vr(D0, 16)}, {sp}, {vr(BT+8*ks, 4)}, {vr(D0, 16)}")
        a(f"v_mfma_f32_32x32x16_bf16 {vr(D1, 16)}, {sp}, {vr(BT+8*ks+4, 4)}, {vr(D1, 16)}")
        g = ks
        if g:
            a(f"v_xor_b32 v7, {32*g}, v11")
        a(f"ds_read_b32 v{28+g}, v{7 if g else 11} offset:{256*g}")
    for ks in range(4):
        c = "0" if ks == 0 else vr(D3, 16)
        a(f"v_mfma_f32_32x32x16_bf16 {vr(D3, 16)}, {vr(WX+4*ks, 4)}, {vr(SP+4*ks, 4)}, {c}")
    a(f"s_mov_b32 s{SRD_O}, s14")
    a(f"s_mov_b32 s{SRD_O+1}, s15")
    a(f"s_mov_b32 s{SRD_O+2}, {N*128}")
    a(f"s_mov_b32 s{SRD_O+3}, 0x20000")
    a(f"s_lshl_b32 s{sT0}, s{sNODE}, 7")
    a(f"v_lshl_add_u32 v10, v{vHF}, 11, v10")
    a(f"v_add_u32 v10, s{sT0}, v10")
    a(f"s_mov_b32 s{sT1}, {BN}")
    a(f"v_cmp_gt_u32 s[{sT2}:{sT3}], s{sT1}, v9")
    a(f"s_mul_i32 s{sT1}, s{sB}, {BN}")
    a(f"v_add_u32 v9, s{sT1}, v9")
    a(f"v_cmp_gt_u32 vcc, {N}, v9")
    a(f"s_and_b32 s{sT2}, s{sT2}, vcc_lo")
    a(f"s_and_b32 s{sT2}, s{sT2}, 0x77777777")
    a(f"s_mov_b32 s{sT3}, 0")
    a("v_mul_u32_u24 v9, 6, v9")
    a("v_lshl_add_u32 v9, v3, 1, v9")
    a(f"v_add_u32 v9, {N*128}, v9")
    xs = [(D0, D1)[t] + 4 * g + 3 for g in range(4) for t in range(2)]
    ts = [64 + i for i in range(8)]
    hs = [72 + i for i in range(8)]
    for x, t in zip(xs, ts):
        a(f"v_mul_f32 v{t}, {NLOG2E}, v{x}")
    for t in ts:
        a(f"v_exp_f32 v{t}, v{t}")
    a("s_waitcnt lgkmcnt(0)")
    for g in range(4):
        a(f"v_lshlrev_b32 v{hs[2*g]}, 16, v{28+g}")
        a(f"v_and_b32 v{hs[2*g+1]}, 0xffff0000, v{28+g}")
    for t in ts:
        a(f"v_add_f32 v{t}, 1.0, v{t}")
    for t in ts:
        a(f"v_rcp_f32 v{t}, v{t}")
    a(f"v_add_f32 v2, v2, v{D3}")
    for x, t, h in zip(xs, ts, hs):
        a(f"v_fmac_f32 v{h}, v{x}, v{t}")
    a("v_cvt_pk_bf16_f32 v2, v2, v2")
    for g in range(4):
        a(f"v_cvt_pk_bf16_f32 v{28+g}, v{hs[2*g]}, v{hs[2*g+1]}")
    a("s_movk_i32 s24, 0x1000")
    a("s_movk_i32 s25, 0x2000")
    a("s_movk_i32 s26, 0x3000")
    for g in range(3):
        a(f"buffer_store_dword v{28+g}, v10, s[{SRD_O}:{SRD_O+3}], {'0' if g == 0 else 's' + str(23+g)} offen")
    a(f"s_mov_b64 exec, s[{sT2}:{sT3}]")
    a("s_cbranch_execz K2_NOPOS")
    a("global_store_short v9, v2, s[14:15]")
    a.label("K2_NOPOS")
    a(f"s_cmp_ge_u32 s{sW}, {BN - 96}")
    a("s_cbranch_scc1 K2_FIN")
    a("s_mov_b64 exec, 0xffffffff")
    a(f"buffer_store_dword v31, v10, s[{SRD_O}:{SRD_O+3}], s26 offen")
    a.label("K2_FIN")
    stamps_out(a, 86, 1, sW)
    a.label("K2_END")
    a("s_endpgm")
    return a


HEADER = """; EGNN layer on gfx950: launch 1 bins the edges by destination bucket and builds per-node tables,
"""


def desc(name, vg, sg):
    return f""".p2align 6
.amdhsa_kernel {name}
  .amdhsa_next_free_vgpr {vg}
  .amdhsa_next_free_sgpr {sg}
  .amdhsa_accum_offset {vg}
  .amdhsa_group_segment_fixed_size 0
  .amdhsa_kernarg_size 88
  .amdhsa_user_sgpr_count 2
  .amdhsa_user_sgpr_kernarg_segment_ptr 1
  .amdhsa_system_sgpr_workgroup_id_x 1
  .amdhsa_float_denorm_mode_32 3
.end_amdhsa_kernel
"""


def build():
    s = HEADER
    s += f"; @launch kernel=bin_kernel grid=(512,1,1) block=({K1_THREADS},1,1) lds={K1_LDS + 4096}\n"
    s += f"; @launch kernel=edge_kernel grid=(256,1,1) block=(1024,1,1) lds={K2_LDS}\n"
    s += '.amdgcn_target "amdgcn-amd-amdhsa--gfx950"\n.text\n'
    ks = [("bin_kernel", kernel1(), 64, 74 if OPT["diag"] else 40), ("edge_kernel", kernel2(), 128, 96 if OPT["diag"] else 72)]
    for name, k, vg, sg in ks:
        s += f".globl {name}\n.p2align 8\n.type {name},@function\n{name}:\n" + k.render()
    s += '.section .rodata,"a"\n'
    for name, k, vg, sg in ks:
        s += desc(name, vg, sg)
    return s


if __name__ == "__main__":
    out = sys.argv[1] if len(sys.argv) > 1 else "standalone__cheap_equivariant_egnn__graph.s"
    for arg in sys.argv[2:]:
        k, v = arg.split("=")
        OPT[k] = int(v)
    open(out, "w").write(build())
    print("wrote", out, "K2_LDS", K2_LDS)
```

```python
import struct
import sys
from asmlib import Asm

N = 25000
E = 800000
BN = 98
CH = 3128
CHB = 25088
K1_THREADS = 832
WS_B = 0
WS_PAY = 4 << 20
WS_OFF = 12 << 20
WS_IMG = 13 << 20
WS_POS = 14 << 20
WS_DIAG = 20 << 20
I_CNT = 0
I_EARLY = 9216
I_WX = 256
I_WH2 = 512
I_LUT = I_EARLY
I_W = I_LUT + 65536
I_LANE = I_W + 16384
I_OHT = I_LANE + 4096

CAPS = [320, 320] + [256] * 14
BASES = [sum(CAPS[:g]) * 4 for g in range(17)]
L_SRC = 0
L_INF = BASES[16]
L_EARLY = 2 * L_INF
L_CNT = L_EARLY + I_CNT
L_WX = L_EARLY + I_WX
L_WH2 = L_EARLY + I_WH2
L_TAB = L_EARLY + I_EARLY
L_LUT = L_TAB + 4096
L_HIMG = L_LUT + 65536
L_OH = L_HIMG + 16384
K2_LDS = L_OH + 32768
assert L_LUT < 65536 and L_OH % 64 == 0 and L_HIMG % 128 == 0 and K2_LDS <= 163840, K2_LDS


def f2u(x):
    return struct.unpack("<I", struct.pack("<f", x))[0]


LOG2E = 1.4426950408889634
NLOG2E = hex(f2u(-LOG2E))
PLOG2E = hex(f2u(LOG2E))
NLN2 = hex(f2u(-0.6931471805599453))

OPT = dict(faithful_sq=1, prio=1, pk=1, diag=0, abl_lut=0, abl_g=0, abl_trans=0, startprio=0)


def stamp(a, base, i):
    if OPT["diag"]:
        a("s_waitcnt lgkmcnt(0)")
        a(f"s_memrealtime s[{base+8}:{base+9}]")
        a("s_waitcnt lgkmcnt(0)")
        a(f"s_mov_b32 s{base+i}, s{base+8}")


def stamps_out(a, base, kidx, swave):
    if OPT["diag"] == 3:
        a("s_waitcnt vmcnt(0)")
        stamp(a, base, 7)
        a(f"s_load_dwordx2 s[4:5], s[0:1], 72")
        a("s_waitcnt lgkmcnt(0)")
        if kidx:
            a("s_sub_u32 s4, s4, 480")
            a("s_subb_u32 s5, s5, 0")
        a(f"s_not_b32 s{base}, s{base}")
        a("s_mov_b64 exec, 1")
        a("v_mov_b32 v0, 0")
        for i in range(8):
            a(f"v_mov_b32 v1, s{base+i}")
            a(f"global_atomic_umax v0, v1, s[4:5] offset:{4*i}")
    elif OPT["diag"]:
        a("s_waitcnt vmcnt(0)")
        stamp(a, base, 7)
        a("s_mov_b64 exec, 1")
        a(f"s_lshl_b32 s{base+8}, s2, 4")
        a(f"s_add_u32 s{base+8}, s{base+8}, s{swave}")
        a(f"s_lshl_b32 s{base+8}, s{base+8}, 5")
        a(f"s_add_u32 s{base+8}, s{base+8}, {WS_DIAG + kidx * (1 << 20)}")
        a(f"v_mov_b32 v0, s{base+8}")
        for i in range(8):
            a(f"v_mov_b32 v1, s{base+i}")
            a(f"global_store_dword v0, v1, s[16:17] offset:{4*i}")


def vr(b, n):
    return f"v[{b}:{b+n-1}]"


K1_HIST = 0
K1_PREF = 1024
K1_STAGE = 2048
K1_LDS = 32768
NTILE = (N + 31) // 32


def k1_bin(a):
    a("s_and_b32 s18, s2, 7")
    a("s_lshl_b32 s18, s18, 5")
    a("s_lshr_b32 s19, s2, 3")
    a("s_add_u32 s18, s18, s19")
    a(f"s_mul_i32 s19, s18, {CH}")
    a("v_lshl_add_u32 v3, v0, 2, s19")
    a(f"v_cmp_gt_u32 vcc, {CH // 4}, v0")
    a(f"s_mov_b32 s20, {E}")
    a("v_cmp_gt_u32 s[22:23], s20, v3")
    a("v_lshlrev_b32 v4, 2, v3")
    a("v_lshlrev_b32 v5, 1, v3")
    a("s_and_b64 s[22:23], s[22:23], vcc")
    a("s_mov_b64 exec, s[22:23]")
    a("s_waitcnt lgkmcnt(0)")
    a("global_load_dwordx4 v[8:11], v4, s[12:13]")
    a("global_load_dwordx4 v[12:15], v4, s[10:11]")
    a("global_load_dwordx2 v[16:17], v5, s[8:9]")
    a("s_mov_b64 exec, -1")
    a("v_lshlrev_b32 v6, 2, v0")
    a("v_mov_b32 v7, 0")
    a("s_cmp_ge_u32 s3, 4")
    a("s_cbranch_scc1 K1_NOZ")
    a(f"ds_write_b32 v6, v7 offset:{K1_HIST}")
    a.label("K1_NOZ")
    a("s_mov_b32 s24, 43826197")
    a(f"s_mov_b32 s25, {-BN}")
    a("v_mov_b32 v18, 1")
    a("v_lshlrev_b32 v6, 4, v0")
    a(f"s_mul_i32 s26, s18, {CHB}")
    a(f"s_add_u32 s26, s26, {WS_PAY}")
    a("v_add_u32 v7, s26, v6")
    a("s_waitcnt lgkmcnt(0)")
    a("s_barrier")
    stamp(a, 64, 1)
    a("s_mov_b64 exec, s[22:23]")
    a("s_waitcnt vmcnt(2)")
    stamp(a, 64, 2)
    for i in range(4):
        a(f"v_mul_hi_u32 v{20+i}, v{8+i}, s24")
    for i in range(4):
        a(f"v_mad_i32_i24 v{8+i}, v{20+i}, s25, v{8+i}")
        a(f"v_lshlrev_b32 v{20+i}, 2, v{20+i}")
        a(f"ds_add_rtn_u32 v{24+i}, v{20+i}, v18 offset:{K1_HIST}")
    a("s_waitcnt vmcnt(0)")
    for i in range(4):
        a(f"v_lshlrev_b32 v{28+2*i}, 2, v{12+i}")
        if i % 2 == 0:
            a(f"v_lshlrev_b32 v{29+2*i}, 16, v{16+i//2}")
        else:
            a(f"v_and_b32 v{29+2*i}, 0xffff0000, v{16+i//2}")
        a(f"v_lshl_or_b32 v{29+2*i}, v{8+i}, 5, v{29+2*i}")
    a("s_mov_b64 exec, -1")
    a("s_waitcnt lgkmcnt(0)")
    stamp(a, 64, 3)
    a("s_barrier")
    stamp(a, 64, 4)
    a("s_cmp_lg_u32 s3, 0")
    a("s_cbranch_scc1 K1_NOSCAN")
    a(f"ds_read_b128 v[40:43], v6 offset:{K1_HIST}")
    a("s_lshl_b32 s26, s18, 2")
    a(f"s_add_u32 s26, s26, {WS_OFF}")
    a("v_lshl_add_u32 v37, v0, 12, s26")
    a("s_waitcnt lgkmcnt(0)")
    a("v_add_u32 v45, v40, v41")
    a("v_add_u32 v46, v45, v42")
    a("v_add_u32 v47, v46, v43")
    a("v_mov_b32 v48, v47")
    for sh in (1, 2, 4, 8):
        a(f"v_add_u32_dpp v48, v48, v48 row_shr:{sh} row_mask:0xf bank_mask:0xf bound_ctrl:1")
    a("v_add_u32_dpp v48, v48, v48 row_bcast:15 row_mask:0xa bank_mask:0xf")
    a("v_add_u32_dpp v48, v48, v48 row_bcast:31 row_mask:0xc bank_mask:0xf")
    a("v_sub_u32 v52, v48, v47")
    a("v_add_u32 v53, v52, v40")
    a("v_add_u32 v54, v52, v45")
    a("v_add_u32 v55, v52, v46")
    a(f"ds_write_b128 v6, v[52:55] offset:{K1_PREF}")
    for i in range(4):
        a(f"v_lshl_or_b32 v{40+i}, v{40+i}, 16, v{52+i}")
        a(f"global_store_dword v37, v{40+i}, s[16:17] offset:{1024*i}")
    a("s_waitcnt lgkmcnt(0)")
    a.label("K1_NOSCAN")
    a("s_barrier")
    stamp(a, 64, 5)
    a("s_mov_b64 exec, s[22:23]")
    for i in range(4):
        a(f"ds_read_b32 v{20+i}, v{20+i} offset:{K1_PREF}")
    for i in range(4):
        a("s_waitcnt lgkmcnt(3)")
        a(f"v_add_lshl_u32 v{20+i}, v{20+i}, v{24+i}, 3")
        a(f"ds_write_b64 v{20+i}, v[{28+2*i}:{29+2*i}] offset:{K1_STAGE}")
    a("s_mov_b64 exec, -1")
    a(f"v_add_u32 v5, {K1_THREADS*16}, v7")
    a(f"v_cmp_gt_u32 vcc, {CH*8//16 - K1_THREADS}, v0")
    a("s_waitcnt lgkmcnt(0)")
    a("s_barrier")
    stamp(a, 64, 6)
    a(f"ds_read_b128 v[8:11], v6 offset:{K1_STAGE}")
    a(f"ds_read_b128 v[12:15], v6 offset:{K1_STAGE + K1_THREADS*16}")
    a("s_waitcnt lgkmcnt(1)")
    a("global_store_dwordx4 v7, v[8:11], s[16:17]")
    a("s_and_b64 exec, exec, vcc")
    a("s_cbranch_execz K1_FIN")
    a("s_waitcnt lgkmcnt(0)")
    a("global_store_dwordx4 v5, v[12:15], s[16:17]")
    a.label("K1_FIN")
    stamps_out(a, 64, 0, 3)
    a("s_endpgm")


def k1_btile(a):
    a("s_lshl_b32 s19, s18, 2")
    a("s_add_u32 s19, s19, s3")
    a(f"s_cmp_ge_u32 s19, {NTILE}")
    a("s_cbranch_scc1 K1_END")
    a("s_lshl_b32 s19, s19, 12")
    a("v_and_b32 v3, 31, v2")
    a("v_lshrrev_b32 v4, 5, v2")
    a("v_lshl_add_u32 v5, v3, 7, s19")
    a(f"v_min_u32 v5, {(N - 1) * 128}, v5")
    a("v_lshl_add_u32 v5, v4, 4, v5")
    a("v_lshrrev_b32 v6, 2, v2")
    a("v_lshlrev_b32 v6, 7, v6")
    a("v_and_b32 v7, 3, v2")
    a("v_lshl_add_u32 v6, v7, 4, v6")
    a("v_add_u32 v6, 8192, v6")
    a("s_lshl_b32 s20, s3, 13")
    a("s_waitcnt lgkmcnt(0)")
    for s in range(4):
        a(f"global_load_dwordx4 v[{16+4*s}:{19+4*s}], v5, s[4:5] offset:{32*s}")
    for i in range(8):
        t, kq = i >> 2, i & 3
        if i == 2:
            a("v_add_u32 v8, 4096, v6")
        go = t * 64 + (kq & 1) * 2048
        a(f"s_add_u32 m0, s20, {i*1024 - go + 4096}")
        a(f"global_load_lds_dwordx4 v{6 if kq < 2 else 8}, s[14:15] offset:{go}")
    a("v_bfe_u32 v14, v2, 2, 2")
    a("v_lshl_add_u32 v14, v4, 3, v14")
    a("v_lshlrev_b32 v14, 6, v14")
    a("v_bfe_u32 v15, v2, 4, 1")
    a("v_lshl_add_u32 v14, v15, 5, v14")
    a("v_lshl_add_u32 v14, v7, 3, v14")
    a("v_add_u32 v14, s20, v14")
    a("v_lshlrev_b32 v15, 9, v4")
    a("v_lshl_add_u32 v15, v3, 2, v15")
    a("v_add_u32 v15, s19, v15")
    a("s_mov_b32 s28, s16")
    a("s_mov_b32 s29, s17")
    a(f"s_mov_b32 s30, {N*128}")
    a("s_mov_b32 s31, 0x20000")
    a("s_mov_b32 s24, 0xffff0000")
    a("s_mov_b32 s25, 0x80000000")
    a("s_waitcnt vmcnt(0)")
    stamp(a, 64, 2)

    def rd(k):
        s_, t = k >> 1, k & 1
        r = 4 * (k % 3)
        for q in range(2):
            a(f"ds_read_b64_tr_b16 v[{r+2*q}:{r+2*q+1}], v14 offset:{4096 + t*4096 + s_*1024 + q*256}")
    for k in range(3):
        rd(k)
    for k in range(8):
        s_, t = k >> 1, k & 1
        a(f"s_waitcnt lgkmcnt({min(4, 2*(7-k))})")
        d = 32 + 16 * t
        r = 4 * (k % 3)
        c = "0" if s_ == 0 else f"v[{d}:{d+15}]"
        a(f"v_mfma_f32_32x32x16_bf16 v[{d}:{d+15}], v[{16+4*s_}:{19+4*s_}], v[{r}:{r+3}], {c}")
        if k + 3 < 8:
            rd(k + 3)
    stamp(a, 64, 3)
    for q0 in range(0, 16, 4):
        R = range(4)
        for i in R:
            a(f"v_cvt_pk_bf16_f32 v{i}, v{32+q0+i}, 0")
        for i in R:
            a(f"v_mul_f32 v{4+i}, {NLOG2E}, v{48+q0+i}")
        for i in R:
            a(f"v_sub_u32 v{8+i}, 0x8000, v{i}")
        for i in R:
            a(f"v_and_b32 v{16+i}, 0x7fffffff, v{4+i}")
        for i in R:
            a(f"v_add_u32 v{8+i}, v{8+i}, v{16+i}")
        for i in R:
            a(f"v_max_i32 v{8+i}, 0, v{8+i}")
        for i in R:
            a(f"v_and_or_b32 v{8+i}, v{8+i}, s24, v{i}")
        for i in R:
            a(f"v_and_or_b32 v{32+q0+i}, v{4+i}, s25, v{8+i}")
            a(f"buffer_store_dword v{32+q0+i}, v15, s[28:31], 0 offen offset:{(2*q0 + i)*128}")
    stamps_out(a, 64, 0, 3)
    a("s_endpgm")


def k1_lut(a):
    a("s_lshl_b32 s19, s18, 7")
    a("v_lshl_add_u32 v8, v2, 1, s19")
    a(f"s_mov_b32 s20, {WS_IMG + I_LUT}")
    a("v_lshl_add_u32 v9, v8, 1, s20")
    a("v_lshlrev_b32 v10, 16, v8")
    a("v_add_u32 v11, 0x10000, v10")
    a("s_mov_b32 s21, 0x7f800000")
    for r in (10, 11):
        a(f"v_mul_f32 v{r+2}, {PLOG2E}, v{r}")
    for r in (10, 11):
        a(f"v_exp_f32 v{r+2}, v{r+2}")
    for r in (10, 11):
        a(f"v_add_f32 v{r+2}, 1.0, v{r+2}")
    for r in (10, 11):
        a(f"v_rcp_f32 v{r+2}, v{r+2}")
    for r in (10, 11):
        a(f"v_mul_f32 v{r+2}, v{r}, v{r+2}")
        a(f"v_cmp_eq_u32 vcc, s21, v{r}")
        a(f"v_cndmask_b32 v{r+2}, v{r+2}, 0, vcc")
    a("v_cvt_pk_bf16_f32 v12, -v12, -v13")
    a("s_waitcnt lgkmcnt(0)")
    a("global_store_dword v9, v12, s[16:17]")
    a("s_endpgm")


def k1_pos(a):
    a("s_sub_u32 s19, s3, 5")
    a("s_lshl_b32 s19, s19, 6")
    a("v_add_u32 v8, s19, v2")
    a(f"v_cmp_gt_u32 vcc, {BN}, v8")
    a("v_lshrrev_b32 v15, 4, v8")
    a("v_lshlrev_b32 v15, 3, v15")
    a(f"s_mul_i32 s19, s18, {BN}")
    a("v_add_u32 v8, s19, v8")
    a("s_mov_b64 exec, vcc")
    a(f"v_cmp_gt_u32 vcc, {N}, v8")
    a("v_mul_u32_u24 v9, 6, v8")
    a(f"s_mov_b32 s20, {WS_POS}")
    a("v_lshl_add_u32 v8, v8, 4, s20")
    a("s_mov_b64 exec, vcc")
    a("s_cbranch_execz K1_END")
    a("s_waitcnt lgkmcnt(0)")
    for i in range(3):
        a(f"global_load_ushort v{12+i}, v9, s[6:7] offset:{2*i}")
    a("s_waitcnt vmcnt(0)")
    for i in range(3):
        a(f"v_lshlrev_b32 v{12+i}, 16, v{12+i}")
    a("global_store_dwordx4 v8, v[12:15], s[16:17]")
    a("s_endpgm")


def k1_img(a):
    a("s_cmp_gt_u32 s18, 25")
    a("s_cbranch_scc1 K1_END")
    a("s_load_dwordx4 s[24:27], s[0:1], 48")
    a("v_and_b32 v3, 31, v2")
    a("v_lshrrev_b32 v4, 5, v2")
    a("v_lshlrev_b32 v5, 4, v2")
    a("s_cmp_eq_u32 s18, 24")
    a("s_cbranch_scc1 K1_IMG_LANE")
    a("s_cmp_eq_u32 s18, 25")
    a("s_cbranch_scc1 K1_IMG_MISC")
    a("s_cmp_ge_u32 s18, 16")
    a("s_cbranch_scc1 K1_IMG_WH2")
    a("s_and_b32 s19, s18, 3")
    a("s_lshl_b32 s19, s19, 11")
    a("v_lshl_add_u32 v6, v4, 10, s19")
    a("s_bfe_u32 s20, s18, 0x10002")
    a("s_lshl_b32 s21, s18, 10")
    a(f"s_add_u32 s21, s21, {WS_IMG + I_W}")
    a("s_waitcnt lgkmcnt(0)")
    a("s_cmp_ge_u32 s18, 8")
    a("s_cbranch_scc1 K1_IMG_C")
    a("s_lshl_b32 s20, s20, 6")
    a("v_lshl_add_u32 v6, v3, 1, v6")
    a("v_add_u32 v6, s20, v6")
    a("s_mov_b64 s[22:23], s[14:15]")
    a("s_branch K1_IMG_LD")
    a.label("K1_IMG_C")
    a("s_lshl_b32 s20, s20, 1")
    a("v_lshl_add_u32 v6, v3, 2, v6")
    a("v_add_u32 v6, s20, v6")
    a("s_mov_b64 s[22:23], s[26:27]")
    a.label("K1_IMG_LD")
    for kk in range(8):
        a(f"global_load_ushort v{8+kk}, v6, s[22:23] offset:{kk*128}")
    a("s_branch K1_IMG_ST")
    a.label("K1_IMG_WH2")
    a("s_sub_u32 s19, s18, 16")
    a("s_lshl_b32 s21, s19, 10")
    a(f"s_add_u32 s21, s21, {WS_IMG + I_WH2}")
    a("s_and_b32 s20, s19, 1")
    a("s_lshl_b32 s20, s20, 1")
    a("s_lshr_b32 s19, s19, 1")
    a("s_lshl_b32 s19, s19, 11")
    a("s_add_u32 s19, s19, s20")
    a("s_add_u32 s19, s19, 8192")
    a("v_lshl_add_u32 v6, v4, 9, s19")
    a("v_lshl_add_u32 v6, v3, 2, v6")
    a("s_waitcnt lgkmcnt(0)")
    for kk in range(8):
        a(f"global_load_ushort v{8+kk}, v6, s[26:27] offset:{(8*(kk >> 2) + (kk & 3))*128}")
    a.label("K1_IMG_ST")
    a("v_add_u32 v5, s21, v5")
    a("s_waitcnt vmcnt(0)")
    for i in range(4):
        a(f"v_lshl_or_b32 v{16+i}, v{9+2*i}, 16, v{8+2*i}")
    a("global_store_dwordx4 v5, v[16:19], s[16:17]")
    a("s_endpgm")
    a.label("K1_IMG_LANE")
    a("v_lshlrev_b32 v6, 1, v3")
    a("v_add_u32 v6, 0x4000, v6")
    a("s_waitcnt lgkmcnt(0)")
    for i, off in enumerate((0, 64, 128, 192)):
        a(f"global_load_ushort v{8+i}, v6, s[14:15] offset:{off}")
    a("v_lshlrev_b32 v16, 4, v4")
    a("v_bfe_u32 v20, v2, 1, 2")
    a("v_lshlrev_b32 v17, 6, v3")
    a("v_lshl_add_u32 v17, v20, 3, v17")
    a(f"v_add_u32 v17, {L_OH}, v17")
    a("v_bfe_u32 v20, v2, 2, 2")
    a("v_lshl_add_u32 v20, v4, 2, v20")
    a("v_bfe_u32 v21, v2, 4, 1")
    a("v_and_b32 v22, 3, v2")
    a("v_lshl_add_u32 v21, v21, 2, v22")
    a("v_bfe_u32 v22, v20, 1, 2")
    a("v_xor_b32 v21, v21, v22")
    a("v_lshlrev_b32 v18, 6, v20")
    a("v_lshl_add_u32 v18, v21, 3, v18")
    a(f"v_add_u32 v18, {L_OH}, v18")
    a("v_and_b32 v20, 7, v2")
    a("v_xor_b32 v20, v20, v4")
    a("v_lshlrev_b32 v19, 7, v3")
    a("v_lshl_add_u32 v19, v20, 4, v19")
    a(f"v_add_u32 v19, {L_HIMG}, v19")
    a(f"v_add_u32 v5, {WS_IMG + I_LANE}, v5")
    a("global_store_dwordx4 v5, v[16:19], s[16:17]")
    a("v_cmp_eq_u32 s[22:23], 0, v4")
    a("s_waitcnt vmcnt(1)")
    for r in (9, 11):
        a(f"v_lshlrev_b32 v{r}, 16, v{r}")
        a(f"v_mul_f32 v{r}, {NLOG2E}, v{r}")
        a(f"v_cvt_pk_bf16_f32 v20, v{r}, 0")
        a("v_lshlrev_b32 v20, 16, v20")
        a(f"v_sub_f32 v21, v{r}, v20")
        a(f"v_cvt_pk_bf16_f32 v{r}, v20, v21")
    for we, (d, e) in ((24, (8, 10)), (30, (9, 11))):
        a(f"v_cndmask_b32 v{we+4}, 0, v{d}, s[22:23]")
        a(f"v_cndmask_b32 v{we+5}, 0, v{e}, s[22:23]")
        a(f"v_cndmask_b32 v{we}, v{d}, 0, s[22:23]")
        a(f"v_cndmask_b32 v{we+1}, v{e}, 0, s[22:23]")
        a(f"v_mov_b32 v{we+2}, 0")
        a(f"v_mov_b32 v{we+3}, 0")
    for q in range(3):
        a(f"global_store_dwordx4 v5, {vr(24+4*q, 4)}, s[16:17] offset:{1024*(q+1)}")
    a("s_endpgm")
    a.label("K1_IMG_MISC")
    a("v_lshrrev_b32 v6, 3, v3")
    a("v_lshlrev_b32 v6, 5, v6")
    a("v_bfe_u32 v7, v3, 1, 1")
    a("v_lshl_add_u32 v6, v7, 4, v6")
    a("v_bfe_u32 v7, v3, 2, 1")
    a("v_lshl_add_u32 v6, v7, 3, v6")
    a("v_and_b32 v7, 1, v3")
    a("v_lshl_add_u32 v6, v7, 2, v6")
    a("s_waitcnt lgkmcnt(0)")
    a("global_load_dword v8, v6, s[24:25]")
    a("v_and_b32 v9, 15, v2")
    a("v_lshrrev_b32 v10, 4, v2")
    a("v_cmp_eq_u32 vcc, 3, v10")
    a("v_addc_co_u32 v9, vcc, 0, v9, vcc")
    a("v_min_u32 v11, 2, v9")
    a("v_lshlrev_b32 v11, 8, v11")
    a("v_lshl_add_u32 v11, v9, 10, v11")
    a("v_cmp_eq_u32 vcc, 1, v10")
    a("v_cndmask_b32 v11, v11, 0, vcc")
    a("v_lshlrev_b32 v12, 2, v2")
    a(f"v_add_u32 v13, {WS_IMG + I_CNT}, v12")
    a("global_store_dword v13, v11, s[16:17]")
    a("v_lshrrev_b32 v9, 2, v3")
    a("v_and_b32 v10, 1, v9")
    a("v_lshlrev_b32 v10, 4, v10")
    a("v_mov_b32 v11, 0x3f80")
    a("v_lshlrev_b32 v10, v10, v11")
    a("v_lshrrev_b32 v9, 1, v9")
    a("v_and_b32 v11, 3, v3")
    a("v_cmp_eq_u32 vcc, v9, v11")
    a("v_cndmask_b32 v10, 0, v10, vcc")
    a(f"v_add_u32 v14, {WS_IMG + I_OHT}, v12")
    a("s_mov_b64 exec, 0xffffffff")
    a("global_store_dword v14, v10, s[16:17]")
    a("s_waitcnt vmcnt(2)")
    a(f"global_store_dword v13, v8, s[16:17] offset:{I_WX}")
    a("s_endpgm")


def kernel1():
    a = Asm()
    a("s_cmp_ge_u32 s2, 512")
    a("s_cbranch_scc1 K1_END")
    a("s_load_dwordx8 s[4:11], s[0:1], 0")
    a("s_load_dwordx4 s[12:15], s[0:1], 32")
    a("s_load_dwordx2 s[16:17], s[0:1], 80")
    stamp(a, 64, 0)
    if OPT["diag"] == 3:
        for i in range(1, 7):
            a(f"s_mov_b32 s{64+i}, 0")
    a("v_lshrrev_b32 v1, 6, v0")
    a("v_and_b32 v2, 63, v0")
    a("v_readfirstlane_b32 s3, v1")
    a("s_cmp_ge_u32 s2, 256")
    a("s_cbranch_scc1 K1_TAB")
    k1_bin(a)
    a.label("K1_TAB")
    a("s_sub_u32 s18, s2, 256")
    a("s_cmp_ge_u32 s3, 4")
    a("s_cbranch_scc1 K1_TAB2")
    k1_btile(a)
    a.label("K1_TAB2")
    a("s_cmp_gt_u32 s3, 7")
    a("s_cbranch_scc1 K1_END")
    a("s_cmp_eq_u32 s3, 7")
    a("s_cbranch_scc1 K1_IMG")
    a("s_cmp_eq_u32 s3, 4")
    a("s_cbranch_scc1 K1_LUT")
    k1_pos(a)
    a.label("K1_LUT")
    k1_lut(a)
    a.label("K1_IMG")
    k1_img(a)
    a.label("K1_END")
    a("s_endpgm")
    return a


assert BASES[:4] == [0, 1280, 2560, 3584]

ACC0, ACC1, RAWA, RAWB, X0, OH, T, LA, CC, WE0, WE1, XE, VV, PS = 96, 112, 64, 80, 48, 40, 36, 32, 28, 16, 22, 10, 8, 4
vINF, vOHA, vTRA, vLB, vGA = 7, 3, 2, 1, 0
sB, sW, sREM, sJ, sFL, sNODE = 18, 19, 20, 21, 22, 23
sM = 24
sLO, sHI = 40, 42
SRD_B, SRD_POS = 44, 48
sSEL, sBASE, sT0, sT1, sT2, sT3, sLONG = 52, 53, 54, 55, 56, 57, 58
SRD_O = 60


def P(a, p):
    if OPT["prio"]:
        a(f"s_setprio {p}")


def G_reads(a, dst, imm):
    for g in range(4):
        a(f"ds_read_b128 {vr(dst+4*g, 4)}, v{vGA} offset:{L_SRC + imm + 32*g}")


def G_issue(a, dst, younger):
    for g in range(4):
        a(f"s_waitcnt lgkmcnt({3 - g + younger})")
        for r in range(4):
            q = dst + 4 * g + r
            if OPT["abl_g"]:
                a("s_nop 0")
            else:
                a(f"buffer_load_dword v{q}, v{q}, s[{SRD_B}:{SRD_B+3}], 0 offen")


def PA_reads(a):
    a(f"ds_read_addtid_b32 v{PS} offset:{L_SRC}")
    a(f"ds_read_addtid_b32 v{vINF} offset:{L_INF}")


def PA_issue(a):
    a(f"buffer_load_dwordx3 {vr(PS, 3)}, v{PS}, s[{SRD_POS}:{SRD_POS+3}], 0 idxen")
    a("s_add_u32 m0, m0, 256")


def emit_PB(a):
    ta = LA
    a(f"v_and_b32 v{ta}, 0xfe0, v{vINF}")
    a(f"ds_read_b128 {vr(T, 4)}, v{ta} offset:{L_TAB + 16}")
    a(f"ds_read_b64 {vr(XE, 2)}, v{ta} offset:{L_TAB}")
    a(f"ds_read_b64 {vr(XE+4, 2)}, v{ta} offset:{L_TAB + 8}")
    a(f"v_perm_b32 v{XE+3}, v{vINF}, v{vINF}, s{sSEL}")
    a("s_waitcnt lgkmcnt(2)")
    for i in range(3):
        a(f"v_sub_f32 v{T+i}, v{T+i}, v{PS+i}")
    a(f"v_xor_b32 v{vOHA}, v{T+3}, v{vLB}")
    a(f"v_cvt_pk_bf16_f32 v{VV}, v{T}, v{T+1}")
    a(f"v_cvt_pk_bf16_f32 v{VV+1}, v{T+2}, 1.0")
    a(f"v_lshlrev_b32 v{T}, 16, v{VV}")
    a(f"v_and_b32 v{T+1}, 0xffff0000, v{VV}")
    a(f"v_lshlrev_b32 v{T+2}, 16, v{VV+1}")
    if OPT["faithful_sq"]:
        for i in range(3):
            a(f"v_mul_f32 v{T+i}, v{T+i}, v{T+i}")
        a(f"v_cvt_pk_bf16_f32 v{T+3}, v{T}, v{T+1}")
        a(f"v_cvt_pk_bf16_f32 v{T+2}, 0, v{T+2}")
        a(f"v_lshlrev_b32 v{T}, 16, v{T+3}")
        a(f"v_and_b32 v{T+1}, 0xffff0000, v{T+3}")
        a(f"v_add_f32 v{T}, v{T}, v{T+1}")
        a(f"v_add_f32 v{T}, v{T}, v{T+2}")
    else:
        a(f"v_mul_f32 v{T}, v{T}, v{T}")
        a(f"v_fmac_f32 v{T}, v{T+1}, v{T+1}")
        a(f"v_fmac_f32 v{T}, v{T+2}, v{T+2}")
    a(f"v_cvt_pk_bf16_f32 v{XE+2}, v{T}, v{T}")
    a("s_waitcnt lgkmcnt(0)")
    a(f"v_permlane32_swap_b32 v{XE}, v{XE+4}")
    a(f"v_permlane32_swap_b32 v{XE+1}, v{XE+5}")


def emit_masks(a):
    a(f"s_bfm_b64 s[{sT2}:{sT2+1}], s{sREM}, 0")
    a(f"s_cmp_ge_u32 s{sREM}, 64")
    a(f"s_cselect_b32 s{sLO}, -1, s{sT2}")
    a(f"s_cselect_b32 s{sHI+1}, -1, s{sT2+1}")


def lut_half(a, h):
    b = X0 + 8 * h
    for i in range(4):
        a(f"v_cvt_pk_bf16_f32 v{b+i}, v{b+2*i}, v{b+2*i+1}")
    for i in range(4):
        a(f"v_lshlrev_b16 v{b+4+i}, 1, v{b+i}")
        a(f"v_lshlrev_b16_sdwa v{LA+i}, 1, v{b+i} dst_sel:DWORD dst_unused:UNUSED_PAD src0_sel:DWORD src1_sel:WORD_1")
        if not OPT["abl_lut"]:
            a(f"ds_read_u16 v{b+4+i}, v{b+4+i} offset:{L_LUT}")
            a(f"ds_read_u16_d16_hi v{LA+i}, v{LA+i} offset:{L_LUT}")
    for i in range(4):
        a(f"v_pk_max_i16 v{b+i}, v{b+i}, 0")


def lut_merge(a, h):
    b = X0 + 8 * h
    for i in range(4):
        a(f"v_or_b32 v{b+4+i}, v{b+4+i}, v{LA+i}")


def valu_half(a, raw, h):
    if OPT["abl_trans"]:
        return
    for qq in range(2):
        xs = [raw + 8 * h + 4 * qq + i for i in range(4)]
        ts = [T + i for i in range(4)]
        for x, t in zip(xs, ts):
            a(f"v_exp_f32 v{t}, v{x}")
        if OPT["pk"]:
            for t in ts[::2]:
                a(f"v_pk_add_f32 {vr(t, 2)}, {vr(t, 2)}, 1.0 op_sel_hi:[1,0]")
        else:
            P(a, 0)
            for t in ts:
                a(f"v_add_f32 v{t}, 1.0, v{t}")
            P(a, 1)
        for t in ts:
            a(f"v_rcp_f32 v{t}, v{t}")
        if OPT["pk"]:
            for x, t in zip(xs[::2], ts[::2]):
                a(f"v_pk_mul_f32 {vr(t, 2)}, {vr(t, 2)}, {vr(x, 2)}")
        else:
            P(a, 0)
            for x, t in zip(xs, ts):
                a(f"v_mul_f32 v{t}, v{x}, v{t}")
            P(a, 1)
        for i in range(2):
            a(f"v_cvt_pk_bf16_f32 v{raw+8*h+2*qq+i}, v{ts[2*i]}, v{ts[2*i+1]}")


def seg3(a, raw, h):
    for acc, op in ((ACC0, X0 + 8 * h), (ACC1, raw + 8 * h), (ACC0, X0 + 8 * h + 4)):
        a(f"v_mfma_f32_32x32x16_bf16 {vr(acc, 16)}, {vr(op, 4)}, {vr(OH+4*h, 4)}, {vr(acc, 16)}")


def emit_tile(a, par):
    L = f"K2_T{par}"
    cur, nxt = (RAWA, RAWB) if par == 0 else (RAWB, RAWA)
    m = sLO if par == 0 else sHI
    zz = WE0 if par == 0 else WE0 + 4
    a(f"s_cmp_le_u32 s{sREM}, 32")
    a(f"s_cbranch_scc1 {L}_NG1")
    G_reads(a, nxt, 128 if par == 0 else 256)
    a.label(f"{L}_NG1")
    a(f"s_mov_b64 exec, s[{m}:{m+1}]")
    a(f"ds_write_b64 v{vOHA}, {vr(VV, 2)}")
    a("s_mov_b64 exec, -1")
    for q in range(4):
        a(f"ds_read_b64_tr_b16 {vr(OH+2*q, 2)}, v{vTRA} offset:{512*q}")
    a(f"s_mov_b64 exec, s[{m}:{m+1}]")
    a(f"ds_write_b64 v{vOHA}, {vr(zz, 2)}")
    a("s_mov_b64 exec, -1")
    if par == 0:
        PA_reads(a)
    a("s_waitcnt vmcnt(0)")
    P(a, 0)
    for q in range(16):
        a(f"v_lshlrev_b32 v{X0+q}, 16, v{cur+q}")
    P(a, 1)
    xe = XE if par == 0 else XE + 2
    wo = 2 if par == 0 else 0
    a(f"v_mfma_f32_32x32x16_bf16 {vr(X0, 16)}, {vr(xe, 4)}, {vr(WE0+wo, 4)}, {vr(X0, 16)}")
    a(f"v_mfma_f32_32x32x16_bf16 {vr(cur, 16)}, {vr(xe, 4)}, {vr(WE1+wo, 4)}, {vr(cur, 16)}")
    a(f"s_cmp_le_u32 s{sREM}, 32")
    a(f"s_cbranch_scc1 {L}_NG2")
    G_issue(a, nxt, 8 if par == 0 else 6)
    if par == 0:
        a(f"s_cmp_le_u32 s{sREM}, 64")
        a(f"s_cbranch_scc1 {L}_GO")
        a("s_waitcnt lgkmcnt(0)")
        PA_issue(a)
    a(f"s_branch {L}_GO")
    a.label(f"{L}_NG2")
    a("s_nop 9")
    a.label(f"{L}_GO")
    lut_half(a, 0)
    valu_half(a, cur, 0)
    a("s_waitcnt lgkmcnt(0)")
    lut_merge(a, 0)
    a(f"s_cmp_le_u32 s{sREM}, 16")
    a(f"s_cbranch_scc1 {L}_HALF")
    lut_half(a, 1)
    seg3(a, cur, 0)
    valu_half(a, cur, 1)
    a("s_waitcnt lgkmcnt(0)")
    lut_merge(a, 1)
    a(f"s_cmp_le_u32 s{sREM}, 32")
    seg3(a, cur, 1)
    a("s_cbranch_scc1 K2_LOOP_DONE")
    a(f"s_sub_u32 s{sREM}, s{sREM}, 32")
    if par == 1:
        a(f"v_add_u32 v{vGA}, 256, v{vGA}")
        emit_PB(a)
        emit_masks(a)
        a("s_branch K2_T0")
    else:
        a("s_branch K2_T1")
    a.label(f"{L}_HALF")
    seg3(a, cur, 0)
    a("s_branch K2_LOOP_DONE")


def lane_id(a, v):
    a(f"v_mbcnt_lo_u32_b32 v{v}, -1, 0")
    a(f"v_mbcnt_hi_u32_b32 v{v}, -1, v{v}")


def kernel2():
    a = Asm()
    vL = 60
    a("s_cmp_ge_u32 s2, 256")
    a("s_cbranch_scc1 K2_END")
    a("s_load_dwordx2 s[16:17], s[0:1], 80")
    a("s_load_dwordx2 s[4:5], s[0:1], 0")
    a("s_load_dwordx2 s[14:15], s[0:1], 64")
    stamp(a, 86, 0)
    if OPT["diag"] == 3:
        for i in range(1, 7):
            a(f"s_mov_b32 s{86+i}, 0")
    a("v_lshrrev_b32 v1, 6, v0")
    a(f"v_and_b32 v{vL}, 63, v0")
    a(f"v_readfirstlane_b32 s{sW}, v1")
    a(f"s_and_b32 s{sB}, s2, 7")
    a(f"s_lshl_b32 s{sB}, s{sB}, 5")
    a("s_lshr_b32 s3, s2, 3")
    a(f"s_add_u32 s{sB}, s{sB}, s3")

    def offT_addr(v):
        a(f"s_lshl_b32 s{sT0}, s{sB}, 4")
        a(f"s_add_u32 s{sT0}, s{sT0}, s{sW}")
        a(f"s_lshl_b32 s{sT0}, s{sT0}, 6")
        a(f"s_add_u32 s{sT0}, s{sT0}, {WS_OFF}")
        a(f"v_and_b32 v{v}, 48, v{vL}")
        a(f"v_add_u32 v{v}, s{sT0}, v{v}")
    offT_addr(61)
    a(f"v_lshlrev_b32 v62, 4, v{vL}")
    a(f"s_mul_i32 s{sNODE}, s{sB}, {BN}")
    a(f"s_add_u32 s{sNODE}, s{sNODE}, s{sW}")
    a(f"v_add_u32 v63, {WS_IMG + I_LANE}, v62")
    a("s_waitcnt lgkmcnt(0)")
    a("global_load_dwordx4 v[56:59], v61, s[16:17]")
    a(f"v_lshrrev_b32 v32, 3, v{vL}")
    a(f"v_xor_b32 v33, v32, v{vL}")
    a("v_and_b32 v33, 7, v33")
    a(f"s_lshl_b32 s{sT0}, s{sNODE}, 7")
    a(f"v_lshl_add_u32 v32, v32, 11, s{sT0}")
    a(f"v_min_u32 v32, {(N - 1) * 128}, v32")
    a("v_lshl_add_u32 v32, v33, 4, v32")
    a(f"s_lshl_b32 s{sT1}, s{sW}, 10")
    a(f"s_add_u32 m0, s{sT1}, {L_HIMG}")
    a(f"s_and_b32 s{sT0}, s{sW}, 3")
    a("global_load_lds_dwordx4 v32, s[4:5]")
    a(f"s_lshl_b32 s{sT0}, s{sT0}, 12")
    a(f"s_add_u32 s{sT0}, s{sT0}, {WS_IMG + I_W}")
    a(f"v_add_u32 v33, s{sT0}, v62")
    for s in range(4):
        a(f"global_load_dwordx4 {vr(64+4*s, 4)}, v33, s[16:17] offset:{1024*s}")
    a("global_load_dwordx4 v[0:3], v63, s[16:17]")
    for q in range(3):
        a(f"global_load_dwordx4 {vr(WE0+4*q, 4)}, v63, s[16:17] offset:{1024*(q+1)}")
    a(f"s_cmp_ge_u32 s{sW}, 12")
    a("s_cbranch_scc1 K2_TABDMA")
    a(f"s_cmp_ge_u32 s{sW}, 9")
    a("s_cbranch_scc1 K2_DMA_DONE")
    a(f"s_add_u32 m0, s{sT1}, {L_EARLY}")
    a(f"s_add_u32 s{sT0}, s{sT1}, {WS_IMG}")
    a(f"v_add_u32 v33, s{sT0}, v62")
    a("global_load_lds_dwordx4 v33, s[16:17]")
    a("s_branch K2_DMA_DONE")
    a.label("K2_TABDMA")
    a(f"s_add_u32 m0, s{sT1}, {L_TAB - 12*1024}")
    a(f"s_lshl_b32 s{sT0}, s{sW}, 5")
    a(f"s_sub_u32 s{sT0}, s{sT0}, 384")
    a(f"v_lshrrev_b32 v33, 1, v{vL}")
    a(f"v_add_u32 v33, s{sT0}, v33")
    a("v_and_b32 v34, 0x70, v33")
    a(f"v_add_u32 v34, {WS_IMG + I_OHT}, v34")
    a(f"s_mul_i32 s{sT0}, s{sB}, {BN*16}")
    a(f"s_add_u32 s{sT0}, s{sT0}, {WS_POS}")
    a(f"v_lshl_add_u32 v33, v33, 4, s{sT0}")
    a(f"s_mov_b32 s{sT2}, 0xaaaaaaaa")
    a(f"s_mov_b32 s{sT3}, 0xaaaaaaaa")
    a(f"v_cndmask_b32 v33, v34, v33, s[{sT2}:{sT3}]")
    a("global_load_lds_dwordx4 v33, s[16:17]")
    a.label("K2_DMA_DONE")
    a(f"s_mov_b32 s{SRD_B}, s16")
    a(f"s_and_b32 s{SRD_B+1}, s17, 0xffff")
    a(f"s_or_b32 s{SRD_B+1}, s{SRD_B+1}, 0x80000000")
    a(f"s_mov_b32 s{SRD_B+2}, 0x100000")
    a(f"s_mov_b32 s{SRD_B+3}, 0xc00000")
    a(f"s_add_u32 s{SRD_POS}, s16, {WS_POS}")
    a(f"s_addc_u32 s{SRD_POS+1}, s17, 0")
    a(f"s_and_b32 s{SRD_POS+1}, s{SRD_POS+1}, 0xffff")
    a(f"s_or_b32 s{SRD_POS+1}, s{SRD_POS+1}, 0x40000")
    a(f"s_mov_b32 s{SRD_POS+2}, {N*16}")
    a(f"s_mov_b32 s{SRD_POS+3}, 0x20000")
    a(f"s_mov_b32 s{sSEL}, 0x03020302")
    a(f"s_mov_b32 s{sLO+1}, 0")
    a(f"s_mov_b32 s{sHI}, 0")
    a(f"s_mov_b32 s{sJ}, 0")
    a(f"s_mov_b32 s{sFL}, 0")
    a(f"s_min_u32 s{sBASE}, s{sW}, 2")
    a(f"s_lshl_b32 s{sBASE}, s{sBASE}, 8")
    a(f"s_add_u32 s{sBASE}, s{sBASE}, s{sT1}")

    def payload_addr():
        a(f"v_and_b32 v52, 15, v{vL}")
        a("v_lshlrev_b32 v52, 1, v52")
        a(f"v_lshrrev_b32 v54, 4, v{vL}")
        a(f"s_mul_i32 s{sT2}, s{sW}, {16*CHB}")
        a(f"s_add_u32 s{sT2}, s{sT2}, {WS_PAY}")
        a(f"v_mov_b32 v55, s{sT2}")
        a(f"s_mov_b32 s{sT2}, {4*CHB}")
        a(f"v_mad_u32_u24 v54, v54, s{sT2}, v55")

    def payload_issue(first):
        if not first:
            a(f"s_lshl_b32 s{sT1}, s{sJ}, 5")
            a(f"v_add_u32 v52, s{sT1}, v52")
            a(f"s_and_b32 s{sT1}, s{sFL}, 1")
        a("v_add_u32 v53, 1, v52")
        for i in range(4):
            c = 48 + i
            a(f"v_lshrrev_b32 v{c}, 16, v{56+i}")
            a(f"v_and_b32 v{56+i}, 0xffff, v{56+i}")
            if not first:
                a(f"s_cmp_lg_u32 s{sT1}, 0")
                a(f"s_cbranch_scc1 K2_KEEPM{i}")
            a(f"v_cmp_lt_u32 s[{sM+4*i}:{sM+4*i+1}], v52, v{c}")
            a(f"v_cmp_lt_u32 s[{sM+4*i+2}:{sM+4*i+3}], v53, v{c}")
            if not first:
                a.label(f"K2_KEEPM{i}")
            a(f"v_add_u32 v{56+i}, v{56+i}, v52")
            a(f"v_lshl_add_u32 v{56+i}, v{56+i}, 3, v54")
            if first:
                a(f"s_mov_b64 exec, s[{sM+4*i}:{sM+4*i+1}]")
            else:
                a(f"s_or_b64 exec, s[{sM+4*i}:{sM+4*i+1}], s[{sM+4*i+2}:{sM+4*i+3}]")
            a(f"global_load_dwordx4 {vr(80+4*i, 4)}, v{56+i}, s[16:17]")
            a("s_mov_b64 exec, -1")
            if i < 3:
                a(f"v_add_u32 v54, {CHB}, v54")
        a("v_max3_u32 v48, v48, v49, v50")
        a("v_max_u32 v48, v48, v51")
        if first:
            a(f"v_cmp_lt_u32 s[{sLONG}:{sLONG+1}], 32, v48")
        else:
            a(f"s_lshl_b32 s{sT1}, s{sJ}, 5")
            a(f"s_add_u32 s{sT1}, s{sT1}, 32")
            a(f"v_cmp_lt_u32 s[{sLONG}:{sLONG+1}], s{sT1}, v48")

    payload_addr()
    a("s_waitcnt vmcnt(9)")
    stamp(a, 86, 1)
    payload_issue(True)
    a(f"s_lshl_b32 s{sT0}, s{sW}, 12")
    a(f"s_add_u32 m0, s{sT0}, {L_LUT}")
    a(f"s_add_u32 s{sT0}, s{sT0}, {WS_IMG + I_LUT}")
    a(f"v_add_u32 v33, s{sT0}, v62")
    for i in range(4):
        a(f"global_load_lds_dwordx4 v33, s[16:17] offset:{1024*i}")
    a(f"s_lshl_b32 s{sT0}, s{sW}, 11")
    a(f"s_lshr_b32 s{sT1}, s{sW}, 2")
    a(f"s_lshl_b32 s{sT2}, s{sT1}, 12")
    a(f"s_lshl_b32 s{sT1}, s{sT1}, 13")
    a(f"s_and_b32 s{sT3}, s{sW}, 3")
    a(f"s_lshl_b32 s3, s{sT3}, 9")
    a(f"s_add_u32 s{sT1}, s{sT1}, s3")
    a(f"s_add_u32 s{sT1}, s{sT1}, {L_OH}")
    a(f"v_lshl_add_u32 v61, v{vL}, 3, s{sT1}")
    a(f"s_add_u32 s{sT1}, s{sT0}, {L_OH}")
    a(f"v_lshl_add_u32 v63, v{vL}, 3, s{sT1}")
    a("s_waitcnt vmcnt(8)")
    a(f"v_add_u32 v{vLB}, s{sT0}, v{vLB}")
    a(f"v_add_u32 v{vTRA}, s{sT0}, v{vTRA}")
    a(f"v_add_u32 v{vGA}, s{sBASE}, v{vGA}")
    a(f"v_add_u32 v3, s{sT2}, v3")
    for s in range(1, 4):
        a(f"v_xor_b32 v{3+s}, {32*s}, v3")
    a("s_barrier")
    stamp(a, 86, 2)
    for s in range(4):
        a(f"ds_read_b128 {vr(32+4*s, 4)}, v{3+s}")
    for s in range(4):
        a(f"s_waitcnt lgkmcnt({3-s})")
        c = "0" if s == 0 else vr(96, 16)
        a(f"v_mfma_f32_32x32x16_bf16 {vr(96, 16)}, {vr(32+4*s, 4)}, {vr(64+4*s, 4)}, {c}")
    for i in range(16):
        a(f"v_mov_b32 v{112+i}, 0")
    a(f"s_cmp_lg_u32 s{sT3}, 1")
    a("s_cbranch_scc1 K2_NOSC")
    for i in range(16):
        a(f"v_mul_f32 v{96+i}, {NLOG2E}, v{96+i}")
    a.label("K2_NOSC")
    for i in range(8):
        a(f"v_cvt_pk_bf16_f32 v{32+i}, v{96+2*i}, v{97+2*i}")
    for g in range(4):
        a(f"ds_write_b64 v61, {vr(32+2*g, 2)} offset:{2048*g}")
    for i in range(16):
        a(f"v_mov_b32 v{96+i}, 0")
    a("v_mov_b32 v48, 4")
    a("s_waitcnt vmcnt(4)")
    stamp(a, 86, 3)
    for u in range(8):
        a(f"s_mov_b64 exec, s[{sM+2*u}:{sM+2*u+1}]")
        a(f"v_lshrrev_b32 v{64+u}, 3, v{81+2*u}")
        a(f"v_and_b32 v{64+u}, 0x3c, v{64+u}")
        a(f"ds_add_rtn_u32 v{64+u}, v{64+u}, v48 offset:{L_CNT}")
    for u in range(8):
        a(f"s_mov_b64 exec, s[{sM+2*u}:{sM+2*u+1}]")
        a(f"s_waitcnt lgkmcnt({7 + u})")
        a(f"v_min_u32 v{64+u}, {L_INF - 4}, v{64+u}")
        a(f"ds_write_b32 v{64+u}, v{80+2*u} offset:{L_SRC}")
        a(f"ds_write_b32 v{64+u}, v{81+2*u} offset:{L_INF}")
    a(f"s_mov_b64 exec, s[{sLONG}:{sLONG+1}]")
    a("s_cbranch_execz K2_NOF0")
    a("v_mov_b32 v49, 0")
    a(f"ds_write_b32 v49, v48 offset:{L_CNT + 68}")
    a.label("K2_NOF0")
    a("s_mov_b64 exec, -1")
    a(f"v_lshlrev_b32 v50, 2, v{vL}")
    a("v_and_b32 v51, 63, v50")
    for i in range(4):
        a(f"v_mov_b32 v{40+i}, 0")
    a(f"s_lshl_b32 s{sT0}, s{sW}, 11")
    a(f"s_add_u32 s{sT0}, s{sT0}, {L_OH}")
    a(f"v_add_u32 v62, s{sT0}, v62")
    a("s_waitcnt vmcnt(0) lgkmcnt(0)")
    a("s_barrier")
    stamp(a, 86, 4)
    a(f"ds_read_b32 v33, v50 offset:{L_CNT}")
    a(f"ds_read_b32 v34, v51 offset:{L_CNT + 192}")
    a(f"ds_read_b64 {vr(WE0+2, 2)}, v63")
    a(f"ds_read_b64 {vr(WE1+2, 2)}, v63 offset:512")
    a(f"ds_read_b64 {vr(CC, 2)}, v63 offset:1024")
    a(f"ds_read_b64 {vr(CC+2, 2)}, v63 offset:1536")
    a("ds_write_b128 v62, v[40:43]")
    a("ds_write_b128 v62, v[40:43] offset:1024")
    a("s_waitcnt lgkmcnt(6)")
    a("v_cmp_gt_u32 vcc, v33, v34")
    a(f"v_readlane_b32 s{sREM}, v33, s{sW}")
    a(f"v_readlane_b32 s{sT0}, v33, 17")
    a("s_and_b32 s3, vcc_lo, 0xffff")
    a(f"s_or_b32 s3, s3, s{sT0}")
    a("s_cbranch_scc1 K2_SLOW")
    a.label("K2_START")
    if OPT["startprio"]:
        a(f"s_setprio {OPT['startprio']}")
    a(f"s_sub_u32 s{sREM}, s{sREM}, s{sBASE}")
    a(f"s_lshr_b32 s{sREM}, s{sREM}, 2")
    a("s_cbranch_scc0 K2_LOOP_DONE")
    a(f"s_and_b32 s{sT0}, s{sREM}, 63")
    a("s_cbranch_scc0 K2_NOFILL")
    a(f"s_bfm_b64 s[{sT2}:{sT3}], s{sT0}, 0")
    a(f"s_andn2_b32 s{sT0}, s{sREM}, 63")
    a(f"s_lshl2_add_u32 m0, s{sT0}, s{sBASE}")
    a(f"s_not_b64 exec, s[{sT2}:{sT3}]")
    a(f"ds_write_addtid_b32 v40 offset:{L_SRC}")
    a(f"ds_write_addtid_b32 v40 offset:{L_INF}")
    a("s_mov_b64 exec, -1")
    a.label("K2_NOFILL")
    a(f"s_mov_b32 m0, s{sBASE}")
    G_reads(a, RAWA, 0)
    PA_reads(a)
    G_issue(a, RAWA, 2)
    a("s_waitcnt lgkmcnt(0)")
    PA_issue(a)
    emit_masks(a)
    a("s_waitcnt vmcnt(0)")
    emit_PB(a)
    stamp(a, 86, 5)
    if OPT["diag"] == 2:
        a("s_getreg_b32 s87, hwreg(HW_REG_HW_ID)")
        a("s_memtime s[94:95]")
        a("s_waitcnt lgkmcnt(0)")
        a("s_mov_b32 s88, s94")
    a.label("K2_T0")
    emit_tile(a, 0)
    a.label("K2_T1")
    emit_tile(a, 1)
    a.label("K2_SLOW")
    a(f"s_mov_b32 s{sJ}, -1")
    a(f"s_mov_b32 s{sFL}, 2")
    a.label("K2_ROUND")
    P(a, 0)
    a("s_waitcnt lgkmcnt(0)")
    a("s_barrier")
    lane_id(a, vL)
    a(f"v_lshlrev_b32 v50, 2, v{vL}")
    a("v_and_b32 v51, 63, v50")
    a(f"s_cmp_lg_u32 s{sW}, 0")
    a("s_cbranch_scc1 K2_NOCNT2")
    a(f"ds_read_b32 v33, v51 offset:{L_CNT + 128}")
    a("v_mov_b32 v34, 0")
    a("s_waitcnt lgkmcnt(0)")
    a(f"ds_write_b32 v51, v33 offset:{L_CNT}")
    a(f"ds_write_b32 v51, v34 offset:{L_CNT + 64}")
    a.label("K2_NOCNT2")
    offT_addr(61)
    a("global_load_dwordx4 v[56:59], v61, s[16:17]")
    a(f"s_and_b32 s{sT1}, s{sFL}, 1")
    a(f"s_xor_b32 s{sT1}, s{sT1}, 1")
    a(f"s_add_u32 s{sJ}, s{sJ}, s{sT1}")
    payload_addr()
    a("s_waitcnt vmcnt(0) lgkmcnt(0)")
    a("s_barrier")
    payload_issue(False)
    a(f"v_lshlrev_b32 v50, 2, v{vL}")
    a("v_and_b32 v51, 63, v50")
    a("v_mov_b32 v48, 4")
    a("v_mov_b32 v49, 0")
    a(f"s_mov_b64 s[{sT2}:{sT3}], 0")
    a("s_waitcnt vmcnt(0)")
    for u in range(8):
        a(f"s_mov_b64 exec, s[{sM+2*u}:{sM+2*u+1}]")
        a(f"v_lshrrev_b32 v64, 3, v{81+2*u}")
        a("v_and_b32 v64, 0x3c, v64")
        a(f"ds_read_b32 v65, v64 offset:{L_CNT + 192}")
        a(f"ds_add_rtn_u32 v64, v64, v48 offset:{L_CNT}")
        a("s_waitcnt lgkmcnt(0)")
        a("v_cmp_lt_u32 vcc, v64, v65")
        a(f"s_andn2_b64 s[{sM+2*u}:{sM+2*u+1}], exec, vcc")
        a("s_mov_b64 exec, vcc")
        a(f"ds_write_b32 v64, v{80+2*u} offset:{L_SRC}")
        a(f"ds_write_b32 v64, v{81+2*u} offset:{L_INF}")
        a(f"s_or_b64 s[{sT2}:{sT3}], s[{sT2}:{sT3}], s[{sM+2*u}:{sM+2*u+1}]")
    a(f"s_mov_b64 exec, s[{sT2}:{sT3}]")
    a("s_cbranch_execz K2_NOF1")
    a(f"ds_write_b32 v49, v48 offset:{L_CNT + 64}")
    a.label("K2_NOF1")
    a(f"s_mov_b64 exec, s[{sLONG}:{sLONG+1}]")
    a("s_cbranch_execz K2_NOF2")
    a(f"ds_write_b32 v49, v48 offset:{L_CNT + 68}")
    a.label("K2_NOF2")
    a("s_mov_b64 exec, -1")
    a("s_waitcnt lgkmcnt(0)")
    a("s_barrier")
    a(f"ds_read_b32 v33, v50 offset:{L_CNT}")
    a(f"ds_read_b32 v34, v51 offset:{L_CNT + 192}")
    a(f"v_lshrrev_b32 v{vGA}, 5, v{vL}")
    a(f"v_lshl_add_u32 v{vGA}, v{vGA}, 4, s{sBASE}")
    a("v_mov_b32 v40, 0")
    a("s_waitcnt lgkmcnt(0)")
    a(f"v_readlane_b32 s{sT0}, v33, 16")
    a(f"v_readlane_b32 s{sT1}, v33, 17")
    a("v_min_u32 v33, v33, v34")
    a(f"s_cmp_lg_u32 s{sT0}, 0")
    a(f"s_cselect_b32 s{sFL}, 1, 0")
    a(f"s_cmp_lg_u32 s{sT1}, 0")
    a(f"s_cselect_b32 s{sT1}, 2, 0")
    a(f"s_or_b32 s{sFL}, s{sFL}, s{sT1}")
    a(f"v_readlane_b32 s{sREM}, v33, s{sW}")
    a("s_nop 1")
    a("s_branch K2_START")
    a.label("K2_LOOP_DONE")
    a(f"s_cmp_lg_u32 s{sFL}, 0")
    a("s_cbranch_scc1 K2_ROUND")
    stamp(a, 86, 6)
    if OPT["diag"] == 2:
        a("s_memtime s[94:95]")
        a("s_waitcnt lgkmcnt(0)")
        a("s_mov_b32 s89, s94")
    P(a, 0)
    vL, vJ, vHF = 4, 5, 6
    lane_id(a, vL)
    a(f"v_lshlrev_b32 v7, 4, v{vL}")
    BT = 64
    for ks in range(4):
        for tc in range(2):
            a(f"ds_read_b128 {vr(BT+8*ks+4*tc, 4)}, v7 offset:{L_WH2 + (2*ks + tc)*1024}")
    a(f"v_and_b32 v{vJ}, 31, v{vL}")
    a(f"v_lshrrev_b32 v{vHF}, 5, v{vL}")
    a(f"v_lshlrev_b32 v8, 4, v{vHF}")
    WX = 12
    for ks in range(4):
        a(f"ds_read_b128 {vr(WX+4*ks, 4)}, v8 offset:{L_WX + 32*ks}")
    a(f"v_lshrrev_b32 v9, 2, v{vJ}")
    a(f"v_lshl_add_u32 v9, v9, 4, s{sW}")
    a("v_lshlrev_b32 v10, 5, v9")
    a(f"v_lshl_add_u32 v11, v{vHF}, 3, v10")
    a(f"v_and_b32 v3, 3, v{vL}")
    a("v_lshl_add_u32 v10, v3, 2, v10")
    a(f"ds_read_b64 v[0:1], v11 offset:{L_TAB}")
    a(f"ds_read_b32 v2, v10 offset:{L_TAB + 16}")
    for q in range(16):
        a(f"v_mul_f32 v{ACC1+q}, {NLN2}, v{ACC1+q}")
    SP = 32
    for t in range(2):
        for i in range(8):
            b = (ACC0, ACC1)[t]
            a(f"v_cvt_pk_bf16_f32 v{SP+8*t+i}, v{b+2*i}, v{b+2*i+1}")
    D0, D1, D3 = 96, 112, 48
    a("s_waitcnt lgkmcnt(0)")
    a(f"v_mfma_f32_32x32x8bf16_1k {vr(D0, 16)}, v[0:1], {vr(CC, 2)}, 0")
    a(f"v_mfma_f32_32x32x8bf16_1k {vr(D1, 16)}, v[0:1], {vr(CC+2, 2)}, 0")
    a(f"s_lshl_b32 s{sT0}, s{sW}, 10")
    a(f"s_add_u32 s{sT0}, s{sT0}, {L_HIMG}")
    a(f"v_lshlrev_b32 v10, 2, v{vJ}")
    a("v_xor_b32 v11, v10, v8")
    a(f"v_lshl_add_u32 v11, v{vHF}, 7, v11")
    a(f"v_add_u32 v11, s{sT0}, v11")
    for ks in range(4):
        sp = vr(SP + 4 * ks, 4)
        a(f"v_mfma_f32_32x32x16_bf16 {vr(D0, 16)}, {sp}, {vr(BT+8*ks, 4)}, {vr(D0, 16)}")
        a(f"v_mfma_f32_32x32x16_bf16 {vr(D1, 16)}, {sp}, {vr(BT+8*ks+4, 4)}, {vr(D1, 16)}")
        g = ks
        if g:
            a(f"v_xor_b32 v7, {32*g}, v11")
        a(f"ds_read_b32 v{28+g}, v{7 if g else 11} offset:{256*g}")
    for ks in range(4):
        c = "0" if ks == 0 else vr(D3, 16)
        a(f"v_mfma_f32_32x32x16_bf16 {vr(D3, 16)}, {vr(WX+4*ks, 4)}, {vr(SP+4*ks, 4)}, {c}")
    a(f"s_mov_b32 s{SRD_O}, s14")
    a(f"s_mov_b32 s{SRD_O+1}, s15")
    a(f"s_mov_b32 s{SRD_O+2}, {N*128}")
    a(f"s_mov_b32 s{SRD_O+3}, 0x20000")
    a(f"s_lshl_b32 s{sT0}, s{sNODE}, 7")
    a(f"v_lshl_add_u32 v10, v{vHF}, 11, v10")
    a(f"v_add_u32 v10, s{sT0}, v10")
    a(f"s_mov_b32 s{sT1}, {BN}")
    a(f"v_cmp_gt_u32 s[{sT2}:{sT3}], s{sT1}, v9")
    a(f"s_mul_i32 s{sT1}, s{sB}, {BN}")
    a(f"v_add_u32 v9, s{sT1}, v9")
    a(f"v_cmp_gt_u32 vcc, {N}, v9")
    a(f"s_and_b32 s{sT2}, s{sT2}, vcc_lo")
    a(f"s_and_b32 s{sT2}, s{sT2}, 0x77777777")
    a(f"s_mov_b32 s{sT3}, 0")
    a("v_mul_u32_u24 v9, 6, v9")
    a("v_lshl_add_u32 v9, v3, 1, v9")
    a(f"v_add_u32 v9, {N*128}, v9")
    xs = [(D0, D1)[t] + 4 * g + 3 for g in range(4) for t in range(2)]
    ts = [64 + i for i in range(8)]
    hs = [72 + i for i in range(8)]
    for x, t in zip(xs, ts):
        a(f"v_mul_f32 v{t}, {NLOG2E}, v{x}")
    for t in ts:
        a(f"v_exp_f32 v{t}, v{t}")
    a("s_waitcnt lgkmcnt(0)")
    for g in range(4):
        a(f"v_lshlrev_b32 v{hs[2*g]}, 16, v{28+g}")
        a(f"v_and_b32 v{hs[2*g+1]}, 0xffff0000, v{28+g}")
    for t in ts:
        a(f"v_add_f32 v{t}, 1.0, v{t}")
    for t in ts:
        a(f"v_rcp_f32 v{t}, v{t}")
    a(f"v_add_f32 v2, v2, v{D3}")
    for x, t, h in zip(xs, ts, hs):
        a(f"v_fmac_f32 v{h}, v{x}, v{t}")
    a("v_cvt_pk_bf16_f32 v2, v2, v2")
    for g in range(4):
        a(f"v_cvt_pk_bf16_f32 v{28+g}, v{hs[2*g]}, v{hs[2*g+1]}")
    a("s_movk_i32 s24, 0x1000")
    a("s_movk_i32 s25, 0x2000")
    a("s_movk_i32 s26, 0x3000")
    for g in range(3):
        a(f"buffer_store_dword v{28+g}, v10, s[{SRD_O}:{SRD_O+3}], {'0' if g == 0 else 's' + str(23+g)} offen")
    a(f"s_mov_b64 exec, s[{sT2}:{sT3}]")
    a("s_cbranch_execz K2_NOPOS")
    a("global_store_short v9, v2, s[14:15]")
    a.label("K2_NOPOS")
    a(f"s_cmp_ge_u32 s{sW}, {BN - 96}")
    a("s_cbranch_scc1 K2_FIN")
    a("s_mov_b64 exec, 0xffffffff")
    a(f"buffer_store_dword v31, v10, s[{SRD_O}:{SRD_O+3}], s26 offen")
    a.label("K2_FIN")
    stamps_out(a, 86, 1, sW)
    a.label("K2_END")
    a("s_endpgm")
    return a


HEADER = """; EGNN layer on gfx950: launch 1 bins the edges by destination bucket and builds per-node tables,
"""


def desc(name, vg, sg):
    return f""".p2align 6
.amdhsa_kernel {name}
  .amdhsa_next_free_vgpr {vg}
  .amdhsa_next_free_sgpr {sg}
  .amdhsa_accum_offset {vg}
  .amdhsa_group_segment_fixed_size 0
  .amdhsa_kernarg_size 88
  .amdhsa_user_sgpr_count 2
  .amdhsa_user_sgpr_kernarg_segment_ptr 1
  .amdhsa_system_sgpr_workgroup_id_x 1
  .amdhsa_float_denorm_mode_32 3
.end_amdhsa_kernel
"""


def build():
    s = HEADER
    s += f"; @launch kernel=bin_kernel grid=(512,1,1) block=({K1_THREADS},1,1) lds={K1_LDS + 4096}\n"
    s += f"; @launch kernel=edge_kernel grid=(256,1,1) block=(1024,1,1) lds={K2_LDS}\n"
    s += '.amdgcn_target "amdgcn-amd-amdhsa--gfx950"\n.text\n'
    ks = [("bin_kernel", kernel1(), 64, 74 if OPT["diag"] else 40), ("edge_kernel", kernel2(), 128, 96 if OPT["diag"] else 72)]
    for name, k, vg, sg in ks:
        s += f".globl {name}\n.p2align 8\n.type {name},@function\n{name}:\n" + k.render()
    s += '.section .rodata,"a"\n'
    for name, k, vg, sg in ks:
        s += desc(name, vg, sg)
    return s


if __name__ == "__main__":
    out = sys.argv[1] if len(sys.argv) > 1 else "standalone__cheap_equivariant_egnn__graph.s"
    for arg in sys.argv[2:]:
        k, v = arg.split("=")
        OPT[k] = int(v)
    open(out, "w").write(build())
    print("wrote", out, "K2_LDS", K2_LDS)
```

```python
import struct
import sys
from asmlib import Asm

N = 25000
E = 800000
BN = 98
CH = 3128
CHB = 25088
K1_THREADS = 832
WS_B = 0
WS_PAY = 4 << 20
WS_OFF = 12 << 20
WS_IMG = 13 << 20
WS_POS = 14 << 20
WS_DIAG = 20 << 20
I_CNT = 0
I_EARLY = 9216
I_WX = 256
I_WH2 = 512
I_LUT = I_EARLY
I_W = I_LUT + 65536
I_LANE = I_W + 16384
I_OHT = I_LANE + 4096

CAPS = [320, 320] + [256] * 14
BASES = [sum(CAPS[:g]) * 4 for g in range(17)]
L_SRC = 0
L_INF = BASES[16]
L_EARLY = 2 * L_INF
L_CNT = L_EARLY + I_CNT
L_WX = L_EARLY + I_WX
L_WH2 = L_EARLY + I_WH2
L_TAB = L_EARLY + I_EARLY
L_LUT = L_TAB + 4096
L_HIMG = L_LUT + 65536
L_OH = L_HIMG + 16384
K2_LDS = L_OH + 32768
assert L_LUT < 65536 and L_OH % 64 == 0 and L_HIMG % 128 == 0 and K2_LDS <= 163840, K2_LDS


def f2u(x):
    return struct.unpack("<I", struct.pack("<f", x))[0]


LOG2E = 1.4426950408889634
NLOG2E = hex(f2u(-LOG2E))
PLOG2E = hex(f2u(LOG2E))
NLN2 = hex(f2u(-0.6931471805599453))

OPT = dict(faithful_sq=1, prio=1, pk=1, diag=0, abl_lut=0, abl_g=0, abl_trans=0, startprio=0)


def stamp(a, base, i):
    if OPT["diag"]:
        a("s_waitcnt lgkmcnt(0)")
        a(f"s_memrealtime s[{base+8}:{base+9}]")
        a("s_waitcnt lgkmcnt(0)")
        a(f"s_mov_b32 s{base+i}, s{base+8}")


def stamps_out(a, base, kidx, swave):
    if OPT["diag"] == 3:
        a("s_waitcnt vmcnt(0)")
        stamp(a, base, 7)
        OPT["_n"] = OPT.get("_n", 0) + 1
        a("s_and_b32 s4, s2, 15")
        if not kidx:
            a(f"s_or_b32 s4, s4, s{swave}")
        a("s_cmp_lg_u32 s4, 0")
        a(f"s_cbranch_scc1 DBG_SKIP{OPT['_n']}")
        a(f"s_load_dwordx2 s[4:5], s[0:1], 72")
        a("s_waitcnt lgkmcnt(0)")
        a(f"s_add_u32 s4, s4, {32 if kidx else 512}")
        a("s_addc_u32 s5, s5, 0")
        a(f"s_not_b32 s{base}, s{base}")
        a("s_mov_b64 exec, 1")
        a("v_mov_b32 v0, 0")
        for i in range(8):
            a(f"v_mov_b32 v1, s{base+i}")
            a(f"global_atomic_umax v0, v1, s[4:5] offset:{4*i}")
        a.label(f"DBG_SKIP{OPT['_n']}")
    elif OPT["diag"]:
        a("s_waitcnt vmcnt(0)")
        stamp(a, base, 7)
        a("s_mov_b64 exec, 1")
        a(f"s_lshl_b32 s{base+8}, s2, 4")
        a(f"s_add_u32 s{base+8}, s{base+8}, s{swave}")
        a(f"s_lshl_b32 s{base+8}, s{base+8}, 5")
        a(f"s_add_u32 s{base+8}, s{base+8}, {WS_DIAG + kidx * (1 << 20)}")
        a(f"v_mov_b32 v0, s{base+8}")
        for i in range(8):
            a(f"v_mov_b32 v1, s{base+i}")
            a(f"global_store_dword v0, v1, s[16:17] offset:{4*i}")


def vr(b, n):
    return f"v[{b}:{b+n-1}]"


K1_HIST = 0
K1_PREF = 1024
K1_STAGE = 2048
K1_LDS = 32768
NTILE = (N + 31) // 32


def k1_bin(a):
    a("s_and_b32 s18, s2, 7")
    a("s_lshl_b32 s18, s18, 5")
    a("s_lshr_b32 s19, s2, 3")
    a("s_add_u32 s18, s18, s19")
    a(f"s_mul_i32 s19, s18, {CH}")
    a("v_lshl_add_u32 v3, v0, 2, s19")
    a(f"v_cmp_gt_u32 vcc, {CH // 4}, v0")
    a(f"s_mov_b32 s20, {E}")
    a("v_cmp_gt_u32 s[22:23], s20, v3")
    a("v_lshlrev_b32 v4, 2, v3")
    a("v_lshlrev_b32 v5, 1, v3")
    a("s_and_b64 s[22:23], s[22:23], vcc")
    a("s_mov_b64 exec, s[22:23]")
    a("s_waitcnt lgkmcnt(0)")
    a("global_load_dwordx4 v[8:11], v4, s[12:13]")
    a("global_load_dwordx4 v[12:15], v4, s[10:11]")
    a("global_load_dwordx2 v[16:17], v5, s[8:9]")
    a("s_mov_b64 exec, -1")
    a("v_lshlrev_b32 v6, 2, v0")
    a("v_mov_b32 v7, 0")
    a("s_cmp_ge_u32 s3, 4")
    a("s_cbranch_scc1 K1_NOZ")
    a(f"ds_write_b32 v6, v7 offset:{K1_HIST}")
    a.label("K1_NOZ")
    a("s_mov_b32 s24, 43826197")
    a(f"s_mov_b32 s25, {-BN}")
    a("v_mov_b32 v18, 1")
    a("v_lshlrev_b32 v6, 4, v0")
    a(f"s_mul_i32 s26, s18, {CHB}")
    a(f"s_add_u32 s26, s26, {WS_PAY}")
    a("v_add_u32 v7, s26, v6")
    a("s_waitcnt lgkmcnt(0)")
    a("s_barrier")
    stamp(a, 64, 1)
    a("s_mov_b64 exec, s[22:23]")
    a("s_waitcnt vmcnt(2)")
    stamp(a, 64, 2)
    for i in range(4):
        a(f"v_mul_hi_u32 v{20+i}, v{8+i}, s24")
    for i in range(4):
        a(f"v_mad_i32_i24 v{8+i}, v{20+i}, s25, v{8+i}")
        a(f"v_lshlrev_b32 v{20+i}, 2, v{20+i}")
        a(f"ds_add_rtn_u32 v{24+i}, v{20+i}, v18 offset:{K1_HIST}")
    a("s_waitcnt vmcnt(0)")
    for i in range(4):
        a(f"v_lshlrev_b32 v{28+2*i}, 2, v{12+i}")
        if i % 2 == 0:
            a(f"v_lshlrev_b32 v{29+2*i}, 16, v{16+i//2}")
        else:
            a(f"v_and_b32 v{29+2*i}, 0xffff0000, v{16+i//2}")
        a(f"v_lshl_or_b32 v{29+2*i}, v{8+i}, 5, v{29+2*i}")
    a("s_mov_b64 exec, -1")
    a("s_waitcnt lgkmcnt(0)")
    stamp(a, 64, 3)
    a("s_barrier")
    stamp(a, 64, 4)
    a("s_cmp_lg_u32 s3, 0")
    a("s_cbranch_scc1 K1_NOSCAN")
    a(f"ds_read_b128 v[40:43], v6 offset:{K1_HIST}")
    a("s_lshl_b32 s26, s18, 2")
    a(f"s_add_u32 s26, s26, {WS_OFF}")
    a("v_lshl_add_u32 v37, v0, 12, s26")
    a("s_waitcnt lgkmcnt(0)")
    a("v_add_u32 v45, v40, v41")
    a("v_add_u32 v46, v45, v42")
    a("v_add_u32 v47, v46, v43")
    a("v_mov_b32 v48, v47")
    for sh in (1, 2, 4, 8):
        a(f"v_add_u32_dpp v48, v48, v48 row_shr:{sh} row_mask:0xf bank_mask:0xf bound_ctrl:1")
    a("v_add_u32_dpp v48, v48, v48 row_bcast:15 row_mask:0xa bank_mask:0xf")
    a("v_add_u32_dpp v48, v48, v48 row_bcast:31 row_mask:0xc bank_mask:0xf")
    a("v_sub_u32 v52, v48, v47")
    a("v_add_u32 v53, v52, v40")
    a("v_add_u32 v54, v52, v45")
    a("v_add_u32 v55, v52, v46")
    a(f"ds_write_b128 v6, v[52:55] offset:{K1_PREF}")
    for i in range(4):
        a(f"v_lshl_or_b32 v{40+i}, v{40+i}, 16, v{52+i}")
        a(f"global_store_dword v37, v{40+i}, s[16:17] offset:{1024*i}")
    a("s_waitcnt lgkmcnt(0)")
    a.label("K1_NOSCAN")
    a("s_barrier")
    stamp(a, 64, 5)
    a("s_mov_b64 exec, s[22:23]")
    for i in range(4):
        a(f"ds_read_b32 v{20+i}, v{20+i} offset:{K1_PREF}")
    for i in range(4):
        a("s_waitcnt lgkmcnt(3)")
        a(f"v_add_lshl_u32 v{20+i}, v{20+i}, v{24+i}, 3")
        a(f"ds_write_b64 v{20+i}, v[{28+2*i}:{29+2*i}] offset:{K1_STAGE}")
    a("s_mov_b64 exec, -1")
    a(f"v_add_u32 v5, {K1_THREADS*16}, v7")
    a(f"v_cmp_gt_u32 vcc, {CH*8//16 - K1_THREADS}, v0")
    a("s_waitcnt lgkmcnt(0)")
    a("s_barrier")
    stamp(a, 64, 6)
    a(f"ds_read_b128 v[8:11], v6 offset:{K1_STAGE}")
    a(f"ds_read_b128 v[12:15], v6 offset:{K1_STAGE + K1_THREADS*16}")
    a("s_waitcnt lgkmcnt(1)")
    a("global_store_dwordx4 v7, v[8:11], s[16:17]")
    a("s_and_b64 exec, exec, vcc")
    a("s_cbranch_execz K1_FIN")
    a("s_waitcnt lgkmcnt(0)")
    a("global_store_dwordx4 v5, v[12:15], s[16:17]")
    a.label("K1_FIN")
    stamps_out(a, 64, 0, 3)
    a("s_endpgm")


def k1_btile(a):
    a("s_lshl_b32 s19, s18, 2")
    a("s_add_u32 s19, s19, s3")
    a(f"s_cmp_ge_u32 s19, {NTILE}")
    a("s_cbranch_scc1 K1_END")
    a("s_lshl_b32 s19, s19, 12")
    a("v_and_b32 v3, 31, v2")
    a("v_lshrrev_b32 v4, 5, v2")
    a("v_lshl_add_u32 v5, v3, 7, s19")
    a(f"v_min_u32 v5, {(N - 1) * 128}, v5")
    a("v_lshl_add_u32 v5, v4, 4, v5")
    a("v_lshrrev_b32 v6, 2, v2")
    a("v_lshlrev_b32 v6, 7, v6")
    a("v_and_b32 v7, 3, v2")
    a("v_lshl_add_u32 v6, v7, 4, v6")
    a("v_add_u32 v6, 8192, v6")
    a("s_lshl_b32 s20, s3, 13")
    a("s_waitcnt lgkmcnt(0)")
    for s in range(4):
        a(f"global_load_dwordx4 v[{16+4*s}:{19+4*s}], v5, s[4:5] offset:{32*s}")
    for i in range(8):
        t, kq = i >> 2, i & 3
        if i == 2:
            a("v_add_u32 v8, 4096, v6")
        go = t * 64 + (kq & 1) * 2048
        a(f"s_add_u32 m0, s20, {i*1024 - go + 4096}")
        a(f"global_load_lds_dwordx4 v{6 if kq < 2 else 8}, s[14:15] offset:{go}")
    a("v_bfe_u32 v14, v2, 2, 2")
    a("v_lshl_add_u32 v14, v4, 3, v14")
    a("v_lshlrev_b32 v14, 6, v14")
    a("v_bfe_u32 v15, v2, 4, 1")
    a("v_lshl_add_u32 v14, v15, 5, v14")
    a("v_lshl_add_u32 v14, v7, 3, v14")
    a("v_add_u32 v14, s20, v14")
    a("v_lshlrev_b32 v15, 9, v4")
    a("v_lshl_add_u32 v15, v3, 2, v15")
    a("v_add_u32 v15, s19, v15")
    a("s_mov_b32 s28, s16")
    a("s_mov_b32 s29, s17")
    a(f"s_mov_b32 s30, {N*128}")
    a("s_mov_b32 s31, 0x20000")
    a("s_mov_b32 s24, 0xffff0000")
    a("s_mov_b32 s25, 0x80000000")
    a("s_waitcnt vmcnt(0)")
    stamp(a, 64, 2)

    def rd(k):
        s_, t = k >> 1, k & 1
        r = 4 * (k % 3)
        for q in range(2):
            a(f"ds_read_b64_tr_b16 v[{r+2*q}:{r+2*q+1}], v14 offset:{4096 + t*4096 + s_*1024 + q*256}")
    for k in range(3):
        rd(k)
    for k in range(8):
        s_, t = k >> 1, k & 1
        a(f"s_waitcnt lgkmcnt({min(4, 2*(7-k))})")
        d = 32 + 16 * t
        r = 4 * (k % 3)
        c = "0" if s_ == 0 else f"v[{d}:{d+15}]"
        a(f"v_mfma_f32_32x32x16_bf16 v[{d}:{d+15}], v[{16+4*s_}:{19+4*s_}], v[{r}:{r+3}], {c}")
        if k + 3 < 8:
            rd(k + 3)
    stamp(a, 64, 3)
    for q0 in range(0, 16, 4):
        R = range(4)
        for i in R:
            a(f"v_cvt_pk_bf16_f32 v{i}, v{32+q0+i}, 0")
        for i in R:
            a(f"v_mul_f32 v{4+i}, {NLOG2E}, v{48+q0+i}")
        for i in R:
            a(f"v_sub_u32 v{8+i}, 0x8000, v{i}")
        for i in R:
            a(f"v_and_b32 v{16+i}, 0x7fffffff, v{4+i}")
        for i in R:
            a(f"v_add_u32 v{8+i}, v{8+i}, v{16+i}")
        for i in R:
            a(f"v_max_i32 v{8+i}, 0, v{8+i}")
        for i in R:
            a(f"v_and_or_b32 v{8+i}, v{8+i}, s24, v{i}")
        for i in R:
            a(f"v_and_or_b32 v{32+q0+i}, v{4+i}, s25, v{8+i}")
            a(f"buffer_store_dword v{32+q0+i}, v15, s[28:31], 0 offen offset:{(2*q0 + i)*128}")
    stamps_out(a, 64, 0, 3)
    a("s_endpgm")


def k1_lut(a):
    a("s_lshl_b32 s19, s18, 7")
    a("v_lshl_add_u32 v8, v2, 1, s19")
    a(f"s_mov_b32 s20, {WS_IMG + I_LUT}")
    a("v_lshl_add_u32 v9, v8, 1, s20")
    a("v_lshlrev_b32 v10, 16, v8")
    a("v_add_u32 v11, 0x10000, v10")
    a("s_mov_b32 s21, 0x7f800000")
    for r in (10, 11):
        a(f"v_mul_f32 v{r+2}, {PLOG2E}, v{r}")
    for r in (10, 11):
        a(f"v_exp_f32 v{r+2}, v{r+2}")
    for r in (10, 11):
        a(f"v_add_f32 v{r+2}, 1.0, v{r+2}")
    for r in (10, 11):
        a(f"v_rcp_f32 v{r+2}, v{r+2}")
    for r in (10, 11):
        a(f"v_mul_f32 v{r+2}, v{r}, v{r+2}")
        a(f"v_cmp_eq_u32 vcc, s21, v{r}")
        a(f"v_cndmask_b32 v{r+2}, v{r+2}, 0, vcc")
    a("v_cvt_pk_bf16_f32 v12, -v12, -v13")
    a("s_waitcnt lgkmcnt(0)")
    a("global_store_dword v9, v12, s[16:17]")
    a("s_endpgm")


def k1_pos(a):
    a("s_sub_u32 s19, s3, 5")
    a("s_lshl_b32 s19, s19, 6")
    a("v_add_u32 v8, s19, v2")
    a(f"v_cmp_gt_u32 vcc, {BN}, v8")
    a("v_lshrrev_b32 v15, 4, v8")
    a("v_lshlrev_b32 v15, 3, v15")
    a(f"s_mul_i32 s19, s18, {BN}")
    a("v_add_u32 v8, s19, v8")
    a("s_mov_b64 exec, vcc")
    a(f"v_cmp_gt_u32 vcc, {N}, v8")
    a("v_mul_u32_u24 v9, 6, v8")
    a(f"s_mov_b32 s20, {WS_POS}")
    a("v_lshl_add_u32 v8, v8, 4, s20")
    a("s_mov_b64 exec, vcc")
    a("s_cbranch_execz K1_END")
    a("s_waitcnt lgkmcnt(0)")
    for i in range(3):
        a(f"global_load_ushort v{12+i}, v9, s[6:7] offset:{2*i}")
    a("s_waitcnt vmcnt(0)")
    for i in range(3):
        a(f"v_lshlrev_b32 v{12+i}, 16, v{12+i}")
    a("global_store_dwordx4 v8, v[12:15], s[16:17]")
    a("s_endpgm")


def k1_img(a):
    a("s_cmp_gt_u32 s18, 25")
    a("s_cbranch_scc1 K1_END")
    a("s_load_dwordx4 s[24:27], s[0:1], 48")
    a("v_and_b32 v3, 31, v2")
    a("v_lshrrev_b32 v4, 5, v2")
    a("v_lshlrev_b32 v5, 4, v2")
    a("s_cmp_eq_u32 s18, 24")
    a("s_cbranch_scc1 K1_IMG_LANE")
    a("s_cmp_eq_u32 s18, 25")
    a("s_cbranch_scc1 K1_IMG_MISC")
    a("s_cmp_ge_u32 s18, 16")
    a("s_cbranch_scc1 K1_IMG_WH2")
    a("s_and_b32 s19, s18, 3")
    a("s_lshl_b32 s19, s19, 11")
    a("v_lshl_add_u32 v6, v4, 10, s19")
    a("s_bfe_u32 s20, s18, 0x10002")
    a("s_lshl_b32 s21, s18, 10")
    a(f"s_add_u32 s21, s21, {WS_IMG + I_W}")
    a("s_waitcnt lgkmcnt(0)")
    a("s_cmp_ge_u32 s18, 8")
    a("s_cbranch_scc1 K1_IMG_C")
    a("s_lshl_b32 s20, s20, 6")
    a("v_lshl_add_u32 v6, v3, 1, v6")
    a("v_add_u32 v6, s20, v6")
    a("s_mov_b64 s[22:23], s[14:15]")
    a("s_branch K1_IMG_LD")
    a.label("K1_IMG_C")
    a("s_lshl_b32 s20, s20, 1")
    a("v_lshl_add_u32 v6, v3, 2, v6")
    a("v_add_u32 v6, s20, v6")
    a("s_mov_b64 s[22:23], s[26:27]")
    a.label("K1_IMG_LD")
    for kk in range(8):
        a(f"global_load_ushort v{8+kk}, v6, s[22:23] offset:{kk*128}")
    a("s_branch K1_IMG_ST")
    a.label("K1_IMG_WH2")
    a("s_sub_u32 s19, s18, 16")
    a("s_lshl_b32 s21, s19, 10")
    a(f"s_add_u32 s21, s21, {WS_IMG + I_WH2}")
    a("s_and_b32 s20, s19, 1")
    a("s_lshl_b32 s20, s20, 1")
    a("s_lshr_b32 s19, s19, 1")
    a("s_lshl_b32 s19, s19, 11")
    a("s_add_u32 s19, s19, s20")
    a("s_add_u32 s19, s19, 8192")
    a("v_lshl_add_u32 v6, v4, 9, s19")
    a("v_lshl_add_u32 v6, v3, 2, v6")
    a("s_waitcnt lgkmcnt(0)")
    for kk in range(8):
        a(f"global_load_ushort v{8+kk}, v6, s[26:27] offset:{(8*(kk >> 2) + (kk & 3))*128}")
    a.label("K1_IMG_ST")
    a("v_add_u32 v5, s21, v5")
    a("s_waitcnt vmcnt(0)")
    for i in range(4):
        a(f"v_lshl_or_b32 v{16+i}, v{9+2*i}, 16, v{8+2*i}")
    a("global_store_dwordx4 v5, v[16:19], s[16:17]")
    a("s_endpgm")
    a.label("K1_IMG_LANE")
    a("v_lshlrev_b32 v6, 1, v3")
    a("v_add_u32 v6, 0x4000, v6")
    a("s_waitcnt lgkmcnt(0)")
    for i, off in enumerate((0, 64, 128, 192)):
        a(f"global_load_ushort v{8+i}, v6, s[14:15] offset:{off}")
    a("v_lshlrev_b32 v16, 4, v4")
    a("v_bfe_u32 v20, v2, 1, 2")
    a("v_lshlrev_b32 v17, 6, v3")
    a("v_lshl_add_u32 v17, v20, 3, v17")
    a(f"v_add_u32 v17, {L_OH}, v17")
    a("v_bfe_u32 v20, v2, 2, 2")
    a("v_lshl_add_u32 v20, v4, 2, v20")
    a("v_bfe_u32 v21, v2, 4, 1")
    a("v_and_b32 v22, 3, v2")
    a("v_lshl_add_u32 v21, v21, 2, v22")
    a("v_bfe_u32 v22, v20, 1, 2")
    a("v_xor_b32 v21, v21, v22")
    a("v_lshlrev_b32 v18, 6, v20")
    a("v_lshl_add_u32 v18, v21, 3, v18")
    a(f"v_add_u32 v18, {L_OH}, v18")
    a("v_and_b32 v20, 7, v2")
    a("v_xor_b32 v20, v20, v4")
    a("v_lshlrev_b32 v19, 7, v3")
    a("v_lshl_add_u32 v19, v20, 4, v19")
    a(f"v_add_u32 v19, {L_HIMG}, v19")
    a(f"v_add_u32 v5, {WS_IMG + I_LANE}, v5")
    a("global_store_dwordx4 v5, v[16:19], s[16:17]")
    a("v_cmp_eq_u32 s[22:23], 0, v4")
    a("s_waitcnt vmcnt(1)")
    for r in (9, 11):
        a(f"v_lshlrev_b32 v{r}, 16, v{r}")
        a(f"v_mul_f32 v{r}, {NLOG2E}, v{r}")
        a(f"v_cvt_pk_bf16_f32 v20, v{r}, 0")
        a("v_lshlrev_b32 v20, 16, v20")
        a(f"v_sub_f32 v21, v{r}, v20")
        a(f"v_cvt_pk_bf16_f32 v{r}, v20, v21")
    for we, (d, e) in ((24, (8, 10)), (30, (9, 11))):
        a(f"v_cndmask_b32 v{we+4}, 0, v{d}, s[22:23]")
        a(f"v_cndmask_b32 v{we+5}, 0, v{e}, s[22:23]")
        a(f"v_cndmask_b32 v{we}, v{d}, 0, s[22:23]")
        a(f"v_cndmask_b32 v{we+1}, v{e}, 0, s[22:23]")
        a(f"v_mov_b32 v{we+2}, 0")
        a(f"v_mov_b32 v{we+3}, 0")
    for q in range(3):
        a(f"global_store_dwordx4 v5, {vr(24+4*q, 4)}, s[16:17] offset:{1024*(q+1)}")
    a("s_endpgm")
    a.label("K1_IMG_MISC")
    a("v_lshrrev_b32 v6, 3, v3")
    a("v_lshlrev_b32 v6, 5, v6")
    a("v_bfe_u32 v7, v3, 1, 1")
    a("v_lshl_add_u32 v6, v7, 4, v6")
    a("v_bfe_u32 v7, v3, 2, 1")
    a("v_lshl_add_u32 v6, v7, 3, v6")
    a("v_and_b32 v7, 1, v3")
    a("v_lshl_add_u32 v6, v7, 2, v6")
    a("s_waitcnt lgkmcnt(0)")
    a("global_load_dword v8, v6, s[24:25]")
    a("v_and_b32 v9, 15, v2")
    a("v_lshrrev_b32 v10, 4, v2")
    a("v_cmp_eq_u32 vcc, 3, v10")
    a("v_addc_co_u32 v9, vcc, 0, v9, vcc")
    a("v_min_u32 v11, 2, v9")
    a("v_lshlrev_b32 v11, 8, v11")
    a("v_lshl_add_u32 v11, v9, 10, v11")
    a("v_cmp_eq_u32 vcc, 1, v10")
    a("v_cndmask_b32 v11, v11, 0, vcc")
    a("v_lshlrev_b32 v12, 2, v2")
    a(f"v_add_u32 v13, {WS_IMG + I_CNT}, v12")
    a("global_store_dword v13, v11, s[16:17]")
    a("v_lshrrev_b32 v9, 2, v3")
    a("v_and_b32 v10, 1, v9")
    a("v_lshlrev_b32 v10, 4, v10")
    a("v_mov_b32 v11, 0x3f80")
    a("v_lshlrev_b32 v10, v10, v11")
    a("v_lshrrev_b32 v9, 1, v9")
    a("v_and_b32 v11, 3, v3")
    a("v_cmp_eq_u32 vcc, v9, v11")
    a("v_cndmask_b32 v10, 0, v10, vcc")
    a(f"v_add_u32 v14, {WS_IMG + I_OHT}, v12")
    a("s_mov_b64 exec, 0xffffffff")
    a("global_store_dword v14, v10, s[16:17]")
    a("s_waitcnt vmcnt(2)")
    a(f"global_store_dword v13, v8, s[16:17] offset:{I_WX}")
    a("s_endpgm")


def kernel1():
    a = Asm()
    a("s_cmp_ge_u32 s2, 512")
    a("s_cbranch_scc1 K1_END")
    a("s_load_dwordx8 s[4:11], s[0:1], 0")
    a("s_load_dwordx4 s[12:15], s[0:1], 32")
    a("s_load_dwordx2 s[16:17], s[0:1], 80")
    stamp(a, 64, 0)
    if OPT["diag"] == 3:
        for i in range(1, 7):
            a(f"s_mov_b32 s{64+i}, 0")
    a("v_lshrrev_b32 v1, 6, v0")
    a("v_and_b32 v2, 63, v0")
    a("v_readfirstlane_b32 s3, v1")
    a("s_cmp_ge_u32 s2, 256")
    a("s_cbranch_scc1 K1_TAB")
    k1_bin(a)
    a.label("K1_TAB")
    a("s_sub_u32 s18, s2, 256")
    a("s_cmp_ge_u32 s3, 4")
    a("s_cbranch_scc1 K1_TAB2")
    k1_btile(a)
    a.label("K1_TAB2")
    a("s_cmp_gt_u32 s3, 7")
    a("s_cbranch_scc1 K1_END")
    a("s_cmp_eq_u32 s3, 7")
    a("s_cbranch_scc1 K1_IMG")
    a("s_cmp_eq_u32 s3, 4")
    a("s_cbranch_scc1 K1_LUT")
    k1_pos(a)
    a.label("K1_LUT")
    k1_lut(a)
    a.label("K1_IMG")
    k1_img(a)
    a.label("K1_END")
    a("s_endpgm")
    return a


assert BASES[:4] == [0, 1280, 2560, 3584]

ACC0, ACC1, RAWA, RAWB, X0, OH, T, LA, CC, WE0, WE1, XE, VV, PS = 96, 112, 64, 80, 48, 40, 36, 32, 28, 16, 22, 10, 8, 4
vINF, vOHA, vTRA, vLB, vGA = 7, 3, 2, 1, 0
sB, sW, sREM, sJ, sFL, sNODE = 18, 19, 20, 21, 22, 23
sM = 24
sLO, sHI = 40, 42
SRD_B, SRD_POS = 44, 48
sSEL, sBASE, sT0, sT1, sT2, sT3, sLONG = 52, 53, 54, 55, 56, 57, 58
SRD_O = 60


def P(a, p):
    if OPT["prio"]:
        a(f"s_setprio {p}")


def G_reads(a, dst, imm):
    for g in range(4):
        a(f"ds_read_b128 {vr(dst+4*g, 4)}, v{vGA} offset:{L_SRC + imm + 32*g}")


def G_issue(a, dst, younger):
    for g in range(4):
        a(f"s_waitcnt lgkmcnt({3 - g + younger})")
        for r in range(4):
            q = dst + 4 * g + r
            if OPT["abl_g"]:
                a("s_nop 0")
            else:
                a(f"buffer_load_dword v{q}, v{q}, s[{SRD_B}:{SRD_B+3}], 0 offen")


def PA_reads(a):
    a(f"ds_read_addtid_b32 v{PS} offset:{L_SRC}")
    a(f"ds_read_addtid_b32 v{vINF} offset:{L_INF}")


def PA_issue(a):
    a(f"buffer_load_dwordx3 {vr(PS, 3)}, v{PS}, s[{SRD_POS}:{SRD_POS+3}], 0 idxen")
    a("s_add_u32 m0, m0, 256")


def emit_PB(a):
    ta = LA
    a(f"v_and_b32 v{ta}, 0xfe0, v{vINF}")
    a(f"ds_read_b128 {vr(T, 4)}, v{ta} offset:{L_TAB + 16}")
    a(f"ds_read_b64 {vr(XE, 2)}, v{ta} offset:{L_TAB}")
    a(f"ds_read_b64 {vr(XE+4, 2)}, v{ta} offset:{L_TAB + 8}")
    a(f"v_perm_b32 v{XE+3}, v{vINF}, v{vINF}, s{sSEL}")
    a("s_waitcnt lgkmcnt(2)")
    for i in range(3):
        a(f"v_sub_f32 v{T+i}, v{T+i}, v{PS+i}")
    a(f"v_xor_b32 v{vOHA}, v{T+3}, v{vLB}")
    a(f"v_cvt_pk_bf16_f32 v{VV}, v{T}, v{T+1}")
    a(f"v_cvt_pk_bf16_f32 v{VV+1}, v{T+2}, 1.0")
    a(f"v_lshlrev_b32 v{T}, 16, v{VV}")
    a(f"v_and_b32 v{T+1}, 0xffff0000, v{VV}")
    a(f"v_lshlrev_b32 v{T+2}, 16, v{VV+1}")
    if OPT["faithful_sq"]:
        for i in range(3):
            a(f"v_mul_f32 v{T+i}, v{T+i}, v{T+i}")
        a(f"v_cvt_pk_bf16_f32 v{T+3}, v{T}, v{T+1}")
        a(f"v_cvt_pk_bf16_f32 v{T+2}, 0, v{T+2}")
        a(f"v_lshlrev_b32 v{T}, 16, v{T+3}")
        a(f"v_and_b32 v{T+1}, 0xffff0000, v{T+3}")
        a(f"v_add_f32 v{T}, v{T}, v{T+1}")
        a(f"v_add_f32 v{T}, v{T}, v{T+2}")
    else:
        a(f"v_mul_f32 v{T}, v{T}, v{T}")
        a(f"v_fmac_f32 v{T}, v{T+1}, v{T+1}")
        a(f"v_fmac_f32 v{T}, v{T+2}, v{T+2}")
    a(f"v_cvt_pk_bf16_f32 v{XE+2}, v{T}, v{T}")
    a("s_waitcnt lgkmcnt(0)")
    a(f"v_permlane32_swap_b32 v{XE}, v{XE+4}")
    a(f"v_permlane32_swap_b32 v{XE+1}, v{XE+5}")


def emit_masks(a):
    a(f"s_bfm_b64 s[{sT2}:{sT2+1}], s{sREM}, 0")
    a(f"s_cmp_ge_u32 s{sREM}, 64")
    a(f"s_cselect_b32 s{sLO}, -1, s{sT2}")
    a(f"s_cselect_b32 s{sHI+1}, -1, s{sT2+1}")


def lut_half(a, h):
    b = X0 + 8 * h
    for i in range(4):
        a(f"v_cvt_pk_bf16_f32 v{b+i}, v{b+2*i}, v{b+2*i+1}")
    for i in range(4):
        a(f"v_lshlrev_b16 v{b+4+i}, 1, v{b+i}")
        a(f"v_lshlrev_b16_sdwa v{LA+i}, 1, v{b+i} dst_sel:DWORD dst_unused:UNUSED_PAD src0_sel:DWORD src1_sel:WORD_1")
        if not OPT["abl_lut"]:
            a(f"ds_read_u16 v{b+4+i}, v{b+4+i} offset:{L_LUT}")
            a(f"ds_read_u16_d16_hi v{LA+i}, v{LA+i} offset:{L_LUT}")
    for i in range(4):
        a(f"v_pk_max_i16 v{b+i}, v{b+i}, 0")


def lut_merge(a, h):
    b = X0 + 8 * h
    for i in range(4):
        a(f"v_or_b32 v{b+4+i}, v{b+4+i}, v{LA+i}")


def valu_half(a, raw, h):
    if OPT["abl_trans"]:
        return
    for qq in range(2):
        xs = [raw + 8 * h + 4 * qq + i for i in range(4)]
        ts = [T + i for i in range(4)]
        for x, t in zip(xs, ts):
            a(f"v_exp_f32 v{t}, v{x}")
        if OPT["pk"]:
            for t in ts[::2]:
                a(f"v_pk_add_f32 {vr(t, 2)}, {vr(t, 2)}, 1.0 op_sel_hi:[1,0]")
        else:
            P(a, 0)
            for t in ts:
                a(f"v_add_f32 v{t}, 1.0, v{t}")
            P(a, 1)
        for t in ts:
            a(f"v_rcp_f32 v{t}, v{t}")
        if OPT["pk"]:
            for x, t in zip(xs[::2], ts[::2]):
                a(f"v_pk_mul_f32 {vr(t, 2)}, {vr(t, 2)}, {vr(x, 2)}")
        else:
            P(a, 0)
            for x, t in zip(xs, ts):
                a(f"v_mul_f32 v{t}, v{x}, v{t}")
            P(a, 1)
        for i in range(2):
            a(f"v_cvt_pk_bf16_f32 v{raw+8*h+2*qq+i}, v{ts[2*i]}, v{ts[2*i+1]}")


def seg3(a, raw, h):
    for acc, op in ((ACC0, X0 + 8 * h), (ACC1, raw + 8 * h), (ACC0, X0 + 8 * h + 4)):
        a(f"v_mfma_f32_32x32x16_bf16 {vr(acc, 16)}, {vr(op, 4)}, {vr(OH+4*h, 4)}, {vr(acc, 16)}")


def emit_tile(a, par):
    L = f"K2_T{par}"
    cur, nxt = (RAWA, RAWB) if par == 0 else (RAWB, RAWA)
    m = sLO if par == 0 else sHI
    zz = WE0 if par == 0 else WE0 + 4
    a(f"s_cmp_le_u32 s{sREM}, 32")
    a(f"s_cbranch_scc1 {L}_NG1")
    G_reads(a, nxt, 128 if par == 0 else 256)
    a.label(f"{L}_NG1")
    a(f"s_mov_b64 exec, s[{m}:{m+1}]")
    a(f"ds_write_b64 v{vOHA}, {vr(VV, 2)}")
    a("s_mov_b64 exec, -1")
    for q in range(4):
        a(f"ds_read_b64_tr_b16 {vr(OH+2*q, 2)}, v{vTRA} offset:{512*q}")
    a(f"s_mov_b64 exec, s[{m}:{m+1}]")
    a(f"ds_write_b64 v{vOHA}, {vr(zz, 2)}")
    a("s_mov_b64 exec, -1")
    if par == 0:
        PA_reads(a)
    a("s_waitcnt vmcnt(0)")
    P(a, 0)
    for q in range(16):
        a(f"v_lshlrev_b32 v{X0+q}, 16, v{cur+q}")
    P(a, 1)
    xe = XE if par == 0 else XE + 2
    wo = 2 if par == 0 else 0
    a(f"v_mfma_f32_32x32x16_bf16 {vr(X0, 16)}, {vr(xe, 4)}, {vr(WE0+wo, 4)}, {vr(X0, 16)}")
    a(f"v_mfma_f32_32x32x16_bf16 {vr(cur, 16)}, {vr(xe, 4)}, {vr(WE1+wo, 4)}, {vr(cur, 16)}")
    a(f"s_cmp_le_u32 s{sREM}, 32")
    a(f"s_cbranch_scc1 {L}_NG2")
    G_issue(a, nxt, 8 if par == 0 else 6)
    if par == 0:
        a(f"s_cmp_le_u32 s{sREM}, 64")
        a(f"s_cbranch_scc1 {L}_GO")
        a("s_waitcnt lgkmcnt(0)")
        PA_issue(a)
    a(f"s_branch {L}_GO")
    a.label(f"{L}_NG2")
    a("s_nop 9")
    a.label(f"{L}_GO")
    lut_half(a, 0)
    valu_half(a, cur, 0)
    a("s_waitcnt lgkmcnt(0)")
    lut_merge(a, 0)
    a(f"s_cmp_le_u32 s{sREM}, 16")
    a(f"s_cbranch_scc1 {L}_HALF")
    lut_half(a, 1)
    seg3(a, cur, 0)
    valu_half(a, cur, 1)
    a("s_waitcnt lgkmcnt(0)")
    lut_merge(a, 1)
    a(f"s_cmp_le_u32 s{sREM}, 32")
    seg3(a, cur, 1)
    a("s_cbranch_scc1 K2_LOOP_DONE")
    a(f"s_sub_u32 s{sREM}, s{sREM}, 32")
    if par == 1:
        a(f"v_add_u32 v{vGA}, 256, v{vGA}")
        emit_PB(a)
        emit_masks(a)
        a("s_branch K2_T0")
    else:
        a("s_branch K2_T1")
    a.label(f"{L}_HALF")
    seg3(a, cur, 0)
    a("s_branch K2_LOOP_DONE")


def lane_id(a, v):
    a(f"v_mbcnt_lo_u32_b32 v{v}, -1, 0")
    a(f"v_mbcnt_hi_u32_b32 v{v}, -1, v{v}")


def kernel2():
    a = Asm()
    vL = 60
    a("s_cmp_ge_u32 s2, 256")
    a("s_cbranch_scc1 K2_END")
    a("s_load_dwordx2 s[16:17], s[0:1], 80")
    a("s_load_dwordx2 s[4:5], s[0:1], 0")
    a("s_load_dwordx2 s[14:15], s[0:1], 64")
    stamp(a, 86, 0)
    if OPT["diag"] == 3:
        for i in range(1, 7):
            a(f"s_mov_b32 s{86+i}, 0")
    a("v_lshrrev_b32 v1, 6, v0")
    a(f"v_and_b32 v{vL}, 63, v0")
    a(f"v_readfirstlane_b32 s{sW}, v1")
    a(f"s_and_b32 s{sB}, s2, 7")
    a(f"s_lshl_b32 s{sB}, s{sB}, 5")
    a("s_lshr_b32 s3, s2, 3")
    a(f"s_add_u32 s{sB}, s{sB}, s3")

    def offT_addr(v):
        a(f"s_lshl_b32 s{sT0}, s{sB}, 4")
        a(f"s_add_u32 s{sT0}, s{sT0}, s{sW}")
        a(f"s_lshl_b32 s{sT0}, s{sT0}, 6")
        a(f"s_add_u32 s{sT0}, s{sT0}, {WS_OFF}")
        a(f"v_and_b32 v{v}, 48, v{vL}")
        a(f"v_add_u32 v{v}, s{sT0}, v{v}")
    offT_addr(61)
    a(f"v_lshlrev_b32 v62, 4, v{vL}")
    a(f"s_mul_i32 s{sNODE}, s{sB}, {BN}")
    a(f"s_add_u32 s{sNODE}, s{sNODE}, s{sW}")
    a(f"v_add_u32 v63, {WS_IMG + I_LANE}, v62")
    a("s_waitcnt lgkmcnt(0)")
    a("global_load_dwordx4 v[56:59], v61, s[16:17]")
    a(f"v_lshrrev_b32 v32, 3, v{vL}")
    a(f"v_xor_b32 v33, v32, v{vL}")
    a("v_and_b32 v33, 7, v33")
    a(f"s_lshl_b32 s{sT0}, s{sNODE}, 7")
    a(f"v_lshl_add_u32 v32, v32, 11, s{sT0}")
    a(f"v_min_u32 v32, {(N - 1) * 128}, v32")
    a("v_lshl_add_u32 v32, v33, 4, v32")
    a(f"s_lshl_b32 s{sT1}, s{sW}, 10")
    a(f"s_add_u32 m0, s{sT1}, {L_HIMG}")
    a(f"s_and_b32 s{sT0}, s{sW}, 3")
    a("global_load_lds_dwordx4 v32, s[4:5]")
    a(f"s_lshl_b32 s{sT0}, s{sT0}, 12")
    a(f"s_add_u32 s{sT0}, s{sT0}, {WS_IMG + I_W}")
    a(f"v_add_u32 v33, s{sT0}, v62")
    for s in range(4):
        a(f"global_load_dwordx4 {vr(64+4*s, 4)}, v33, s[16:17] offset:{1024*s}")
    a("global_load_dwordx4 v[0:3], v63, s[16:17]")
    for q in range(3):
        a(f"global_load_dwordx4 {vr(WE0+4*q, 4)}, v63, s[16:17] offset:{1024*(q+1)}")
    a(f"s_cmp_ge_u32 s{sW}, 12")
    a("s_cbranch_scc1 K2_TABDMA")
    a(f"s_cmp_ge_u32 s{sW}, 9")
    a("s_cbranch_scc1 K2_DMA_DONE")
    a(f"s_add_u32 m0, s{sT1}, {L_EARLY}")
    a(f"s_add_u32 s{sT0}, s{sT1}, {WS_IMG}")
    a(f"v_add_u32 v33, s{sT0}, v62")
    a("global_load_lds_dwordx4 v33, s[16:17]")
    a("s_branch K2_DMA_DONE")
    a.label("K2_TABDMA")
    a(f"s_add_u32 m0, s{sT1}, {L_TAB - 12*1024}")
    a(f"s_lshl_b32 s{sT0}, s{sW}, 5")
    a(f"s_sub_u32 s{sT0}, s{sT0}, 384")
    a(f"v_lshrrev_b32 v33, 1, v{vL}")
    a(f"v_add_u32 v33, s{sT0}, v33")
    a("v_and_b32 v34, 0x70, v33")
    a(f"v_add_u32 v34, {WS_IMG + I_OHT}, v34")
    a(f"s_mul_i32 s{sT0}, s{sB}, {BN*16}")
    a(f"s_add_u32 s{sT0}, s{sT0}, {WS_POS}")
    a(f"v_lshl_add_u32 v33, v33, 4, s{sT0}")
    a(f"s_mov_b32 s{sT2}, 0xaaaaaaaa")
    a(f"s_mov_b32 s{sT3}, 0xaaaaaaaa")
    a(f"v_cndmask_b32 v33, v34, v33, s[{sT2}:{sT3}]")
    a("global_load_lds_dwordx4 v33, s[16:17]")
    a.label("K2_DMA_DONE")
    a(f"s_mov_b32 s{SRD_B}, s16")
    a(f"s_and_b32 s{SRD_B+1}, s17, 0xffff")
    a(f"s_or_b32 s{SRD_B+1}, s{SRD_B+1}, 0x80000000")
    a(f"s_mov_b32 s{SRD_B+2}, 0x100000")
    a(f"s_mov_b32 s{SRD_B+3}, 0xc00000")
    a(f"s_add_u32 s{SRD_POS}, s16, {WS_POS}")
    a(f"s_addc_u32 s{SRD_POS+1}, s17, 0")
    a(f"s_and_b32 s{SRD_POS+1}, s{SRD_POS+1}, 0xffff")
    a(f"s_or_b32 s{SRD_POS+1}, s{SRD_POS+1}, 0x40000")
    a(f"s_mov_b32 s{SRD_POS+2}, {N*16}")
    a(f"s_mov_b32 s{SRD_POS+3}, 0x20000")
    a(f"s_mov_b32 s{sSEL}, 0x03020302")
    a(f"s_mov_b32 s{sLO+1}, 0")
    a(f"s_mov_b32 s{sHI}, 0")
    a(f"s_mov_b32 s{sJ}, 0")
    a(f"s_mov_b32 s{sFL}, 0")
    a(f"s_min_u32 s{sBASE}, s{sW}, 2")
    a(f"s_lshl_b32 s{sBASE}, s{sBASE}, 8")
    a(f"s_add_u32 s{sBASE}, s{sBASE}, s{sT1}")

    def payload_addr():
        a(f"v_and_b32 v52, 15, v{vL}")
        a("v_lshlrev_b32 v52, 1, v52")
        a(f"v_lshrrev_b32 v54, 4, v{vL}")
        a(f"s_mul_i32 s{sT2}, s{sW}, {16*CHB}")
        a(f"s_add_u32 s{sT2}, s{sT2}, {WS_PAY}")
        a(f"v_mov_b32 v55, s{sT2}")
        a(f"s_mov_b32 s{sT2}, {4*CHB}")
        a(f"v_mad_u32_u24 v54, v54, s{sT2}, v55")

    def payload_issue(first):
        if not first:
            a(f"s_lshl_b32 s{sT1}, s{sJ}, 5")
            a(f"v_add_u32 v52, s{sT1}, v52")
            a(f"s_and_b32 s{sT1}, s{sFL}, 1")
        a("v_add_u32 v53, 1, v52")
        for i in range(4):
            c = 48 + i
            a(f"v_lshrrev_b32 v{c}, 16, v{56+i}")
            a(f"v_and_b32 v{56+i}, 0xffff, v{56+i}")
            if not first:
                a(f"s_cmp_lg_u32 s{sT1}, 0")
                a(f"s_cbranch_scc1 K2_KEEPM{i}")
            a(f"v_cmp_lt_u32 s[{sM+4*i}:{sM+4*i+1}], v52, v{c}")
            a(f"v_cmp_lt_u32 s[{sM+4*i+2}:{sM+4*i+3}], v53, v{c}")
            if not first:
                a.label(f"K2_KEEPM{i}")
            a(f"v_add_u32 v{56+i}, v{56+i}, v52")
            a(f"v_lshl_add_u32 v{56+i}, v{56+i}, 3, v54")
            if first:
                a(f"s_mov_b64 exec, s[{sM+4*i}:{sM+4*i+1}]")
            else:
                a(f"s_or_b64 exec, s[{sM+4*i}:{sM+4*i+1}], s[{sM+4*i+2}:{sM+4*i+3}]")
            a(f"global_load_dwordx4 {vr(80+4*i, 4)}, v{56+i}, s[16:17]")
            a("s_mov_b64 exec, -1")
            if i < 3:
                a(f"v_add_u32 v54, {CHB}, v54")
        a("v_max3_u32 v48, v48, v49, v50")
        a("v_max_u32 v48, v48, v51")
        if first:
            a(f"v_cmp_lt_u32 s[{sLONG}:{sLONG+1}], 32, v48")
        else:
            a(f"s_lshl_b32 s{sT1}, s{sJ}, 5")
            a(f"s_add_u32 s{sT1}, s{sT1}, 32")
            a(f"v_cmp_lt_u32 s[{sLONG}:{sLONG+1}], s{sT1}, v48")

    payload_addr()
    a("s_waitcnt vmcnt(9)")
    stamp(a, 86, 1)
    payload_issue(True)
    a(f"s_lshl_b32 s{sT0}, s{sW}, 12")
    a(f"s_add_u32 m0, s{sT0}, {L_LUT}")
    a(f"s_add_u32 s{sT0}, s{sT0}, {WS_IMG + I_LUT}")
    a(f"v_add_u32 v33, s{sT0}, v62")
    for i in range(4):
        a(f"global_load_lds_dwordx4 v33, s[16:17] offset:{1024*i}")
    a(f"s_lshl_b32 s{sT0}, s{sW}, 11")
    a(f"s_lshr_b32 s{sT1}, s{sW}, 2")
    a(f"s_lshl_b32 s{sT2}, s{sT1}, 12")
    a(f"s_lshl_b32 s{sT1}, s{sT1}, 13")
    a(f"s_and_b32 s{sT3}, s{sW}, 3")
    a(f"s_lshl_b32 s3, s{sT3}, 9")
    a(f"s_add_u32 s{sT1}, s{sT1}, s3")
    a(f"s_add_u32 s{sT1}, s{sT1}, {L_OH}")
    a(f"v_lshl_add_u32 v61, v{vL}, 3, s{sT1}")
    a(f"s_add_u32 s{sT1}, s{sT0}, {L_OH}")
    a(f"v_lshl_add_u32 v63, v{vL}, 3, s{sT1}")
    a("s_waitcnt vmcnt(8)")
    a(f"v_add_u32 v{vLB}, s{sT0}, v{vLB}")
    a(f"v_add_u32 v{vTRA}, s{sT0}, v{vTRA}")
    a(f"v_add_u32 v{vGA}, s{sBASE}, v{vGA}")
    a(f"v_add_u32 v3, s{sT2}, v3")
    for s in range(1, 4):
        a(f"v_xor_b32 v{3+s}, {32*s}, v3")
    a("s_barrier")
    stamp(a, 86, 2)
    for s in range(4):
        a(f"ds_read_b128 {vr(32+4*s, 4)}, v{3+s}")
    for s in range(4):
        a(f"s_waitcnt lgkmcnt({3-s})")
        c = "0" if s == 0 else vr(96, 16)
        a(f"v_mfma_f32_32x32x16_bf16 {vr(96, 16)}, {vr(32+4*s, 4)}, {vr(64+4*s, 4)}, {c}")
    for i in range(16):
        a(f"v_mov_b32 v{112+i}, 0")
    a(f"s_cmp_lg_u32 s{sT3}, 1")
    a("s_cbranch_scc1 K2_NOSC")
    for i in range(16):
        a(f"v_mul_f32 v{96+i}, {NLOG2E}, v{96+i}")
    a.label("K2_NOSC")
    for i in range(8):
        a(f"v_cvt_pk_bf16_f32 v{32+i}, v{96+2*i}, v{97+2*i}")
    for g in range(4):
        a(f"ds_write_b64 v61, {vr(32+2*g, 2)} offset:{2048*g}")
    for i in range(16):
        a(f"v_mov_b32 v{96+i}, 0")
    a("v_mov_b32 v48, 4")
    a("s_waitcnt vmcnt(4)")
    stamp(a, 86, 3)
    for u in range(8):
        a(f"s_mov_b64 exec, s[{sM+2*u}:{sM+2*u+1}]")
        a(f"v_lshrrev_b32 v{64+u}, 3, v{81+2*u}")
        a(f"v_and_b32 v{64+u}, 0x3c, v{64+u}")
        a(f"ds_add_rtn_u32 v{64+u}, v{64+u}, v48 offset:{L_CNT}")
    for u in range(8):
        a(f"s_mov_b64 exec, s[{sM+2*u}:{sM+2*u+1}]")
        a(f"s_waitcnt lgkmcnt({7 + u})")
        a(f"v_min_u32 v{64+u}, {L_INF - 4}, v{64+u}")
        a(f"ds_write_b32 v{64+u}, v{80+2*u} offset:{L_SRC}")
        a(f"ds_write_b32 v{64+u}, v{81+2*u} offset:{L_INF}")
    a(f"s_mov_b64 exec, s[{sLONG}:{sLONG+1}]")
    a("s_cbranch_execz K2_NOF0")
    a("v_mov_b32 v49, 0")
    a(f"ds_write_b32 v49, v48 offset:{L_CNT + 68}")
    a.label("K2_NOF0")
    a("s_mov_b64 exec, -1")
    a(f"v_lshlrev_b32 v50, 2, v{vL}")
    a("v_and_b32 v51, 63, v50")
    for i in range(4):
        a(f"v_mov_b32 v{40+i}, 0")
    a(f"s_lshl_b32 s{sT0}, s{sW}, 11")
    a(f"s_add_u32 s{sT0}, s{sT0}, {L_OH}")
    a(f"v_add_u32 v62, s{sT0}, v62")
    a("s_waitcnt vmcnt(0) lgkmcnt(0)")
    a("s_barrier")
    stamp(a, 86, 4)
    a(f"ds_read_b32 v33, v50 offset:{L_CNT}")
    a(f"ds_read_b32 v34, v51 offset:{L_CNT + 192}")
    a(f"ds_read_b64 {vr(WE0+2, 2)}, v63")
    a(f"ds_read_b64 {vr(WE1+2, 2)}, v63 offset:512")
    a(f"ds_read_b64 {vr(CC, 2)}, v63 offset:1024")
    a(f"ds_read_b64 {vr(CC+2, 2)}, v63 offset:1536")
    a("ds_write_b128 v62, v[40:43]")
    a("ds_write_b128 v62, v[40:43] offset:1024")
    a("s_waitcnt lgkmcnt(6)")
    a("v_cmp_gt_u32 vcc, v33, v34")
    a(f"v_readlane_b32 s{sREM}, v33, s{sW}")
    a(f"v_readlane_b32 s{sT0}, v33, 17")
    a("s_and_b32 s3, vcc_lo, 0xffff")
    a(f"s_or_b32 s3, s3, s{sT0}")
    a("s_cbranch_scc1 K2_SLOW")
    a.label("K2_START")
    if OPT["startprio"]:
        a(f"s_setprio {OPT['startprio']}")
    a(f"s_sub_u32 s{sREM}, s{sREM}, s{sBASE}")
    a(f"s_lshr_b32 s{sREM}, s{sREM}, 2")
    a("s_cbranch_scc0 K2_LOOP_DONE")
    a(f"s_and_b32 s{sT0}, s{sREM}, 63")
    a("s_cbranch_scc0 K2_NOFILL")
    a(f"s_bfm_b64 s[{sT2}:{sT3}], s{sT0}, 0")
    a(f"s_andn2_b32 s{sT0}, s{sREM}, 63")
    a(f"s_lshl2_add_u32 m0, s{sT0}, s{sBASE}")
    a(f"s_not_b64 exec, s[{sT2}:{sT3}]")
    a(f"ds_write_addtid_b32 v40 offset:{L_SRC}")
    a(f"ds_write_addtid_b32 v40 offset:{L_INF}")
    a("s_mov_b64 exec, -1")
    a.label("K2_NOFILL")
    a(f"s_mov_b32 m0, s{sBASE}")
    G_reads(a, RAWA, 0)
    PA_reads(a)
    G_issue(a, RAWA, 2)
    a("s_waitcnt lgkmcnt(0)")
    PA_issue(a)
    emit_masks(a)
    a("s_waitcnt vmcnt(0)")
    emit_PB(a)
    stamp(a, 86, 5)
    if OPT["diag"] == 2:
        a("s_getreg_b32 s87, hwreg(HW_REG_HW_ID)")
        a("s_memtime s[94:95]")
        a("s_waitcnt lgkmcnt(0)")
        a("s_mov_b32 s88, s94")
    a.label("K2_T0")
    emit_tile(a, 0)
    a.label("K2_T1")
    emit_tile(a, 1)
    a.label("K2_SLOW")
    a(f"s_mov_b32 s{sJ}, -1")
    a(f"s_mov_b32 s{sFL}, 2")
    a.label("K2_ROUND")
    P(a, 0)
    a("s_waitcnt lgkmcnt(0)")
    a("s_barrier")
    lane_id(a, vL)
    a(f"v_lshlrev_b32 v50, 2, v{vL}")
    a("v_and_b32 v51, 63, v50")
    a(f"s_cmp_lg_u32 s{sW}, 0")
    a("s_cbranch_scc1 K2_NOCNT2")
    a(f"ds_read_b32 v33, v51 offset:{L_CNT + 128}")
    a("v_mov_b32 v34, 0")
    a("s_waitcnt lgkmcnt(0)")
    a(f"ds_write_b32 v51, v33 offset:{L_CNT}")
    a(f"ds_write_b32 v51, v34 offset:{L_CNT + 64}")
    a.label("K2_NOCNT2")
    offT_addr(61)
    a("global_load_dwordx4 v[56:59], v61, s[16:17]")
    a(f"s_and_b32 s{sT1}, s{sFL}, 1")
    a(f"s_xor_b32 s{sT1}, s{sT1}, 1")
    a(f"s_add_u32 s{sJ}, s{sJ}, s{sT1}")
    payload_addr()
    a("s_waitcnt vmcnt(0) lgkmcnt(0)")
    a("s_barrier")
    payload_issue(False)
    a(f"v_lshlrev_b32 v50, 2, v{vL}")
    a("v_and_b32 v51, 63, v50")
    a("v_mov_b32 v48, 4")
    a("v_mov_b32 v49, 0")
    a(f"s_mov_b64 s[{sT2}:{sT3}], 0")
    a("s_waitcnt vmcnt(0)")
    for u in range(8):
        a(f"s_mov_b64 exec, s[{sM+2*u}:{sM+2*u+1}]")
        a(f"v_lshrrev_b32 v64, 3, v{81+2*u}")
        a("v_and_b32 v64, 0x3c, v64")
        a(f"ds_read_b32 v65, v64 offset:{L_CNT + 192}")
        a(f"ds_add_rtn_u32 v64, v64, v48 offset:{L_CNT}")
        a("s_waitcnt lgkmcnt(0)")
        a("v_cmp_lt_u32 vcc, v64, v65")
        a(f"s_andn2_b64 s[{sM+2*u}:{sM+2*u+1}], exec, vcc")
        a("s_mov_b64 exec, vcc")
        a(f"ds_write_b32 v64, v{80+2*u} offset:{L_SRC}")
        a(f"ds_write_b32 v64, v{81+2*u} offset:{L_INF}")
        a(f"s_or_b64 s[{sT2}:{sT3}], s[{sT2}:{sT3}], s[{sM+2*u}:{sM+2*u+1}]")
    a(f"s_mov_b64 exec, s[{sT2}:{sT3}]")
    a("s_cbranch_execz K2_NOF1")
    a(f"ds_write_b32 v49, v48 offset:{L_CNT + 64}")
    a.label("K2_NOF1")
    a(f"s_mov_b64 exec, s[{sLONG}:{sLONG+1}]")
    a("s_cbranch_execz K2_NOF2")
    a(f"ds_write_b32 v49, v48 offset:{L_CNT + 68}")
    a.label("K2_NOF2")
    a("s_mov_b64 exec, -1")
    a("s_waitcnt lgkmcnt(0)")
    a("s_barrier")
    a(f"ds_read_b32 v33, v50 offset:{L_CNT}")
    a(f"ds_read_b32 v34, v51 offset:{L_CNT + 192}")
    a(f"v_lshrrev_b32 v{vGA}, 5, v{vL}")
    a(f"v_lshl_add_u32 v{vGA}, v{vGA}, 4, s{sBASE}")
    a("v_mov_b32 v40, 0")
    a("s_waitcnt lgkmcnt(0)")
    a(f"v_readlane_b32 s{sT0}, v33, 16")
    a(f"v_readlane_b32 s{sT1}, v33, 17")
    a("v_min_u32 v33, v33, v34")
    a(f"s_cmp_lg_u32 s{sT0}, 0")
    a(f"s_cselect_b32 s{sFL}, 1, 0")
    a(f"s_cmp_lg_u32 s{sT1}, 0")
    a(f"s_cselect_b32 s{sT1}, 2, 0")
    a(f"s_or_b32 s{sFL}, s{sFL}, s{sT1}")
    a(f"v_readlane_b32 s{sREM}, v33, s{sW}")
    a("s_nop 1")
    a("s_branch K2_START")
    a.label("K2_LOOP_DONE")
    a(f"s_cmp_lg_u32 s{sFL}, 0")
    a("s_cbranch_scc1 K2_ROUND")
    stamp(a, 86, 6)
    if OPT["diag"] == 2:
        a("s_memtime s[94:95]")
        a("s_waitcnt lgkmcnt(0)")
        a("s_mov_b32 s89, s94")
    P(a, 0)
    vL, vJ, vHF = 4, 5, 6
    lane_id(a, vL)
    a(f"v_lshlrev_b32 v7, 4, v{vL}")
    BT = 64
    for ks in range(4):
        for tc in range(2):
            a(f"ds_read_b128 {vr(BT+8*ks+4*tc, 4)}, v7 offset:{L_WH2 + (2*ks + tc)*1024}")
    a(f"v_and_b32 v{vJ}, 31, v{vL}")
    a(f"v_lshrrev_b32 v{vHF}, 5, v{vL}")
    a(f"v_lshlrev_b32 v8, 4, v{vHF}")
    WX = 12
    for ks in range(4):
        a(f"ds_read_b128 {vr(WX+4*ks, 4)}, v8 offset:{L_WX + 32*ks}")
    a(f"v_lshrrev_b32 v9, 2, v{vJ}")
    a(f"v_lshl_add_u32 v9, v9, 4, s{sW}")
    a("v_lshlrev_b32 v10, 5, v9")
    a(f"v_lshl_add_u32 v11, v{vHF}, 3, v10")
    a(f"v_and_b32 v3, 3, v{vL}")
    a("v_lshl_add_u32 v10, v3, 2, v10")
    a(f"ds_read_b64 v[0:1], v11 offset:{L_TAB}")
    a(f"ds_read_b32 v2, v10 offset:{L_TAB + 16}")
    for q in range(16):
        a(f"v_mul_f32 v{ACC1+q}, {NLN2}, v{ACC1+q}")
    SP = 32
    for t in range(2):
        for i in range(8):
            b = (ACC0, ACC1)[t]
            a(f"v_cvt_pk_bf16_f32 v{SP+8*t+i}, v{b+2*i}, v{b+2*i+1}")
    D0, D1, D3 = 96, 112, 48
    a("s_waitcnt lgkmcnt(0)")
    a(f"v_mfma_f32_32x32x8bf16_1k {vr(D0, 16)}, v[0:1], {vr(CC, 2)}, 0")
    a(f"v_mfma_f32_32x32x8bf16_1k {vr(D1, 16)}, v[0:1], {vr(CC+2, 2)}, 0")
    a(f"s_lshl_b32 s{sT0}, s{sW}, 10")
    a(f"s_add_u32 s{sT0}, s{sT0}, {L_HIMG}")
    a(f"v_lshlrev_b32 v10, 2, v{vJ}")
    a("v_xor_b32 v11, v10, v8")
    a(f"v_lshl_add_u32 v11, v{vHF}, 7, v11")
    a(f"v_add_u32 v11, s{sT0}, v11")
    for ks in range(4):
        sp = vr(SP + 4 * ks, 4)
        a(f"v_mfma_f32_32x32x16_bf16 {vr(D0, 16)}, {sp}, {vr(BT+8*ks, 4)}, {vr(D0, 16)}")
        a(f"v_mfma_f32_32x32x16_bf16 {vr(D1, 16)}, {sp}, {vr(BT+8*ks+4, 4)}, {vr(D1, 16)}")
        g = ks
        if g:
            a(f"v_xor_b32 v7, {32*g}, v11")
        a(f"ds_read_b32 v{28+g}, v{7 if g else 11} offset:{256*g}")
    for ks in range(4):
        c = "0" if ks == 0 else vr(D3, 16)
        a(f"v_mfma_f32_32x32x16_bf16 {vr(D3, 16)}, {vr(WX+4*ks, 4)}, {vr(SP+4*ks, 4)}, {c}")
    a(f"s_mov_b32 s{SRD_O}, s14")
    a(f"s_mov_b32 s{SRD_O+1}, s15")
    a(f"s_mov_b32 s{SRD_O+2}, {N*128}")
    a(f"s_mov_b32 s{SRD_O+3}, 0x20000")
    a(f"s_lshl_b32 s{sT0}, s{sNODE}, 7")
    a(f"v_lshl_add_u32 v10, v{vHF}, 11, v10")
    a(f"v_add_u32 v10, s{sT0}, v10")
    a(f"s_mov_b32 s{sT1}, {BN}")
    a(f"v_cmp_gt_u32 s[{sT2}:{sT3}], s{sT1}, v9")
    a(f"s_mul_i32 s{sT1}, s{sB}, {BN}")
    a(f"v_add_u32 v9, s{sT1}, v9")
    a(f"v_cmp_gt_u32 vcc, {N}, v9")
    a(f"s_and_b32 s{sT2}, s{sT2}, vcc_lo")
    a(f"s_and_b32 s{sT2}, s{sT2}, 0x77777777")
    a(f"s_mov_b32 s{sT3}, 0")
    a("v_mul_u32_u24 v9, 6, v9")
    a("v_lshl_add_u32 v9, v3, 1, v9")
    a(f"v_add_u32 v9, {N*128}, v9")
    xs = [(D0, D1)[t] + 4 * g + 3 for g in range(4) for t in range(2)]
    ts = [64 + i for i in range(8)]
    hs = [72 + i for i in range(8)]
    for x, t in zip(xs, ts):
        a(f"v_mul_f32 v{t}, {NLOG2E}, v{x}")
    for t in ts:
        a(f"v_exp_f32 v{t}, v{t}")
    a("s_waitcnt lgkmcnt(0)")
    for g in range(4):
        a(f"v_lshlrev_b32 v{hs[2*g]}, 16, v{28+g}")
        a(f"v_and_b32 v{hs[2*g+1]}, 0xffff0000, v{28+g}")
    for t in ts:
        a(f"v_add_f32 v{t}, 1.0, v{t}")
    for t in ts:
        a(f"v_rcp_f32 v{t}, v{t}")
    a(f"v_add_f32 v2, v2, v{D3}")
    for x, t, h in zip(xs, ts, hs):
        a(f"v_fmac_f32 v{h}, v{x}, v{t}")
    a("v_cvt_pk_bf16_f32 v2, v2, v2")
    for g in range(4):
        a(f"v_cvt_pk_bf16_f32 v{28+g}, v{hs[2*g]}, v{hs[2*g+1]}")
    a("s_movk_i32 s24, 0x1000")
    a("s_movk_i32 s25, 0x2000")
    a("s_movk_i32 s26, 0x3000")
    for g in range(3):
        a(f"buffer_store_dword v{28+g}, v10, s[{SRD_O}:{SRD_O+3}], {'0' if g == 0 else 's' + str(23+g)} offen")
    a(f"s_mov_b64 exec, s[{sT2}:{sT3}]")
    a("s_cbranch_execz K2_NOPOS")
    a("global_store_short v9, v2, s[14:15]")
    a.label("K2_NOPOS")
    a(f"s_cmp_ge_u32 s{sW}, {BN - 96}")
    a("s_cbranch_scc1 K2_FIN")
    a("s_mov_b64 exec, 0xffffffff")
    a(f"buffer_store_dword v31, v10, s[{SRD_O}:{SRD_O+3}], s26 offen")
    a.label("K2_FIN")
    stamps_out(a, 86, 1, sW)
    a.label("K2_END")
    a("s_endpgm")
    return a


HEADER = """; EGNN layer on gfx950: launch 1 bins the edges by destination bucket and builds per-node tables,
"""


def desc(name, vg, sg):
    return f""".p2align 6
.amdhsa_kernel {name}
  .amdhsa_next_free_vgpr {vg}
  .amdhsa_next_free_sgpr {sg}
  .amdhsa_accum_offset {vg}
  .amdhsa_group_segment_fixed_size 0
  .amdhsa_kernarg_size 88
  .amdhsa_user_sgpr_count 2
  .amdhsa_user_sgpr_kernarg_segment_ptr 1
  .amdhsa_system_sgpr_workgroup_id_x 1
  .amdhsa_float_denorm_mode_32 3
.end_amdhsa_kernel
"""


def build():
    s = HEADER
    s += f"; @launch kernel=bin_kernel grid=(512,1,1) block=({K1_THREADS},1,1) lds={K1_LDS + 4096}\n"
    s += f"; @launch kernel=edge_kernel grid=(256,1,1) block=(1024,1,1) lds={K2_LDS}\n"
    s += '.amdgcn_target "amdgcn-amd-amdhsa--gfx950"\n.text\n'
    ks = [("bin_kernel", kernel1(), 64, 74 if OPT["diag"] else 40), ("edge_kernel", kernel2(), 128, 96 if OPT["diag"] else 72)]
    for name, k, vg, sg in ks:
        s += f".globl {name}\n.p2align 8\n.type {name},@function\n{name}:\n" + k.render()
    s += '.section .rodata,"a"\n'
    for name, k, vg, sg in ks:
        s += desc(name, vg, sg)
    return s


if __name__ == "__main__":
    out = sys.argv[1] if len(sys.argv) > 1 else "standalone__cheap_equivariant_egnn__graph.s"
    for arg in sys.argv[2:]:
        k, v = arg.split("=")
        OPT[k] = int(v)
    open(out, "w").write(build())
    print("wrote", out, "K2_LDS", K2_LDS)
```

```python
import struct
import sys
from asmlib import Asm

N = 25000
E = 800000
BN = 98
CH = 3128
CHB = 25088
K1_THREADS = 832
WS_B = 0
WS_PAY = 4 << 20
WS_OFF = 12 << 20
WS_IMG = 13 << 20
WS_POS = 14 << 20
WS_DIAG = 20 << 20
I_CNT = 0
I_EARLY = 9216 + 256
I_WX = 256
I_WD = I_WX + 128
I_WH2 = I_WD + 544
I_LUT = I_EARLY
I_W = I_LUT + 65536
I_OHT = I_W + 16384

CAPS = [320, 320] + [256] * 14
BASES = [sum(CAPS[:g]) * 4 for g in range(17)]
L_SRC = 0
L_INF = BASES[16]
L_EARLY = 2 * L_INF
L_CNT = L_EARLY + I_CNT
L_WX = L_EARLY + I_WX
L_WH2 = L_EARLY + I_WH2
L_WD = L_EARLY + I_WD
L_TAB = L_EARLY + I_EARLY
L_LUT = L_TAB + 4096
L_HIMG = L_LUT + 65536
L_OH = L_HIMG + 16384
K2_LDS = L_OH + 32768
assert L_LUT < 65536 and L_OH % 64 == 0 and L_HIMG % 128 == 0 and K2_LDS <= 163840, K2_LDS


def f2u(x):
    return struct.unpack("<I", struct.pack("<f", x))[0]


LOG2E = 1.4426950408889634
NLOG2E = hex(f2u(-LOG2E))
PLOG2E = hex(f2u(LOG2E))
NLN2 = hex(f2u(-0.6931471805599453))

OPT = dict(faithful_sq=1, prio=2, pk=0, diag=0, abl_lut=0, abl_g=0, abl_trans=0, startprio=0, bwide=1, st_pay='sc1', st_b='sc1', ormfma=0, pbshadow=1, glate=1, gspread=0, pf=0, safe=0, bar0=1, lutpos=1)


def stamp(a, base, i):
    if OPT["diag"]:
        a("s_waitcnt lgkmcnt(0)")
        a(f"s_memrealtime s[{base+8}:{base+9}]")
        a("s_waitcnt lgkmcnt(0)")
        a(f"s_mov_b32 s{base+i}, s{base+8}")


def stamps_out(a, base, kidx, swave):
    if OPT["diag"] == 3:
        a("s_waitcnt vmcnt(0)")
        stamp(a, base, 7)
        OPT["_n"] = OPT.get("_n", 0) + 1
        a("s_and_b32 s4, s2, 15")
        if not kidx:
            a(f"s_or_b32 s4, s4, s{swave}")
        a("s_cmp_lg_u32 s4, 0")
        a(f"s_cbranch_scc1 DBG_SKIP{OPT['_n']}")
        a(f"s_load_dwordx2 s[4:5], s[0:1], 72")
        a("s_waitcnt lgkmcnt(0)")
        a(f"s_add_u32 s4, s4, {32 if kidx else 512}")
        a("s_addc_u32 s5, s5, 0")
        a(f"s_not_b32 s{base}, s{base}")
        a("s_mov_b64 exec, 1")
        a("v_mov_b32 v0, 0")
        for i in range(8):
            a(f"v_mov_b32 v1, s{base+i}")
            a(f"global_atomic_umax v0, v1, s[4:5] offset:{4*i}")
        a.label(f"DBG_SKIP{OPT['_n']}")
    elif OPT["diag"]:
        a("s_waitcnt vmcnt(0)")
        stamp(a, base, 7)
        a("s_mov_b64 exec, 1")
        a(f"s_lshl_b32 s{base+8}, s2, 4")
        a(f"s_add_u32 s{base+8}, s{base+8}, s{swave}")
        a(f"s_lshl_b32 s{base+8}, s{base+8}, 5")
        a(f"s_add_u32 s{base+8}, s{base+8}, {WS_DIAG + kidx * (1 << 20)}")
        a(f"v_mov_b32 v0, s{base+8}")
        for i in range(8):
            a(f"v_mov_b32 v1, s{base+i}")
            a(f"global_store_dword v0, v1, s[16:17] offset:{4*i}")


def vr(b, n):
    return f"v[{b}:{b+n-1}]"


K1_HIST = 0
K1_PREF = 1024
K1_STAGE = 2048
K1_LDS = 32768
NTILE = (N + 31) // 32


def k1_bin(a):
    a("s_and_b32 s18, s2, 7")
    a("s_lshl_b32 s18, s18, 5")
    a("s_lshr_b32 s19, s2, 3")
    a("s_add_u32 s18, s18, s19")
    a(f"s_mul_i32 s19, s18, {CH}")
    a("v_lshl_add_u32 v3, v0, 2, s19")
    a(f"v_cmp_gt_u32 vcc, {CH // 4}, v0")
    a(f"s_mov_b32 s20, {E}")
    a("v_cmp_gt_u32 s[22:23], s20, v3")
    a("v_lshlrev_b32 v4, 2, v3")
    a("v_lshlrev_b32 v5, 1, v3")
    a("s_and_b64 s[22:23], s[22:23], vcc")
    a("s_mov_b64 exec, s[22:23]")
    a("s_waitcnt lgkmcnt(0)")
    a("global_load_dwordx4 v[8:11], v4, s[12:13]")
    a("global_load_dwordx4 v[12:15], v4, s[10:11]")
    a("global_load_dwordx2 v[16:17], v5, s[8:9]")
    a("s_mov_b64 exec, -1")
    a("v_lshlrev_b32 v6, 2, v0")
    a("v_mov_b32 v7, 0")
    a("s_cmp_ge_u32 s3, 4")
    a("s_cbranch_scc1 K1_NOZ")
    a(f"ds_write_b32 v6, v7 offset:{K1_HIST}")
    a.label("K1_NOZ")
    a("s_mov_b32 s24, 43826197")
    a(f"s_mov_b32 s25, {-BN}")
    a("s_movk_i32 s27, 4100")
    a("v_mov_b32 v18, 1")
    a("v_lshlrev_b32 v6, 4, v0")
    a(f"s_mul_i32 s26, s18, {CHB}")
    a(f"s_add_u32 s26, s26, {WS_PAY}")
    a("v_add_u32 v7, s26, v6")
    a("s_waitcnt lgkmcnt(0)")
    a("s_barrier")
    stamp(a, 64, 1)
    a("s_mov_b64 exec, s[22:23]")
    a("s_waitcnt vmcnt(2)")
    stamp(a, 64, 2)
    for i in range(4):
        a(f"v_mul_hi_u32 v{20+i}, v{8+i}, s24")
    for i in range(4):
        a(f"v_mad_i32_i24 v{8+i}, v{20+i}, s25, v{8+i}")
        a(f"v_lshlrev_b32 v{20+i}, 2, v{20+i}")
        a(f"ds_add_rtn_u32 v{24+i}, v{20+i}, v18 offset:{K1_HIST}")
    a("s_waitcnt vmcnt(0)")
    for i in range(4):
        a(f"v_lshlrev_b32 v{28+2*i}, 2, v{12+i}")
        if i % 2 == 0:
            a(f"v_lshlrev_b32 v{29+2*i}, 16, v{16+i//2}")
        else:
            a(f"v_and_b32 v{29+2*i}, 0xffff0000, v{16+i//2}")
        a(f"v_and_b32 v{12+i}, 15, v{8+i}")
        a(f"v_lshrrev_b32 v{8+i}, 4, v{8+i}")
        a(f"v_mad_u32_u24 v{29+2*i}, v{12+i}, s27, v{29+2*i}")
        a(f"v_lshl_or_b32 v{29+2*i}, v{8+i}, 9, v{29+2*i}")
    a("s_mov_b64 exec, -1")
    a("s_waitcnt lgkmcnt(0)")
    stamp(a, 64, 3)
    a("s_barrier")
    stamp(a, 64, 4)
    a("s_cmp_lg_u32 s3, 0")
    a("s_cbranch_scc1 K1_NOSCAN")
    a(f"ds_read_b128 v[40:43], v6 offset:{K1_HIST}")
    a("s_lshl_b32 s26, s18, 2")
    a(f"s_add_u32 s26, s26, {WS_OFF}")
    a("v_lshl_add_u32 v37, v0, 12, s26")
    a("s_waitcnt lgkmcnt(0)")
    a("v_add_u32 v45, v40, v41")
    a("v_add_u32 v46, v45, v42")
    a("v_add_u32 v47, v46, v43")
    a("v_mov_b32 v48, v47")
    for sh in (1, 2, 4, 8):
        a(f"v_add_u32_dpp v48, v48, v48 row_shr:{sh} row_mask:0xf bank_mask:0xf bound_ctrl:1")
    a("v_add_u32_dpp v48, v48, v48 row_bcast:15 row_mask:0xa bank_mask:0xf")
    a("v_add_u32_dpp v48, v48, v48 row_bcast:31 row_mask:0xc bank_mask:0xf")
    a("v_sub_u32 v52, v48, v47")
    a("v_add_u32 v53, v52, v40")
    a("v_add_u32 v54, v52, v45")
    a("v_add_u32 v55, v52, v46")
    a(f"ds_write_b128 v6, v[52:55] offset:{K1_PREF}")
    a("s_and_b32 s26, s18, 3")
    a(f"s_mul_i32 s26, s26, {CHB // 8}")
    for i in range(4):
        a(f"v_lshl_or_b32 v{40+i}, v{40+i}, 16, v{52+i}")
        a(f"v_add_u32 v{40+i}, s26, v{40+i}")
        a(f"global_store_dword v37, v{40+i}, s[16:17] offset:{1024*i}")
    a("s_waitcnt lgkmcnt(0)")
    a.label("K1_NOSCAN")
    a("s_barrier")
    stamp(a, 64, 5)
    a("s_mov_b64 exec, s[22:23]")
    for i in range(4):
        a(f"ds_read_b32 v{20+i}, v{20+i} offset:{K1_PREF}")
    for i in range(4):
        a("s_waitcnt lgkmcnt(3)")
        a(f"v_add_lshl_u32 v{20+i}, v{20+i}, v{24+i}, 3")
        a(f"ds_write_b64 v{20+i}, v[{28+2*i}:{29+2*i}] offset:{K1_STAGE}")
    a("s_mov_b64 exec, -1")
    a(f"v_add_u32 v5, {K1_THREADS*16}, v7")
    a(f"v_cmp_gt_u32 vcc, {CH*8//16 - K1_THREADS}, v0")
    a("s_waitcnt lgkmcnt(0)")
    a("s_barrier")
    stamp(a, 64, 6)
    a(f"ds_read_b128 v[8:11], v6 offset:{K1_STAGE}")
    a(f"ds_read_b128 v[12:15], v6 offset:{K1_STAGE + K1_THREADS*16}")
    a("s_waitcnt lgkmcnt(1)")
    a("global_store_dwordx4 v7, v[8:11], s[16:17] " + OPT["st_pay"])
    a("s_and_b64 exec, exec, vcc")
    a("s_cbranch_execz K1_FIN")
    a("s_waitcnt lgkmcnt(0)")
    a("global_store_dwordx4 v5, v[12:15], s[16:17] " + OPT["st_pay"])
    a.label("K1_FIN")
    stamps_out(a, 64, 0, 3)
    a("s_endpgm")


def k1_btile(a):
    a("s_lshl_b32 s19, s18, 2")
    a("s_add_u32 s19, s19, s3")
    a(f"s_cmp_ge_u32 s19, {NTILE}")
    a("s_cbranch_scc1 K1_END")
    a("s_lshl_b32 s19, s19, 12")
    a("v_and_b32 v3, 31, v2")
    a("v_lshrrev_b32 v4, 5, v2")
    a("v_lshl_add_u32 v5, v3, 7, s19")
    a(f"v_min_u32 v5, {(N - 1) * 128}, v5")
    a("v_lshl_add_u32 v5, v4, 4, v5")
    a("v_lshrrev_b32 v6, 2, v2")
    a("v_lshlrev_b32 v6, 7, v6")
    a("v_and_b32 v7, 3, v2")
    a("v_lshl_add_u32 v6, v7, 4, v6")
    a("v_add_u32 v6, 8192, v6")
    a("s_lshl_b32 s20, s3, 13")
    a("s_waitcnt lgkmcnt(0)")
    for s in range(4):
        a(f"global_load_dwordx4 v[{16+4*s}:{19+4*s}], v5, s[4:5] offset:{32*s}")
    for i in range(8):
        t, kq = i >> 2, i & 3
        if i == 2:
            a("v_add_u32 v8, 4096, v6")
        go = t * 64 + (kq & 1) * 2048
        a(f"s_add_u32 m0, s20, {i*1024 - go + 4096}")
        a(f"global_load_lds_dwordx4 v{6 if kq < 2 else 8}, s[14:15] offset:{go}")
    a("v_bfe_u32 v14, v2, 2, 2")
    a("v_lshl_add_u32 v14, v4, 3, v14")
    a("v_lshlrev_b32 v14, 6, v14")
    a("v_bfe_u32 v15, v2, 4, 1")
    a("v_lshl_add_u32 v14, v15, 5, v14")
    a("v_lshl_add_u32 v14, v7, 3, v14")
    a("v_add_u32 v14, s20, v14")
    a("v_lshlrev_b32 v15, 9, v4")
    a("v_lshl_add_u32 v15, v3, 2, v15")
    if OPT["bwide"]:
        a("v_add_u32 v15, s20, v15")
        a("v_lshlrev_b32 v12, 4, v2")
        a("v_add_u32 v13, s20, v12")
        a("v_add_u32 v12, s19, v12")
    else:
        a("v_add_u32 v15, s19, v15")
    a("s_mov_b32 s28, s16")
    a("s_mov_b32 s29, s17")
    a(f"s_mov_b32 s30, {N*128}")
    a("s_mov_b32 s31, 0x20000")
    a("s_mov_b32 s24, 0xffff0000")
    a("s_mov_b32 s25, 0x80000000")
    a("s_waitcnt vmcnt(0)")
    stamp(a, 64, 2)

    def rd(k):
        s_, t = k >> 1, k & 1
        r = 4 * (k % 3)
        for q in range(2):
            a(f"ds_read_b64_tr_b16 v[{r+2*q}:{r+2*q+1}], v14 offset:{4096 + t*4096 + s_*1024 + q*256}")
    for k in range(3):
        rd(k)
    for k in range(8):
        s_, t = k >> 1, k & 1
        a(f"s_waitcnt lgkmcnt({min(4, 2*(7-k))})")
        d = 32 + 16 * t
        r = 4 * (k % 3)
        c = "0" if s_ == 0 else f"v[{d}:{d+15}]"
        a(f"v_mfma_f32_32x32x16_bf16 v[{d}:{d+15}], v[{16+4*s_}:{19+4*s_}], v[{r}:{r+3}], {c}")
        if k + 3 < 8:
            rd(k + 3)
    stamp(a, 64, 3)
    for q0 in range(0, 16, 4):
        R = range(4)
        for i in R:
            a(f"v_cvt_pk_bf16_f32 v{i}, v{32+q0+i}, 0")
        for i in R:
            a(f"v_mul_f32 v{4+i}, {NLOG2E}, v{48+q0+i}")
        for i in R:
            a(f"v_sub_u32 v{8+i}, 0x8000, v{i}")
        for i in R:
            a(f"v_and_b32 v{16+i}, 0x7fffffff, v{4+i}")
        for i in R:
            a(f"v_add_u32 v{8+i}, v{8+i}, v{16+i}")
        for i in R:
            a(f"v_max_i32 v{8+i}, 0, v{8+i}")
        for i in R:
            a(f"v_and_or_b32 v{8+i}, v{8+i}, s24, v{i}")
        for i in R:
            a(f"v_and_or_b32 v{32+q0+i}, v{4+i}, s25, v{8+i}")
            if OPT["bwide"]:
                a(f"ds_write_b32 v15, v{32+q0+i} offset:{4096 + (2*q0 + i)*128}")
            else:
                a(f"buffer_store_dword v{32+q0+i}, v15, s[28:31], 0 offen offset:{(2*q0 + i)*128}")
    if OPT["bwide"]:
        for i in range(4):
            a(f"ds_read_b128 {vr(16+4*i, 4)}, v13 offset:{4096 + 1024*i}")
        for i in range(4):
            a(f"s_waitcnt lgkmcnt({3-i})")
            a(f"buffer_store_dwordx4 {vr(16+4*i, 4)}, v12, s[28:31], 0 offen offset:{1024*i} {OPT['st_b']}")
    stamps_out(a, 64, 0, 3)
    a("s_endpgm")


def k1_lut(a):
    a("s_lshl_b32 s19, s18, 7")
    a("v_lshl_add_u32 v8, v2, 1, s19")
    a(f"s_mov_b32 s20, {WS_IMG + I_LUT}")
    a("v_lshl_add_u32 v9, v8, 1, s20")
    a("v_lshlrev_b32 v10, 16, v8")
    a("v_add_u32 v11, 0x10000, v10")
    a("s_mov_b32 s21, 0x7f800000")
    for r in (10, 11):
        a(f"v_mul_f32 v{r+2}, {PLOG2E}, v{r}")
    for r in (10, 11):
        a(f"v_exp_f32 v{r+2}, v{r+2}")
    for r in (10, 11):
        a(f"v_add_f32 v{r+2}, 1.0, v{r+2}")
    for r in (10, 11):
        a(f"v_rcp_f32 v{r+2}, v{r+2}")
    for r in (10, 11):
        a(f"v_mul_f32 v{r+2}, v{r}, v{r+2}")
        a(f"v_cmp_eq_u32 vcc, s21, v{r}")
        a(f"v_cndmask_b32 v{r+2}, v{r+2}, 0, vcc")
    a("v_cvt_pk_bf16_f32 v12, -v12, -v13")
    a("s_waitcnt lgkmcnt(0)")
    a("global_store_dword v9, v12, s[16:17]")
    a("s_endpgm")


def k1_pos(a):
    a("s_sub_u32 s19, s3, 5")
    a("s_lshl_b32 s19, s19, 6")
    a("v_add_u32 v8, s19, v2")
    a(f"v_cmp_gt_u32 vcc, {BN}, v8")
    a("v_lshrrev_b32 v15, 4, v8")
    a("v_lshlrev_b32 v15, 3, v15")
    a(f"s_mul_i32 s19, s18, {BN}")
    a("v_add_u32 v8, s19, v8")
    a("s_mov_b64 exec, vcc")
    a(f"v_cmp_gt_u32 vcc, {N}, v8")
    a("v_mul_u32_u24 v9, 6, v8")
    a(f"s_mov_b32 s20, {WS_POS}")
    a("v_lshl_add_u32 v8, v8, 4, s20")
    a("s_mov_b64 exec, vcc")
    a("s_cbranch_execz K1_END")
    a("s_waitcnt lgkmcnt(0)")
    for i in range(3):
        a(f"global_load_ushort v{12+i}, v9, s[6:7] offset:{2*i}")
    a("s_waitcnt vmcnt(0)")
    for i in range(3):
        a(f"v_lshlrev_b32 v{12+i}, 16, v{12+i}")
    a("global_store_dwordx4 v8, v[12:15], s[16:17]")
    a("s_endpgm")


def k1_img(a):
    a("s_cmp_gt_u32 s18, 25")
    a("s_cbranch_scc1 K1_END")
    a("s_load_dwordx4 s[24:27], s[0:1], 48")
    a("v_and_b32 v3, 31, v2")
    a("v_lshrrev_b32 v4, 5, v2")
    a("v_lshlrev_b32 v5, 4, v2")
    a("s_cmp_eq_u32 s18, 24")
    a("s_cbranch_scc1 K1_IMG_LANE")
    a("s_cmp_eq_u32 s18, 25")
    a("s_cbranch_scc1 K1_IMG_MISC")
    a("s_cmp_ge_u32 s18, 16")
    a("s_cbranch_scc1 K1_IMG_WH2")
    a("s_and_b32 s19, s18, 3")
    a("s_lshl_b32 s19, s19, 11")
    a("v_lshl_add_u32 v6, v4, 10, s19")
    a("s_bfe_u32 s20, s18, 0x10002")
    a("s_lshl_b32 s21, s18, 10")
    a(f"s_add_u32 s21, s21, {WS_IMG + I_W}")
    a("s_waitcnt lgkmcnt(0)")
    a("s_cmp_ge_u32 s18, 8")
    a("s_cbranch_scc1 K1_IMG_C")
    a("s_lshl_b32 s20, s20, 6")
    a("v_lshl_add_u32 v6, v3, 1, v6")
    a("v_add_u32 v6, s20, v6")
    a("s_mov_b64 s[22:23], s[14:15]")
    a("s_branch K1_IMG_LD")
    a.label("K1_IMG_C")
    a("s_lshl_b32 s20, s20, 1")
    a("v_lshl_add_u32 v6, v3, 2, v6")
    a("v_add_u32 v6, s20, v6")
    a("s_mov_b64 s[22:23], s[26:27]")
    a.label("K1_IMG_LD")
    for kk in range(8):
        a(f"global_load_ushort v{8+kk}, v6, s[22:23] offset:{kk*128}")
    a("s_branch K1_IMG_ST")
    a.label("K1_IMG_WH2")
    a("s_sub_u32 s19, s18, 16")
    a("s_lshl_b32 s21, s19, 10")
    a(f"s_add_u32 s21, s21, {WS_IMG + I_WH2}")
    a("s_and_b32 s20, s19, 1")
    a("s_lshl_b32 s20, s20, 1")
    a("s_lshr_b32 s19, s19, 1")
    a("s_lshl_b32 s19, s19, 11")
    a("s_add_u32 s19, s19, s20")
    a("s_add_u32 s19, s19, 8192")
    a("v_lshl_add_u32 v6, v4, 9, s19")
    a("v_lshl_add_u32 v6, v3, 2, v6")
    a("s_waitcnt lgkmcnt(0)")
    for kk in range(8):
        a(f"global_load_ushort v{8+kk}, v6, s[26:27] offset:{(8*(kk >> 2) + (kk & 3))*128}")
    a.label("K1_IMG_ST")
    a("v_add_u32 v5, s21, v5")
    a("s_waitcnt vmcnt(0)")
    for i in range(4):
        a(f"v_lshl_or_b32 v{16+i}, v{9+2*i}, 16, v{8+2*i}")
    a("global_store_dwordx4 v5, v[16:19], s[16:17]")
    a("s_endpgm")
    a.label("K1_IMG_LANE")
    a("v_lshlrev_b32 v6, 1, v3")
    a("v_add_u32 v6, 0x4000, v6")
    a("s_waitcnt lgkmcnt(0)")
    for i, off in enumerate((0, 64, 128, 192)):
        a(f"global_load_ushort v{8+i}, v6, s[14:15] offset:{off}")
    a("v_lshlrev_b32 v5, 3, v2")
    a(f"v_add_u32 v5, {WS_IMG + I_WD}, v5")
    a("s_waitcnt vmcnt(0)")
    for r in (9, 11):
        a(f"v_lshlrev_b32 v{r}, 16, v{r}")
        a(f"v_mul_f32 v{r}, {NLOG2E}, v{r}")
        a(f"v_cvt_pk_bf16_f32 v20, v{r}, 0")
        a("v_lshlrev_b32 v20, 16, v20")
        a(f"v_sub_f32 v21, v{r}, v20")
        a(f"v_cvt_pk_bf16_f32 v{r}, v20, v21")
    a("v_cmp_gt_u32 vcc, 32, v2")
    for i, r in enumerate((8, 10, 9, 11)):
        a(f"v_cndmask_b32 v{16+i}, 0, v{r}, vcc" if i == 0 else f"v_cndmask_b32_e64 v{16+i}, 0, v{r}, vcc")
    a("s_mov_b32 exec_hi, 3")
    a("global_store_dwordx2 v5, v[16:17], s[16:17]")
    a("global_store_dwordx2 v5, v[18:19], s[16:17] offset:272")
    a("s_endpgm")
    a.label("K1_IMG_MISC")
    a("v_lshrrev_b32 v6, 3, v3")
    a("v_lshlrev_b32 v6, 5, v6")
    a("v_bfe_u32 v7, v3, 1, 1")
    a("v_lshl_add_u32 v6, v7, 4, v6")
    a("v_bfe_u32 v7, v3, 2, 1")
    a("v_lshl_add_u32 v6, v7, 3, v6")
    a("v_and_b32 v7, 1, v3")
    a("v_lshl_add_u32 v6, v7, 2, v6")
    a("s_waitcnt lgkmcnt(0)")
    a("global_load_dword v8, v6, s[24:25]")
    a("v_lshlrev_b32 v12, 2, v2")
    a(f"v_add_u32 v13, {WS_IMG}, v12")
    a("v_lshrrev_b32 v9, 2, v3")
    a("v_and_b32 v10, 1, v9")
    a("v_lshlrev_b32 v10, 4, v10")
    a("v_mov_b32 v11, 0x3f80")
    a("v_lshlrev_b32 v10, v10, v11")
    a("v_lshrrev_b32 v9, 1, v9")
    a("v_and_b32 v11, 3, v3")
    a("v_cmp_eq_u32 vcc, v9, v11")
    a("v_cndmask_b32 v10, 0, v10, vcc")
    a(f"v_add_u32 v14, {WS_IMG + I_OHT}, v12")
    a("s_mov_b64 exec, 0xffffffff")
    a("global_store_dword v14, v10, s[16:17]")
    a("s_waitcnt vmcnt(1)")
    a(f"global_store_dword v13, v8, s[16:17] offset:{I_WX}")
    a("s_endpgm")


def kernel1():
    a = Asm()
    a("s_cmp_ge_u32 s2, 512")
    a("s_cbranch_scc1 K1_END")
    a("s_load_dwordx8 s[4:11], s[0:1], 0")
    a("s_load_dwordx4 s[12:15], s[0:1], 32")
    a("s_load_dwordx2 s[16:17], s[0:1], 80")
    stamp(a, 64, 0)
    if OPT["diag"] == 3:
        for i in range(1, 7):
            a(f"s_mov_b32 s{64+i}, 0")
    a("v_lshrrev_b32 v1, 6, v0")
    a("v_and_b32 v2, 63, v0")
    a("v_readfirstlane_b32 s3, v1")
    a("s_cmp_ge_u32 s2, 256")
    a("s_cbranch_scc1 K1_TAB")
    k1_bin(a)
    a.label("K1_TAB")
    a("s_sub_u32 s18, s2, 256")
    a("s_cmp_ge_u32 s3, 4")
    a("s_cbranch_scc1 K1_TAB2")
    k1_btile(a)
    a.label("K1_TAB2")
    a("s_cmp_gt_u32 s3, 7")
    a("s_cbranch_scc1 K1_END")
    a("s_cmp_eq_u32 s3, 7")
    a("s_cbranch_scc1 K1_IMG")
    a("s_cmp_eq_u32 s3, 4")
    a("s_cbranch_scc1 K1_LUT")
    k1_pos(a)
    a.label("K1_LUT")
    k1_lut(a)
    a.label("K1_IMG")
    k1_img(a)
    a.label("K1_END")
    a("s_endpgm")
    return a


assert BASES[:4] == [0, 1280, 2560, 3584]

ACC0, ACC1, RAWA, RAWB, X0, OH, T, LA, CC, WE0, WE1, XE, VV, PS = 96, 112, 64, 80, 48, 40, 36, 32, 28, 16, 22, 10, 8, 4
vINF, vOHA, vTRA, vLB, vGA = 7, 3, 2, 1, 0
sB, sW, sREM, sJ, sFL, sNODE = 18, 19, 20, 21, 22, 23
sM = 24
sLO, sHI = 40, 42
SRD_B, SRD_POS = 44, 48
sSEL, sBASE, sT0, sT1, sT2, sT3, sLONG = 52, 53, 54, 55, 56, 57, 58
SRD_O = 60


def P(a, p):
    if OPT["prio"] == 1:
        a(f"s_setprio {p}")


def prog_prio(a, tag):
    if OPT["prio"] == 2:
        a("s_setprio 3")
        a(f"s_cmp_gt_u32 s{sREM}, {OPT.get('p3', 160)}")
        a(f"s_cbranch_scc1 K2_PP{tag}")
        a("s_setprio 2")
        a(f"s_cmp_gt_u32 s{sREM}, {OPT.get('p2', 96)}")
        a(f"s_cbranch_scc1 K2_PP{tag}")
        a("s_setprio 1")
        a(f"s_cmp_gt_u32 s{sREM}, {OPT.get('p1', 32)}")
        a(f"s_cbranch_scc1 K2_PP{tag}")
        a("s_setprio 0")
        a.label(f"K2_PP{tag}")


def G_reads(a, dst, imm):
    for g in range(4):
        a(f"ds_read_b128 {vr(dst+4*g, 4)}, v{vGA} offset:{L_SRC + imm + 32*g}")


def G_issue(a, dst, younger):
    for g in range(4):
        a(f"s_waitcnt lgkmcnt({3 - g + younger})")
        for r in range(4):
            q = dst + 4 * g + r
            if OPT["abl_g"]:
                a("s_nop 0")
            else:
                a(f"buffer_load_dword v{q}, v{q}, s[{SRD_B}:{SRD_B+3}], 0 offen")


def PA_reads(a):
    a(f"ds_read_addtid_b32 v{PS} offset:{L_SRC}")
    a(f"ds_read_addtid_b32 v{vINF} offset:{L_INF}")


def PA_issue(a):
    a(f"buffer_load_dwordx3 {vr(PS, 3)}, v{PS}, s[{SRD_POS}:{SRD_POS+3}], 0 idxen")
    a("s_add_u32 m0, m0, 256")


def PB_read_pos(a):
    a(f"v_lshrrev_b32 v{LA}, 4, v{vINF}")
    a(f"v_and_b32 v{LA}, 0xfe0, v{LA}")
    a(f"ds_read_b128 {vr(T, 4)}, v{LA} offset:{L_TAB + 16}")


def PB_read_oh(a):
    a(f"ds_read_b64 {vr(XE, 2)}, v{LA} offset:{L_TAB}")
    a(f"ds_read_b64 {vr(XE+4, 2)}, v{LA} offset:{L_TAB + 8}")


def PB_math(a):
    a(f"v_perm_b32 v{XE+3}, v{vINF}, v{vINF}, s{sSEL}")
    for i in range(3):
        a(f"v_sub_f32 v{T+i}, v{T+i}, v{PS+i}")
    a(f"v_xor_b32 v{vOHA}, v{T+3}, v{vLB}")
    a(f"v_cvt_pk_bf16_f32 v{VV}, v{T}, v{T+1}")
    a(f"v_cvt_pk_bf16_f32 v{VV+1}, v{T+2}, 1.0")
    a(f"v_lshlrev_b32 v{T}, 16, v{VV}")
    a(f"v_and_b32 v{T+1}, 0xffff0000, v{VV}")
    a(f"v_lshlrev_b32 v{T+2}, 16, v{VV+1}")
    if OPT["faithful_sq"]:
        for i in range(3):
            a(f"v_mul_f32 v{T+i}, v{T+i}, v{T+i}")
        a(f"v_cvt_pk_bf16_f32 v{T+3}, v{T}, v{T+1}")
        a(f"v_cvt_pk_bf16_f32 v{T+2}, 0, v{T+2}")
        a(f"v_lshlrev_b32 v{T}, 16, v{T+3}")
        a(f"v_and_b32 v{T+1}, 0xffff0000, v{T+3}")
        a(f"v_add_f32 v{T}, v{T}, v{T+1}")
        a(f"v_add_f32 v{T}, v{T}, v{T+2}")
    else:
        a(f"v_mul_f32 v{T}, v{T}, v{T}")
        a(f"v_fmac_f32 v{T}, v{T+1}, v{T+1}")
        a(f"v_fmac_f32 v{T}, v{T+2}, v{T+2}")
    a(f"v_cvt_pk_bf16_f32 v{XE+2}, v{T}, v{T}")


def PB_swap(a):
    a(f"v_permlane32_swap_b32 v{XE}, v{XE+4}")
    a(f"v_permlane32_swap_b32 v{XE+1}, v{XE+5}")


def emit_PB(a):
    PB_read_pos(a)
    PB_read_oh(a)
    a("s_waitcnt lgkmcnt(2)")
    PB_math(a)
    a("s_waitcnt lgkmcnt(0)")
    PB_swap(a)


def emit_masks(a):
    a(f"s_bfm_b64 s[{sT2}:{sT2+1}], s{sREM}, 0")
    a(f"s_cmp_ge_u32 s{sREM}, 64")
    a(f"s_cselect_b32 s{sLO}, -1, s{sT2}")
    a(f"s_cselect_b32 s{sHI+1}, -1, s{sT2+1}")


def lut_half(a, h):
    b = X0 + 8 * h
    for i in range(4):
        a(f"v_cvt_pk_bf16_f32 v{b+i}, v{b+2*i}, v{b+2*i+1}")
    for i in range(4):
        a(f"v_lshlrev_b16 v{b+4+i}, 1, v{b+i}")
        a(f"v_lshlrev_b16_sdwa v{LA+i}, 1, v{b+i} dst_sel:DWORD dst_unused:UNUSED_PAD src0_sel:DWORD src1_sel:WORD_1")
        if not OPT["abl_lut"]:
            a(f"ds_read_u16 v{b+4+i}, v{b+4+i} offset:{L_LUT}")
            a(f"ds_read_u16_d16_hi v{LA+i}, v{LA+i} offset:{L_LUT}")
    for i in range(4):
        a(f"v_pk_max_i16 v{b+i}, v{b+i}, 0")


def lut_merge(a, h):
    if OPT["ormfma"]:
        a(f"v_mfma_f32_32x32x16_bf16 {vr(ACC0, 16)}, {vr(LA, 4)}, {vr(OH+4*h, 4)}, {vr(ACC0, 16)}")
        return
    b = X0 + 8 * h
    P(a, 0)
    for i in range(4):
        a(f"v_or_b32 v{b+4+i}, v{b+4+i}, v{LA+i}")
    P(a, 1)


def valu_half(a, raw, h, extra=()):
    if extra:
        b = Asm()
        valu_half(b, raw, h)
        extra = list(extra)
        n, k = len(b.lines), 0
        for i, l in enumerate(b.lines):
            a(l)
            while k < len(extra) and (k + 1) * n <= (i + 1) * len(extra):
                a(extra[k])
                k += 1
        for l in extra[k:]:
            a(l)
        return
    if OPT["abl_trans"]:
        return
    for qq in range(2):
        xs = [raw + 8 * h + 4 * qq + i for i in range(4)]
        ts = [T + i for i in range(4)]
        for x, t in zip(xs, ts):
            a(f"v_exp_f32 v{t}, v{x}")
        if OPT["pk"]:
            for t in ts[::2]:
                a(f"v_pk_add_f32 {vr(t, 2)}, {vr(t, 2)}, 1.0 op_sel_hi:[1,0]")
        else:
            P(a, 0)
            for t in ts:
                a(f"v_add_f32 v{t}, 1.0, v{t}")
            P(a, 1)
        for t in ts:
            a(f"v_rcp_f32 v{t}, v{t}")
        if OPT["pk"]:
            for x, t in zip(xs[::2], ts[::2]):
                a(f"v_pk_mul_f32 {vr(t, 2)}, {vr(t, 2)}, {vr(x, 2)}")
        else:
            P(a, 0)
            for x, t in zip(xs, ts):
                a(f"v_mul_f32 v{t}, v{x}, v{t}")
            P(a, 1)
        for i in range(2):
            a(f"v_cvt_pk_bf16_f32 v{raw+8*h+2*qq+i}, v{ts[2*i]}, v{ts[2*i+1]}")


def seg3(a, raw, h):
    for acc, op in ((ACC0, X0 + 8 * h), (ACC1, raw + 8 * h), (ACC0, X0 + 8 * h + 4)):
        a(f"v_mfma_f32_32x32x16_bf16 {vr(acc, 16)}, {vr(op, 4)}, {vr(OH+4*h, 4)}, {vr(acc, 16)}")


def emit_tile(a, par):
    L = f"K2_T{par}"
    cur, nxt = (RAWA, RAWB) if par == 0 else (RAWB, RAWA)
    m = sLO if par == 0 else sHI
    zz = WE0 if par == 0 else WE0 + 4
    shadow = OPT["pbshadow"] and par == 1
    prog_prio(a, par)
    a(f"s_cmp_le_u32 s{sREM}, 32")
    a(f"s_cbranch_scc1 {L}_NG1")
    if shadow:
        PB_read_pos(a)
    G_reads(a, nxt, 128 if par == 0 else 256)
    a.label(f"{L}_NG1")
    a(f"s_mov_b64 exec, s[{m}:{m+1}]")
    a(f"ds_write_b64 v{vOHA}, {vr(VV, 2)}")
    a("s_mov_b64 exec, -1")
    for q in range(4):
        a(f"ds_read_b64_tr_b16 {vr(OH+2*q, 2)}, v{vTRA} offset:{512*q}")
    a(f"s_mov_b64 exec, s[{m}:{m+1}]")
    a(f"ds_write_b64 v{vOHA}, {vr(zz, 2)}")
    a("s_mov_b64 exec, -1")
    if par == 0:
        PA_reads(a)
    a("s_waitcnt vmcnt(0)")
    P(a, 0)
    for q in range(16):
        a(f"v_lshlrev_b32 v{X0+q}, 16, v{cur+q}")
    P(a, 1)
    xe = XE if par == 0 else XE + 2
    wo = 2 if par == 0 else 0
    a(f"v_mfma_f32_32x32x16_bf16 {vr(X0, 16)}, {vr(xe, 4)}, {vr(WE0+wo, 4)}, {vr(X0, 16)}")
    a(f"v_mfma_f32_32x32x16_bf16 {vr(cur, 16)}, {vr(xe, 4)}, {vr(WE1+wo, 4)}, {vr(cur, 16)}")
    a(f"s_cmp_le_u32 s{sREM}, 32")
    a(f"s_cbranch_scc1 {L}_NG2")
    younger = 8 if par == 0 else 6
    if shadow:
        PB_read_oh(a)
        younger += 2
        a(f"s_waitcnt lgkmcnt({4 + younger})")
        PB_math(a)
    if not OPT["glate"]:
        G_issue(a, nxt, younger)
        if par == 0:
            a(f"s_cmp_le_u32 s{sREM}, 64")
            a(f"s_cbranch_scc1 {L}_GO")
            a("s_waitcnt lgkmcnt(0)")
            PA_issue(a)
    if shadow or not OPT["glate"]:
        a(f"s_branch {L}_GO")
    a.label(f"{L}_NG2")
    a("s_nop 9")
    a.label(f"{L}_GO")
    lut_half(a, 0)
    valu_half(a, cur, 0)
    a("s_waitcnt lgkmcnt(0)")
    lut_merge(a, 0)
    a(f"s_cmp_le_u32 s{sREM}, 16")
    a(f"s_cbranch_scc1 {L}_HALF")
    lut_half(a, 1)
    if OPT["gspread"]:
        seg3(a, cur, 0)
        if shadow:
            PB_swap(a)
        a(f"s_cmp_le_u32 s{sREM}, 32")
        a(f"s_cbranch_scc1 {L}_LASTV")
        ex = [f"buffer_load_dword v{nxt+q}, v{nxt+q}, s[{SRD_B}:{SRD_B+3}], 0 offen" for q in range(16)]
        valu_half(a, cur, 1, ex)
        if par == 0:
            a(f"s_cmp_le_u32 s{sREM}, 64")
            a(f"s_cbranch_scc1 {L}_NG3")
            PA_issue(a)
            a.label(f"{L}_NG3")
        a("s_waitcnt lgkmcnt(0)")
        lut_merge(a, 1)
        seg3(a, cur, 1)
        a(f"s_sub_u32 s{sREM}, s{sREM}, 32")
        if par == 1:
            a(f"v_add_u32 v{vGA}, 256, v{vGA}")
            if not shadow:
                emit_PB(a)
            emit_masks(a)
            a("s_branch K2_T0")
        else:
            a("s_branch K2_T1")
        a.label(f"{L}_LASTV")
        valu_half(a, cur, 1)
        a("s_waitcnt lgkmcnt(0)")
        lut_merge(a, 1)
        seg3(a, cur, 1)
        a("s_branch K2_LOOP_DONE")
        a.label(f"{L}_HALF")
        seg3(a, cur, 0)
        a("s_branch K2_LOOP_DONE")
        return
    if OPT["glate"]:
        a(f"s_cmp_le_u32 s{sREM}, 32")
        a(f"s_cbranch_scc1 {L}_NG3")
        for q in range(16):
            a(f"buffer_load_dword v{nxt+q}, v{nxt+q}, s[{SRD_B}:{SRD_B+3}], 0 offen")
        if par == 0:
            a(f"s_cmp_le_u32 s{sREM}, 64")
            a(f"s_cbranch_scc1 {L}_NG3")
            PA_issue(a)
        a.label(f"{L}_NG3")
    seg3(a, cur, 0)
    if shadow:
        PB_swap(a)
    valu_half(a, cur, 1)
    a("s_waitcnt lgkmcnt(0)")
    lut_merge(a, 1)
    a(f"s_cmp_le_u32 s{sREM}, 32")
    seg3(a, cur, 1)
    a("s_cbranch_scc1 K2_LOOP_DONE")
    a(f"s_sub_u32 s{sREM}, s{sREM}, 32")
    if par == 1:
        a(f"v_add_u32 v{vGA}, 256, v{vGA}")
        if not shadow:
            emit_PB(a)
        emit_masks(a)
        a("s_branch K2_T0")
    else:
        a("s_branch K2_T1")
    a.label(f"{L}_HALF")
    seg3(a, cur, 0)
    a("s_branch K2_LOOP_DONE")


def prefetch(a, vL):
    a("s_lshr_b32 s3, s2, 3")
    a("s_lshl_b32 s3, s3, 4")
    a(f"s_add_u32 s3, s3, s{sW}")
    a(f"s_mul_i32 s{sT2}, s3, {49*128}")
    a(f"s_mul_i32 s{sT3}, s3, {7*128}")
    a(f"s_add_u32 s{sT3}, s{sT3}, {WS_POS - 49*128}")
    a(f"v_mov_b32 v47, s{sT2}")
    a(f"v_mov_b32 v46, s{sT3}")
    a(f"v_cmp_gt_u32 vcc, 49, v{vL}")
    a("v_cndmask_b32 v47, v46, v47, vcc")
    a(f"v_lshl_add_u32 v47, v{vL}, 7, v47")
    a("s_mov_b32 exec_hi, 0xffffff")
    a("global_load_dword v8, v47, s[16:17]")
    a("s_mov_b32 exec_hi, -1")


def lane_id(a, v):
    a(f"v_mbcnt_lo_u32_b32 v{v}, -1, 0")
    a(f"v_mbcnt_hi_u32_b32 v{v}, -1, v{v}")


def kernel2():
    a = Asm()
    vL = 60
    a("s_cmp_ge_u32 s2, 256")
    a("s_cbranch_scc1 K2_END")
    a("s_load_dwordx2 s[16:17], s[0:1], 80")
    a("s_load_dwordx2 s[4:5], s[0:1], 0")
    a("s_load_dwordx2 s[14:15], s[0:1], 64")
    stamp(a, 86, 0)
    if OPT["diag"] == 3:
        for i in range(1, 7):
            a(f"s_mov_b32 s{86+i}, 0")
    a("v_lshrrev_b32 v1, 6, v0")
    a(f"v_and_b32 v{vL}, 63, v0")
    a(f"v_readfirstlane_b32 s{sW}, v1")
    a(f"s_and_b32 s{sB}, s2, 7")
    a(f"s_lshl_b32 s{sB}, s{sB}, 5")
    a("s_lshr_b32 s3, s2, 3")
    a(f"s_add_u32 s{sB}, s{sB}, s3")

    def offT_addr(v):
        a(f"s_lshl_b32 s{sT0}, s{sB}, 4")
        a(f"s_add_u32 s{sT0}, s{sT0}, s{sW}")
        a(f"s_lshl_b32 s{sT0}, s{sT0}, 6")
        a(f"s_add_u32 s{sT0}, s{sT0}, {WS_OFF}")
        a(f"v_and_b32 v{v}, 48, v{vL}")
        a(f"v_add_u32 v{v}, s{sT0}, v{v}")
    offT_addr(61)
    a(f"v_lshlrev_b32 v62, 4, v{vL}")
    a(f"s_mul_i32 s{sNODE}, s{sB}, {BN}")
    a(f"s_add_u32 s{sNODE}, s{sNODE}, s{sW}")
    a("s_waitcnt lgkmcnt(0)")
    a("global_load_dwordx4 v[56:59], v61, s[16:17]")
    a(f"v_lshrrev_b32 v32, 3, v{vL}")
    a(f"v_xor_b32 v33, v32, v{vL}")
    a("v_and_b32 v33, 7, v33")
    a(f"s_lshl_b32 s{sT0}, s{sNODE}, 7")
    a(f"v_lshl_add_u32 v32, v32, 11, s{sT0}")
    a(f"v_min_u32 v32, {(N - 1) * 128}, v32")
    a("v_lshl_add_u32 v32, v33, 4, v32")
    a(f"s_lshl_b32 s{sT1}, s{sW}, 10")
    a(f"s_add_u32 m0, s{sT1}, {L_HIMG}")
    a(f"s_add_u32 s{sT0}, s{sT1}, {WS_IMG + I_W}")
    if OPT["bar0"]:
        a("s_barrier")
    a("global_load_lds_dwordx4 v32, s[4:5]")
    a(f"v_add_u32 v33, s{sT0}, v62")
    a(f"s_mov_b32 m0, s{sT1}")
    a(f"s_lshl_b32 s{sT0}, s{sW}, 12")
    a("global_load_lds_dwordx4 v33, s[16:17]")
    a(f"s_add_u32 m0, s{sT0}, {L_LUT}")
    a(f"s_add_u32 s{sT0}, s{sT0}, {WS_IMG + I_LUT}")
    a(f"v_add_u32 v47, s{sT0}, v62")
    nearly = (4, 0, 2)[OPT["lutpos"]]
    for i in range(nearly):
        a(f"global_load_lds_dwordx4 v47, s[16:17] offset:{1024*i}")
    a(f"s_cmp_lg_u32 s{sW}, 0")
    a("s_cbranch_scc1 K2_NOCNT")
    a(f"v_and_b32 v34, 15, v{vL}")
    a(f"v_cmp_lt_u32 vcc, 47, v{vL}")
    a("v_addc_co_u32 v34, vcc, 0, v34, vcc")
    a("v_min_u32 v35, 2, v34")
    a("v_lshlrev_b32 v35, 8, v35")
    a("v_lshl_add_u32 v35, v34, 10, v35")
    a("s_mov_b32 exec_lo, 0xffff0000")
    a("s_mov_b32 exec_hi, 0")
    a("v_mov_b32 v35, 0")
    a("s_mov_b64 exec, -1")
    a(f"v_lshlrev_b32 v34, 2, v{vL}")
    a(f"ds_write_b32 v34, v35 offset:{L_CNT}")
    a.label("K2_NOCNT")
    a(f"v_lshrrev_b32 v34, 5, v{vL}")
    a(f"v_xor_b32 v34, v34, v{vL}")
    a("v_and_b32 v34, 7, v34")
    a(f"v_and_b32 v35, 31, v{vL}")
    a(f"s_lshr_b32 s3, s{sW}, 2")
    a("s_lshl_b32 s3, s3, 12")
    a(f"s_add_u32 s3, s3, {L_HIMG}")
    a("v_lshl_add_u32 v35, v35, 7, s3")
    a("v_lshl_add_u32 v4, v34, 4, v35")
    for s_ in range(1, 4):
        a(f"v_xor_b32 v{4+s_}, {32*s_}, v4")
    a(f"s_lshl_b32 s3, s{sW}, 11")
    a(f"s_add_u32 s3, s3, {L_OH}")
    a(f"v_and_b32 v35, 31, v{vL}")
    a(f"v_bfe_u32 v34, v{vL}, 1, 2")
    a(f"v_lshl_add_u32 v{vLB}, v35, 6, s3")
    a(f"v_lshl_add_u32 v{vLB}, v34, 3, v{vLB}")
    a(f"v_lshrrev_b32 v36, 5, v{vL}")
    a(f"v_bfe_u32 v34, v{vL}, 2, 2")
    a("v_lshl_add_u32 v34, v36, 2, v34")
    a(f"v_lshl_add_u32 v{vTRA}, v34, 6, s3")
    a("v_lshrrev_b32 v34, 1, v34")
    a(f"v_xor_b32 v34, v34, v{vL}")
    a("v_and_b32 v34, 3, v34")
    a(f"v_lshl_add_u32 v{vTRA}, v34, 3, v{vTRA}")
    a(f"v_and_b32 v34, 16, v{vL}")
    a(f"v_lshl_add_u32 v{vTRA}, v34, 1, v{vTRA}")
    a(f"v_lshl_add_u32 v63, v{vL}, 3, s3")
    a("v_add_u32 v3, s3, v62")
    a("v_lshlrev_b32 v35, 3, v35")
    a("v_mov_b32 v34, 256")
    a(f"v_cmp_gt_u32 vcc, 32, v{vL}")
    a("v_cndmask_b32 v8, v34, v35, vcc")
    a("v_cndmask_b32_e64 v9, v35, v34, vcc")
    a("v_mov_b64 v[12:13], 0")
    a("v_mov_b64 v[14:15], 0")
    a(f"s_mov_b32 s{SRD_B}, s16")
    a(f"s_and_b32 s{SRD_B+1}, s17, 0xffff")
    a(f"s_or_b32 s{SRD_B+1}, s{SRD_B+1}, 0x80000000")
    a(f"s_mov_b32 s{SRD_B+2}, 0x100000")
    a(f"s_mov_b32 s{SRD_B+3}, 0xc00000")
    a(f"s_add_u32 s{SRD_POS}, s16, {WS_POS}")
    a(f"s_addc_u32 s{SRD_POS+1}, s17, 0")
    a(f"s_and_b32 s{SRD_POS+1}, s{SRD_POS+1}, 0xffff")
    a(f"s_or_b32 s{SRD_POS+1}, s{SRD_POS+1}, 0x40000")
    a(f"s_mov_b32 s{SRD_POS+2}, {N*16}")
    a(f"s_mov_b32 s{SRD_POS+3}, 0x20000")
    a(f"s_mov_b32 s{sSEL}, 0x03020302")
    a(f"s_mov_b64 s[{sLO}:{sLO+1}], 0")
    a(f"s_mov_b64 s[{sHI}:{sHI+1}], 0")
    a(f"s_mov_b32 s{sFL}, 0")
    a(f"s_min_u32 s{sBASE}, s{sW}, 2")
    a(f"s_lshl_b32 s{sBASE}, s{sBASE}, 8")
    a(f"s_add_u32 s{sBASE}, s{sBASE}, s{sT1}")
    a(f"v_lshl_add_u32 v{vGA}, v36, 4, s{sBASE}")

    def payload_addr(first=True):
        a(f"v_and_b32 v52, 15, v{vL}")
        a("v_lshlrev_b32 v52, 1, v52")
        if not first:
            a(f"s_lshl_b32 s{sT2}, s{sJ}, 5")
            a(f"v_add_u32 v52, s{sT2}, v52")
        a("v_add_u32 v53, 1, v52")
        a(f"v_lshrrev_b32 v54, 4, v{vL}")
        a(f"s_mul_i32 s{sT2}, s{sW}, {16*CHB}")
        a(f"s_add_u32 s{sT2}, s{sT2}, {WS_PAY}")
        a(f"v_lshl_add_u32 v55, v52, 3, s{sT2}")
        a(f"s_mov_b32 s{sT2}, {4*CHB}")
        a(f"v_mad_u32_u24 v54, v54, s{sT2}, v55")

    def payload_issue(first):
        if not first:
            a(f"s_bitcmp1_b32 s{sFL}, 0")
            a("s_cbranch_scc1 K2_KEEPM")
        for i in range(4):
            for k in range(2):
                a(f"v_cmp_lt_u32_sdwa s[{sM+4*i+2*k}:{sM+4*i+2*k+1}], v{52+k}, v{56+i} src0_sel:DWORD src1_sel:WORD_1")
        if not first:
            a.label("K2_KEEPM")
        for i in range(4):
            a(f"v_mad_u32_u16 v{48+i}, v{56+i}, 8, v54")
        for i in range(4):
            if first:
                a(f"s_mov_b64 exec, s[{sM+4*i}:{sM+4*i+1}]")
            else:
                a(f"s_or_b64 exec, s[{sM+4*i}:{sM+4*i+1}], s[{sM+4*i+2}:{sM+4*i+3}]")
            a(f"global_load_dwordx4 {vr(80+4*i, 4)}, v{48+i}, s[16:17]")
        a("s_mov_b64 exec, -1")
        a("v_max3_u32 v56, v56, v57, v58")
        a("v_max_u32 v56, v56, v59")
        if first:
            a(f"s_mov_b32 s{sT1}, {33 << 16}")
        else:
            a(f"s_lshl_b32 s{sT1}, s{sJ}, 21")
            a(f"s_add_u32 s{sT1}, s{sT1}, {33 << 16}")
        a(f"v_cmp_le_u32 s[{sLONG}:{sLONG+1}], s{sT1}, v56")

    payload_addr()
    a(f"s_waitcnt vmcnt({2 + nearly})")
    stamp(a, 86, 1)
    payload_issue(True)
    for i in range(nearly, 4):
        a(f"global_load_lds_dwordx4 v47, s[16:17] offset:{1024*i}")
    a(f"s_lshr_b32 s{sT1}, s{sW}, 2")
    a(f"s_lshl_b32 s{sT1}, s{sT1}, 13")
    a(f"s_and_b32 s{sLONG+4}, s{sW}, 3")
    a(f"s_lshl_b32 s3, s{sLONG+4}, 9")
    a(f"s_add_u32 s{sT1}, s{sT1}, s3")
    a(f"s_add_u32 s{sT1}, s{sT1}, {L_OH}")
    a(f"v_lshl_add_u32 v61, v{vL}, 3, s{sT1}")
    a(f"s_lshl_b32 s3, s{sLONG+4}, 12")
    a("v_add_u32 v49, s3, v62")
    a("s_waitcnt vmcnt(8) lgkmcnt(0)")
    a("s_barrier")
    stamp(a, 86, 2)
    for s_ in range(4):
        a(f"ds_read_b128 {vr(32+4*s_, 4)}, v{4+s_}")
        a(f"ds_read_b128 {vr(64+4*s_, 4)}, v49 offset:{1024*s_}")
    a(f"s_lshl_b32 s{sT1}, s{sW}, 10")
    a(f"s_cmp_ge_u32 s{sW}, 12")
    a("s_cbranch_scc1 K2_TABDMA")
    a(f"s_min_u32 s{sT1}, s{sT1}, 8192")
    a(f"s_add_u32 m0, s{sT1}, {L_WX}")
    a(f"s_add_u32 s{sT0}, s{sT1}, {WS_IMG + I_WX}")
    a(f"v_add_u32 v53, s{sT0}, v62")
    a("global_load_lds_dwordx4 v53, s[16:17]")
    a("s_branch K2_DMA_DONE")
    a.label("K2_TABDMA")
    a(f"s_add_u32 m0, s{sT1}, {L_TAB - 12*1024}")
    a(f"s_lshl_b32 s{sT0}, s{sW}, 5")
    a(f"s_sub_u32 s{sT0}, s{sT0}, 384")
    a(f"v_lshrrev_b32 v53, 1, v{vL}")
    a(f"v_add_u32 v53, s{sT0}, v53")
    a("v_and_b32 v54, 7, v53")
    a("v_lshlrev_b32 v54, 4, v54")
    a("v_lshrrev_b32 v53, 3, v53")
    a("v_add_u32 v53, v53, v54")
    a(f"v_add_u32 v54, {WS_IMG + I_OHT}, v54")
    a(f"s_mul_i32 s{sT0}, s{sB}, {BN*16}")
    a(f"s_add_u32 s{sT0}, s{sT0}, {WS_POS}")
    a(f"v_lshl_add_u32 v53, v53, 4, s{sT0}")
    a(f"s_mov_b32 s{sT2}, 0xaaaaaaaa")
    a(f"s_mov_b32 s{sT3}, 0xaaaaaaaa")
    a(f"v_cndmask_b32 v53, v54, v53, s[{sT2}:{sT3}]")
    a("global_load_lds_dwordx4 v53, s[16:17]")
    a.label("K2_DMA_DONE")
    a("s_waitcnt lgkmcnt(0)")
    a("s_barrier")
    for s in range(4):
        c = "0" if s == 0 else vr(96, 16)
        a(f"v_mfma_f32_32x32x16_bf16 {vr(96, 16)}, {vr(32+4*s, 4)}, {vr(64+4*s, 4)}, {c}")
    a(f"v_mfma_f32_32x32x16_bf16 {vr(112, 16)}, v[12:15], v[12:15], 0")
    a(f"v_lshlrev_b32 v50, 2, v{vL}")
    a("v_and_b32 v51, 63, v50")
    a("v_mov_b32 v48, 4")
    a(f"s_mov_b32 s{sT2}, {NLOG2E}")
    a(f"s_mov_b32 s{sT3}, {NLOG2E}")
    a("s_nop 4")
    a(f"s_cmp_lg_u32 s{sLONG+4}, 1")
    a("s_cbranch_scc1 K2_NOSC")
    for i in range(8):
        a(f"v_pk_mul_f32 {vr(96+2*i, 2)}, {vr(96+2*i, 2)}, s[{sT2}:{sT3}]")
    a.label("K2_NOSC")
    for i in range(8):
        a(f"v_cvt_pk_bf16_f32 v{32+i}, v{96+2*i}, v{97+2*i}")
    for g in range(4):
        a(f"ds_write_b64 v61, {vr(32+2*g, 2)} offset:{2048*g}")
    a(f"v_mfma_f32_32x32x16_bf16 {vr(96, 16)}, v[12:15], v[12:15], 0")
    a(f"s_waitcnt vmcnt({1 + 4 - nearly})")
    stamp(a, 86, 3)
    for u in range(8):
        a(f"s_mov_b64 exec, s[{sM+2*u}:{sM+2*u+1}]")
        a(f"v_and_b32 v{64+u}, 0x3c, v{81+2*u}")
        a(f"ds_add_rtn_u32 v{64+u}, v{64+u}, v48 offset:{L_CNT}")
    for u in range(8):
        a(f"s_mov_b64 exec, s[{sM+2*u}:{sM+2*u+1}]")
        a(f"s_waitcnt lgkmcnt({7 + u})")
        a(f"v_min_u32 v{64+u}, {L_INF - 4}, v{64+u}")
        a(f"ds_write_b32 v{64+u}, v{80+2*u} offset:{L_SRC}")
        a(f"ds_write_b32 v{64+u}, v{81+2*u} offset:{L_INF}")
    a(f"s_mov_b64 exec, s[{sLONG}:{sLONG+1}]")
    a("s_cbranch_execz K2_NOF0")
    a(f"ds_write_b32 v12, v48 offset:{L_CNT + 68}")
    a.label("K2_NOF0")
    a("s_mov_b64 exec, -1")
    a("s_waitcnt vmcnt(0) lgkmcnt(0)")
    a("s_barrier")
    stamp(a, 86, 4)
    a(f"ds_read_b32 v33, v50 offset:{L_CNT}")
    a(f"ds_read_b32 v34, v51 offset:{L_CNT + 192}")
    a(f"ds_read_b64 {vr(WE0+2, 2)}, v63")
    a(f"ds_read_b64 {vr(WE1+2, 2)}, v63 offset:512")
    a(f"ds_read_b64 {vr(CC, 2)}, v63 offset:1024")
    a(f"ds_read_b64 {vr(CC+2, 2)}, v63 offset:1536")
    a("ds_write_b128 v3, v[12:15]")
    a("ds_write_b128 v3, v[12:15] offset:1024")
    a(f"ds_read_b64 {vr(WE0, 2)}, v9 offset:{L_WD}")
    a(f"ds_read_b64 {vr(WE0+4, 2)}, v8 offset:{L_WD}")
    a(f"ds_read_b64 {vr(WE1, 2)}, v9 offset:{L_WD + 272}")
    a(f"ds_read_b64 {vr(WE1+4, 2)}, v8 offset:{L_WD + 272}")
    a("s_waitcnt lgkmcnt(10)")
    a("v_cmp_gt_u32 vcc, v33, v34")
    a(f"v_readlane_b32 s{sREM}, v33, s{sW}")
    a(f"v_readlane_b32 s{sT0}, v33, 17")
    a("s_and_b32 s3, vcc_lo, 0xffff")
    a(f"s_or_b32 s3, s3, s{sT0}")
    a("s_cbranch_scc1 K2_SLOW")
    a.label("K2_START")
    if OPT["startprio"]:
        a(f"s_setprio {OPT['startprio']}")
    a(f"s_sub_u32 s{sREM}, s{sREM}, s{sBASE}")
    a(f"s_lshr_b32 s{sREM}, s{sREM}, 2")
    a("s_cbranch_scc0 K2_LOOP_DONE")
    a(f"s_and_b32 s{sT0}, s{sREM}, 63")
    a("s_cbranch_scc0 K2_NOFILL")
    a(f"s_bfm_b64 s[{sT2}:{sT3}], s{sT0}, 0")
    a(f"s_andn2_b32 s{sT0}, s{sREM}, 63")
    a(f"s_lshl2_add_u32 m0, s{sT0}, s{sBASE}")
    a(f"s_not_b64 exec, s[{sT2}:{sT3}]")
    a(f"ds_write_addtid_b32 v12 offset:{L_SRC}")
    a(f"ds_write_addtid_b32 v12 offset:{L_INF}")
    a("s_mov_b64 exec, -1")
    a.label("K2_NOFILL")
    a(f"s_mov_b32 m0, s{sBASE}")
    G_reads(a, RAWA, 0)
    PA_reads(a)
    G_issue(a, RAWA, 2)
    a("s_waitcnt lgkmcnt(0)")
    PA_issue(a)
    emit_masks(a)
    a("s_waitcnt vmcnt(0)")
    emit_PB(a)
    stamp(a, 86, 5)
    if OPT["diag"] == 2:
        a("s_getreg_b32 s87, hwreg(HW_REG_HW_ID)")
        a("s_memtime s[94:95]")
        a("s_waitcnt lgkmcnt(0)")
        a("s_mov_b32 s88, s94")
    a.label("K2_T0")
    emit_tile(a, 0)
    a.label("K2_T1")
    emit_tile(a, 1)
    a.label("K2_SLOW")
    a(f"s_mov_b32 s{sJ}, -1")
    a(f"s_mov_b32 s{sFL}, 2")
    a.label("K2_ROUND")
    a("s_setprio 0")
    a("s_waitcnt lgkmcnt(0)")
    a("s_barrier")
    lane_id(a, vL)
    a(f"v_lshlrev_b32 v50, 2, v{vL}")
    a("v_and_b32 v51, 63, v50")
    a(f"s_cmp_lg_u32 s{sW}, 0")
    a("s_cbranch_scc1 K2_NOCNT2")
    a(f"ds_read_b32 v33, v51 offset:{L_CNT + 128}")
    a("v_mov_b32 v34, 0")
    a("s_waitcnt lgkmcnt(0)")
    a(f"ds_write_b32 v51, v33 offset:{L_CNT}")
    a(f"ds_write_b32 v51, v34 offset:{L_CNT + 64}")
    a.label("K2_NOCNT2")
    offT_addr(61)
    a("global_load_dwordx4 v[56:59], v61, s[16:17]")
    a(f"s_and_b32 s{sT1}, s{sFL}, 1")
    a(f"s_xor_b32 s{sT1}, s{sT1}, 1")
    a(f"s_add_u32 s{sJ}, s{sJ}, s{sT1}")
    payload_addr(False)
    a("s_waitcnt vmcnt(0) lgkmcnt(0)")
    a("s_barrier")
    payload_issue(False)
    a(f"v_lshlrev_b32 v50, 2, v{vL}")
    a("v_and_b32 v51, 63, v50")
    a("v_mov_b32 v48, 4")
    a("v_mov_b32 v49, 0")
    a(f"s_mov_b64 s[{sT2}:{sT3}], 0")
    a("s_waitcnt vmcnt(0)")
    for u in range(8):
        a(f"s_mov_b64 exec, s[{sM+2*u}:{sM+2*u+1}]")
        a(f"v_and_b32 v64, 0x3c, v{81+2*u}")
        a(f"ds_read_b32 v65, v64 offset:{L_CNT + 192}")
        a(f"ds_add_rtn_u32 v64, v64, v48 offset:{L_CNT}")
        a("s_waitcnt lgkmcnt(0)")
        a("v_cmp_lt_u32 vcc, v64, v65")
        a(f"s_andn2_b64 s[{sM+2*u}:{sM+2*u+1}], exec, vcc")
        a("s_mov_b64 exec, vcc")
        a(f"ds_write_b32 v64, v{80+2*u} offset:{L_SRC}")
        a(f"ds_write_b32 v64, v{81+2*u} offset:{L_INF}")
        a(f"s_or_b64 s[{sT2}:{sT3}], s[{sT2}:{sT3}], s[{sM+2*u}:{sM+2*u+1}]")
    a(f"s_mov_b64 exec, s[{sT2}:{sT3}]")
    a("s_cbranch_execz K2_NOF1")
    a(f"ds_write_b32 v49, v48 offset:{L_CNT + 64}")
    a.label("K2_NOF1")
    a(f"s_mov_b64 exec, s[{sLONG}:{sLONG+1}]")
    a("s_cbranch_execz K2_NOF2")
    a(f"ds_write_b32 v49, v48 offset:{L_CNT + 68}")
    a.label("K2_NOF2")
    a("s_mov_b64 exec, -1")
    a("s_waitcnt lgkmcnt(0)")
    a("s_barrier")
    a(f"ds_read_b32 v33, v50 offset:{L_CNT}")
    a(f"ds_read_b32 v34, v51 offset:{L_CNT + 192}")
    a(f"v_lshrrev_b32 v{vGA}, 5, v{vL}")
    a(f"v_lshl_add_u32 v{vGA}, v{vGA}, 4, s{sBASE}")
    a("v_mov_b32 v12, 0")
    a("s_waitcnt lgkmcnt(0)")
    a(f"v_readlane_b32 s{sT0}, v33, 16")
    a(f"v_readlane_b32 s{sT1}, v33, 17")
    a("v_min_u32 v33, v33, v34")
    a(f"s_cmp_lg_u32 s{sT0}, 0")
    a(f"s_cselect_b32 s{sFL}, 1, 0")
    a(f"s_cmp_lg_u32 s{sT1}, 0")
    a(f"s_cselect_b32 s{sT1}, 2, 0")
    a(f"s_or_b32 s{sFL}, s{sFL}, s{sT1}")
    a(f"v_readlane_b32 s{sREM}, v33, s{sW}")
    a("s_nop 1")
    a("s_branch K2_START")
    a.label("K2_LOOP_DONE")
    a(f"s_cmp_lg_u32 s{sFL}, 0")
    a("s_cbranch_scc1 K2_ROUND")
    stamp(a, 86, 6)
    if OPT["diag"] == 2:
        a("s_memtime s[94:95]")
        a("s_waitcnt lgkmcnt(0)")
        a("s_mov_b32 s89, s94")
    P(a, 0)
    vL, vJ, vHF = 4, 5, 6
    lane_id(a, vL)
    a(f"v_lshlrev_b32 v7, 4, v{vL}")
    BT = 64
    for ks in range(4):
        for tc in range(2):
            a(f"ds_read_b128 {vr(BT+8*ks+4*tc, 4)}, v7 offset:{L_WH2 + (2*ks + tc)*1024}")
    a(f"v_and_b32 v{vJ}, 31, v{vL}")
    a(f"v_lshrrev_b32 v{vHF}, 5, v{vL}")
    a(f"v_lshlrev_b32 v8, 4, v{vHF}")
    WX = 12
    for ks in range(4):
        a(f"ds_read_b128 {vr(WX+4*ks, 4)}, v8 offset:{L_WX + 32*ks}")
    a(f"v_lshrrev_b32 v9, 2, v{vJ}")
    a(f"s_lshl_b32 s{sT0}, s{sW}, 8")
    a(f"v_lshl_add_u32 v10, v9, 5, s{sT0}")
    a(f"v_lshl_add_u32 v9, v9, 4, s{sW}")
    a(f"v_lshl_add_u32 v11, v{vHF}, 3, v10")
    a(f"v_and_b32 v3, 3, v{vL}")
    a("v_lshl_add_u32 v10, v3, 2, v10")
    a(f"ds_read_b64 v[0:1], v11 offset:{L_TAB}")
    a(f"ds_read_b32 v2, v10 offset:{L_TAB + 16}")
    for q in range(16):
        a(f"v_mul_f32 v{ACC1+q}, {NLN2}, v{ACC1+q}")
    SP = 32
    for t in range(2):
        for i in range(8):
            b = (ACC0, ACC1)[t]
            a(f"v_cvt_pk_bf16_f32 v{SP+8*t+i}, v{b+2*i}, v{b+2*i+1}")
    D0, D1, D3 = 96, 112, 48
    a("s_waitcnt lgkmcnt(0)")
    a(f"v_mfma_f32_32x32x8bf16_1k {vr(D0, 16)}, v[0:1], {vr(CC, 2)}, 0")
    a(f"v_mfma_f32_32x32x8bf16_1k {vr(D1, 16)}, v[0:1], {vr(CC+2, 2)}, 0")
    a(f"s_lshl_b32 s{sT0}, s{sW}, 10")
    a(f"s_add_u32 s{sT0}, s{sT0}, {L_HIMG}")
    a(f"v_lshlrev_b32 v10, 2, v{vJ}")
    a("v_xor_b32 v11, v10, v8")
    a(f"v_lshl_add_u32 v11, v{vHF}, 7, v11")
    a(f"v_add_u32 v11, s{sT0}, v11")
    for ks in range(4):
        sp = vr(SP + 4 * ks, 4)
        a(f"v_mfma_f32_32x32x16_bf16 {vr(D0, 16)}, {sp}, {vr(BT+8*ks, 4)}, {vr(D0, 16)}")
        a(f"v_mfma_f32_32x32x16_bf16 {vr(D1, 16)}, {sp}, {vr(BT+8*ks+4, 4)}, {vr(D1, 16)}")
        g = ks
        if g:
            a(f"v_xor_b32 v7, {32*g}, v11")
        a(f"ds_read_b32 v{28+g}, v{7 if g else 11} offset:{256*g}")
    for ks in range(4):
        c = "0" if ks == 0 else vr(D3, 16)
        a(f"v_mfma_f32_32x32x16_bf16 {vr(D3, 16)}, {vr(WX+4*ks, 4)}, {vr(SP+4*ks, 4)}, {c}")
    a(f"s_mov_b32 s{SRD_O}, s14")
    a(f"s_mov_b32 s{SRD_O+1}, s15")
    a(f"s_mov_b32 s{SRD_O+2}, {N*128}")
    a(f"s_mov_b32 s{SRD_O+3}, 0x20000")
    a(f"s_lshl_b32 s{sT0}, s{sNODE}, 7")
    a(f"v_lshl_add_u32 v10, v{vHF}, 11, v10")
    a(f"v_add_u32 v10, s{sT0}, v10")
    a(f"s_mov_b32 s{sT1}, {BN}")
    a(f"v_cmp_gt_u32 s[{sT2}:{sT3}], s{sT1}, v9")
    a(f"s_mul_i32 s{sT1}, s{sB}, {BN}")
    a(f"v_add_u32 v9, s{sT1}, v9")
    a(f"v_cmp_gt_u32 vcc, {N}, v9")
    a(f"s_and_b32 s{sT2}, s{sT2}, vcc_lo")
    a(f"s_and_b32 s{sT2}, s{sT2}, 0x77777777")
    a(f"s_mov_b32 s{sT3}, 0")
    a("v_mul_u32_u24 v9, 6, v9")
    a("v_lshl_add_u32 v9, v3, 1, v9")
    a(f"v_add_u32 v9, {N*128}, v9")
    xs = [(D0, D1)[t] + 4 * g + 3 for g in range(4) for t in range(2)]
    ts = [64 + i for i in range(8)]
    hs = [72 + i for i in range(8)]
    for x, t in zip(xs, ts):
        a(f"v_mul_f32 v{t}, {NLOG2E}, v{x}")
    for t in ts:
        a(f"v_exp_f32 v{t}, v{t}")
    a("s_waitcnt lgkmcnt(0)")
    for g in range(4):
        a(f"v_lshlrev_b32 v{hs[2*g]}, 16, v{28+g}")
        a(f"v_and_b32 v{hs[2*g+1]}, 0xffff0000, v{28+g}")
    for t in ts:
        a(f"v_add_f32 v{t}, 1.0, v{t}")
    for t in ts:
        a(f"v_rcp_f32 v{t}, v{t}")
    a(f"v_add_f32 v2, v2, v{D3}")
    for x, t, h in zip(xs, ts, hs):
        a(f"v_fmac_f32 v{h}, v{x}, v{t}")
    a("v_cvt_pk_bf16_f32 v2, v2, v2")
    for g in range(4):
        a(f"v_cvt_pk_bf16_f32 v{28+g}, v{hs[2*g]}, v{hs[2*g+1]}")
    a("s_movk_i32 s24, 0x1000")
    a("s_movk_i32 s25, 0x2000")
    a("s_movk_i32 s26, 0x3000")
    for g in range(3):
        a(f"buffer_store_dword v{28+g}, v10, s[{SRD_O}:{SRD_O+3}], {'0' if g == 0 else 's' + str(23+g)} offen")
    a(f"s_mov_b64 exec, s[{sT2}:{sT3}]")
    a("s_cbranch_execz K2_NOPOS")
    a("global_store_short v9, v2, s[14:15]")
    a.label("K2_NOPOS")
    a(f"s_cmp_ge_u32 s{sW}, {BN - 96}")
    a("s_cbranch_scc1 K2_FIN")
    a("s_mov_b64 exec, 0xffffffff")
    a(f"buffer_store_dword v31, v10, s[{SRD_O}:{SRD_O+3}], s26 offen")
    a.label("K2_FIN")
    stamps_out(a, 86, 1, sW)
    a.label("K2_END")
    a("s_endpgm")
    return a


HEADER = """; EGNN layer on gfx950: launch 1 bins the edges by destination bucket and builds per-node tables,
"""


def desc(name, vg, sg):
    return f""".p2align 6
.amdhsa_kernel {name}
  .amdhsa_next_free_vgpr {vg}
  .amdhsa_next_free_sgpr {sg}
  .amdhsa_accum_offset {vg}
  .amdhsa_group_segment_fixed_size 0
  .amdhsa_kernarg_size 88
  .amdhsa_user_sgpr_count 2
  .amdhsa_user_sgpr_kernarg_segment_ptr 1
  .amdhsa_system_sgpr_workgroup_id_x 1
  .amdhsa_float_denorm_mode_32 3
.end_amdhsa_kernel
"""


def make_safe(k):
    out = []
    for l in k.lines:
        if l.startswith("buffer_load_dword ") and f"s[{SRD_B}:{SRD_B+3}]" in l:
            v = l.split()[2].rstrip(",")
            out.append(f"v_min_u32 {v}, {(N - 1) * 4}, {v}")
        out.append(l)
    k.lines = out


def build():
    s = HEADER
    s += f"; @launch kernel=bin_kernel grid=(512,1,1) block=({K1_THREADS},1,1) lds={K1_LDS + 4096}\n"
    s += f"; @launch kernel=edge_kernel grid=(256,1,1) block=(1024,1,1) lds={K2_LDS}\n"
    s += '.amdgcn_target "amdgcn-amd-amdhsa--gfx950"\n.text\n'
    ks = [("bin_kernel", kernel1(), 64, 74 if OPT["diag"] else 40), ("edge_kernel", kernel2(), 128, 96 if OPT["diag"] else 72)]
    for name, k, vg, sg in ks:
        if OPT["safe"]:
            make_safe(k)
        s += f".globl {name}\n.p2align 8\n.type {name},@function\n{name}:\n" + k.render()
    s += '.section .rodata,"a"\n'
    for name, k, vg, sg in ks:
        s += desc(name, vg, sg)
    return s


if __name__ == "__main__":
    out = sys.argv[1] if len(sys.argv) > 1 else "standalone__cheap_equivariant_egnn__graph.s"
    for arg in sys.argv[2:]:
        k, v = arg.split("=")
        OPT[k] = v if k.startswith('st_') else int(v)
    open(out, "w").write(build())
    print("wrote", out, "K2_LDS", K2_LDS)
```

```python
import struct
import sys
from asmlib import Asm

N = 25000
E = 800000
BN = 98
CH = 3128
CHB = 25088
K1_THREADS = 832
WS_B = 0
WS_PAY0 = 4 << 20
BSTR = 32768 + 256
WS_POS = 13 << 20
WS_FLAG = 14 << 20
WS_EPOCH = WS_FLAG + 65536
WS_POOL = 15 << 20
PSTR = 25088
WS_DIAG = 24 << 20

CAPS = [320, 320] + [256] * 14
BASES = [sum(CAPS[:g]) * 4 for g in range(17)]
L_SRC = 0
L_INF = BASES[16]
L_CNT = 2 * L_INF
L_WX = L_CNT + 384
L_WD = L_WX + 128
L_WH2 = L_WD + 544 + 96
L_TAB = L_WH2 + 8192
L_LUT = L_TAB + 4096
L_HIMG = L_LUT + 65536
L_OH = L_HIMG + 16384
K_LDS = L_OH + 32768
L_ST0 = 0
L_HIST = 32768
L_ST1 = L_LUT
L_WT = L_LUT + PSTR
L_INFO = L_WT + 24576
assert L_LUT < 65536 and L_OH % 64 == 0 and L_HIMG % 128 == 0 and K_LDS <= 163840, K_LDS
assert L_HIST + 1024 <= L_CNT and L_INFO + 2048 <= L_HIMG and L_WH2 % 128 == 0, (L_WH2, L_TAB)


def f2u(x):
    return struct.unpack("<I", struct.pack("<f", x))[0]


LOG2E = 1.4426950408889634
NLOG2E = hex(f2u(-LOG2E))
PLOG2E = hex(f2u(LOG2E))
NLN2 = hex(f2u(-0.6931471805599453))

OPT = dict(faithful_sq=1, prio=2, pk=0, diag=0, abl_lut=0, abl_g=0, abl_trans=0, startprio=0, bwide=1, st_pay='sc1', st_b='sc1', ormfma=0, pbshadow=1, glate=1, gspread=1, pf=0, safe=0, bar0=1, lutpos=1, bal=1)


def stamp(a, base, i):
    if OPT["diag"]:
        a("s_waitcnt lgkmcnt(0)")
        a(f"s_memrealtime s[{base+8}:{base+9}]")
        a("s_waitcnt lgkmcnt(0)")
        a(f"s_mov_b32 s{base+i}, s{base+8}")


def stamps_out(a, base, kidx, swave):
    if OPT["diag"] == 3:
        a("s_waitcnt vmcnt(0)")
        stamp(a, base, 7)
        OPT["_n"] = OPT.get("_n", 0) + 1
        a("s_and_b32 s4, s2, 15")
        if not kidx:
            a(f"s_or_b32 s4, s4, s{swave}")
        a("s_cmp_lg_u32 s4, 0")
        a(f"s_cbranch_scc1 DBG_SKIP{OPT['_n']}")
        a(f"s_load_dwordx2 s[4:5], s[0:1], 72")
        a("s_waitcnt lgkmcnt(0)")
        a(f"s_add_u32 s4, s4, {32 if kidx else 512}")
        a("s_addc_u32 s5, s5, 0")
        a(f"s_not_b32 s{base}, s{base}")
        a("s_mov_b64 exec, 1")
        a("v_mov_b32 v0, 0")
        for i in range(8):
            a(f"v_mov_b32 v1, s{base+i}")
            a(f"global_atomic_umax v0, v1, s[4:5] offset:{4*i}")
        a.label(f"DBG_SKIP{OPT['_n']}")
    elif OPT["diag"]:
        a("s_waitcnt vmcnt(0)")
        stamp(a, base, 7)
        a("s_mov_b64 exec, 1")
        a(f"s_lshl_b32 s{base+8}, s2, 4")
        a(f"s_add_u32 s{base+8}, s{base+8}, s{swave}")
        a(f"s_lshl_b32 s{base+8}, s{base+8}, 5")
        a(f"s_add_u32 s{base+8}, s{base+8}, {WS_DIAG + kidx * (1 << 20)}")
        a(f"v_mov_b32 v0, s{base+8}")
        for i in range(8):
            a(f"v_mov_b32 v1, s{base+i}")
            a(f"global_store_dword v0, v1, s[16:17] offset:{4*i}")


def vr(b, n):
    return f"v[{b}:{b+n-1}]"


assert BASES[:4] == [0, 1280, 2560, 3584]

ACC0, ACC1, RAWA, RAWB, X0, OH, T, LA, CC, WE0, WE1, XE, VV, PS = 96, 112, 64, 80, 48, 40, 36, 32, 28, 16, 22, 10, 8, 4
vINF, vOHA, vTRA, vLB, vGA = 7, 3, 2, 1, 0
sB, sW, sREM, sJ, sFL, sNODE = 18, 19, 20, 21, 22, 23
sM = 24
sLO, sHI = 40, 42
SRD_B, SRD_POS = 44, 48
sSEL, sBASE, sT0, sT1, sT2, sT3, sLONG = 52, 53, 54, 55, 56, 57, 58
SRD_O = 60


def P(a, p):
    if OPT["prio"] == 1:
        a(f"s_setprio {p}")


def prog_prio(a, tag):
    if OPT["prio"] == 2:
        a("s_setprio 3")
        a(f"s_cmp_gt_u32 s{sREM}, {OPT.get('p3', 160)}")
        a(f"s_cbranch_scc1 K2_PP{tag}")
        a("s_setprio 2")
        a(f"s_cmp_gt_u32 s{sREM}, {OPT.get('p2', 96)}")
        a(f"s_cbranch_scc1 K2_PP{tag}")
        a("s_setprio 1")
        a(f"s_cmp_gt_u32 s{sREM}, {OPT.get('p1', 32)}")
        a(f"s_cbranch_scc1 K2_PP{tag}")
        a("s_setprio 0")
        a.label(f"K2_PP{tag}")


def G_reads(a, dst, imm):
    for g in range(4):
        a(f"ds_read_b128 {vr(dst+4*g, 4)}, v{vGA} offset:{L_SRC + imm + 32*g}")


def G_issue(a, dst, younger):
    for g in range(4):
        a(f"s_waitcnt lgkmcnt({3 - g + younger})")
        for r in range(4):
            q = dst + 4 * g + r
            if OPT["abl_g"]:
                a("s_nop 0")
            else:
                a(f"buffer_load_dword v{q}, v{q}, s[{SRD_B}:{SRD_B+3}], 0 offen")


def PA_reads(a):
    a(f"ds_read_addtid_b32 v{PS} offset:{L_SRC}")
    a(f"ds_read_addtid_b32 v{vINF} offset:{L_INF}")


def PA_issue(a):
    a(f"buffer_load_dwordx3 {vr(PS, 3)}, v{PS}, s[{SRD_POS}:{SRD_POS+3}], 0 idxen")
    a("s_add_u32 m0, m0, 256")


def PB_read_pos(a):
    a(f"v_lshrrev_b32 v{LA}, 4, v{vINF}")
    a(f"v_and_b32 v{LA}, 0xfe0, v{LA}")
    a(f"ds_read_b128 {vr(T, 4)}, v{LA} offset:{L_TAB + 16}")


def PB_read_oh(a):
    a(f"ds_read_b64 {vr(XE, 2)}, v{LA} offset:{L_TAB}")
    a(f"ds_read_b64 {vr(XE+4, 2)}, v{LA} offset:{L_TAB + 8}")


def PB_math(a):
    a(f"v_perm_b32 v{XE+3}, v{vINF}, v{vINF}, s{sSEL}")
    for i in range(3):
        a(f"v_sub_f32 v{T+i}, v{T+i}, v{PS+i}")
    a(f"v_xor_b32 v{vOHA}, v{T+3}, v{vLB}")
    a(f"v_cvt_pk_bf16_f32 v{VV}, v{T}, v{T+1}")
    a(f"v_cvt_pk_bf16_f32 v{VV+1}, v{T+2}, 1.0")
    a(f"v_lshlrev_b32 v{T}, 16, v{VV}")
    a(f"v_and_b32 v{T+1}, 0xffff0000, v{VV}")
    a(f"v_lshlrev_b32 v{T+2}, 16, v{VV+1}")
    if OPT["faithful_sq"]:
        for i in range(3):
            a(f"v_mul_f32 v{T+i}, v{T+i}, v{T+i}")
        a(f"v_cvt_pk_bf16_f32 v{T+3}, v{T}, v{T+1}")
        a(f"v_cvt_pk_bf16_f32 v{T+2}, 0, v{T+2}")
        a(f"v_lshlrev_b32 v{T}, 16, v{T+3}")
        a(f"v_and_b32 v{T+1}, 0xffff0000, v{T+3}")
        a(f"v_add_f32 v{T}, v{T}, v{T+1}")
        a(f"v_add_f32 v{T}, v{T}, v{T+2}")
    else:
        a(f"v_mul_f32 v{T}, v{T}, v{T}")
        a(f"v_fmac_f32 v{T}, v{T+1}, v{T+1}")
        a(f"v_fmac_f32 v{T}, v{T+2}, v{T+2}")
    a(f"v_cvt_pk_bf16_f32 v{XE+2}, v{T}, v{T}")


def PB_swap(a):
    a(f"v_permlane32_swap_b32 v{XE}, v{XE+4}")
    a(f"v_permlane32_swap_b32 v{XE+1}, v{XE+5}")


def emit_PB(a):
    PB_read_pos(a)
    PB_read_oh(a)
    a("s_waitcnt lgkmcnt(2)")
    PB_math(a)
    a("s_waitcnt lgkmcnt(0)")
    PB_swap(a)


def emit_masks(a):
    a(f"s_bfm_b64 s[{sT2}:{sT2+1}], s{sREM}, 0")
    a(f"s_cmp_ge_u32 s{sREM}, 64")
    a(f"s_cselect_b32 s{sLO}, -1, s{sT2}")
    a(f"s_cselect_b32 s{sHI+1}, -1, s{sT2+1}")


def lut_half(a, h):
    b = X0 + 8 * h
    for i in range(4):
        a(f"v_cvt_pk_bf16_f32 v{b+i}, v{b+2*i}, v{b+2*i+1}")
    for i in range(4):
        a(f"v_lshlrev_b16 v{b+4+i}, 1, v{b+i}")
        a(f"v_lshlrev_b16_sdwa v{LA+i}, 1, v{b+i} dst_sel:DWORD dst_unused:UNUSED_PAD src0_sel:DWORD src1_sel:WORD_1")
        if not OPT["abl_lut"]:
            a(f"ds_read_u16 v{b+4+i}, v{b+4+i} offset:{L_LUT}")
            a(f"ds_read_u16_d16_hi v{LA+i}, v{LA+i} offset:{L_LUT}")
    for i in range(4):
        a(f"v_pk_max_i16 v{b+i}, v{b+i}, 0")


def lut_merge(a, h):
    if OPT["ormfma"]:
        a(f"v_mfma_f32_32x32x16_bf16 {vr(ACC0, 16)}, {vr(LA, 4)}, {vr(OH+4*h, 4)}, {vr(ACC0, 16)}")
        return
    b = X0 + 8 * h
    P(a, 0)
    for i in range(4):
        a(f"v_or_b32 v{b+4+i}, v{b+4+i}, v{LA+i}")
    P(a, 1)


def valu_half(a, raw, h, extra=()):
    if extra:
        b = Asm()
        valu_half(b, raw, h)
        extra = list(extra)
        n, k = len(b.lines), 0
        for i, l in enumerate(b.lines):
            a(l)
            while k < len(extra) and (k + 1) * n <= (i + 1) * len(extra):
                a(extra[k])
                k += 1
        for l in extra[k:]:
            a(l)
        return
    if OPT["abl_trans"]:
        return
    for qq in range(2):
        xs = [raw + 8 * h + 4 * qq + i for i in range(4)]
        ts = [T + i for i in range(4)]
        for x, t in zip(xs, ts):
            a(f"v_exp_f32 v{t}, v{x}")
        if OPT["pk"]:
            for t in ts[::2]:
                a(f"v_pk_add_f32 {vr(t, 2)}, {vr(t, 2)}, 1.0 op_sel_hi:[1,0]")
        else:
            P(a, 0)
            for t in ts:
                a(f"v_add_f32 v{t}, 1.0, v{t}")
            P(a, 1)
        for t in ts:
            a(f"v_rcp_f32 v{t}, v{t}")
        if OPT["pk"]:
            for x, t in zip(xs[::2], ts[::2]):
                a(f"v_pk_mul_f32 {vr(t, 2)}, {vr(t, 2)}, {vr(x, 2)}")
        else:
            P(a, 0)
            for x, t in zip(xs, ts):
                a(f"v_mul_f32 v{t}, v{x}, v{t}")
            P(a, 1)
        for i in range(2):
            a(f"v_cvt_pk_bf16_f32 v{raw+8*h+2*qq+i}, v{ts[2*i]}, v{ts[2*i+1]}")


def seg3(a, raw, h):
    for acc, op in ((ACC0, X0 + 8 * h), (ACC1, raw + 8 * h), (ACC0, X0 + 8 * h + 4)):
        a(f"v_mfma_f32_32x32x16_bf16 {vr(acc, 16)}, {vr(op, 4)}, {vr(OH+4*h, 4)}, {vr(acc, 16)}")


def emit_tile(a, par):
    L = f"K2_T{par}"
    cur, nxt = (RAWA, RAWB) if par == 0 else (RAWB, RAWA)
    m = sLO if par == 0 else sHI
    zz = WE0 if par == 0 else WE0 + 4
    shadow = OPT["pbshadow"] and par == 1
    prog_prio(a, par)
    a(f"s_cmp_le_u32 s{sREM}, 32")
    a(f"s_cbranch_scc1 {L}_NG1")
    if shadow:
        PB_read_pos(a)
    G_reads(a, nxt, 128 if par == 0 else 256)
    a.label(f"{L}_NG1")
    a(f"s_mov_b64 exec, s[{m}:{m+1}]")
    a(f"ds_write_b64 v{vOHA}, {vr(VV, 2)}")
    a("s_mov_b64 exec, -1")
    for q in range(4):
        a(f"ds_read_b64_tr_b16 {vr(OH+2*q, 2)}, v{vTRA} offset:{512*q}")
    a(f"s_mov_b64 exec, s[{m}:{m+1}]")
    a(f"ds_write_b64 v{vOHA}, {vr(zz, 2)}")
    a("s_mov_b64 exec, -1")
    if par == 0:
        PA_reads(a)
    a("s_waitcnt vmcnt(0)")
    P(a, 0)
    for q in range(16):
        a(f"v_lshlrev_b32 v{X0+q}, 16, v{cur+q}")
    P(a, 1)
    xe = XE if par == 0 else XE + 2
    wo = 2 if par == 0 else 0
    a(f"v_mfma_f32_32x32x16_bf16 {vr(X0, 16)}, {vr(xe, 4)}, {vr(WE0+wo, 4)}, {vr(X0, 16)}")
    a(f"v_mfma_f32_32x32x16_bf16 {vr(cur, 16)}, {vr(xe, 4)}, {vr(WE1+wo, 4)}, {vr(cur, 16)}")
    a(f"s_cmp_le_u32 s{sREM}, 32")
    a(f"s_cbranch_scc1 {L}_NG2")
    younger = 8 if par == 0 else 6
    if shadow:
        PB_read_oh(a)
        younger += 2
        a(f"s_waitcnt lgkmcnt({4 + younger})")
        PB_math(a)
    if not OPT["glate"]:
        G_issue(a, nxt, younger)
        if par == 0:
            a(f"s_cmp_le_u32 s{sREM}, 64")
            a(f"s_cbranch_scc1 {L}_GO")
            a("s_waitcnt lgkmcnt(0)")
            PA_issue(a)
    if shadow or not OPT["glate"]:
        a(f"s_branch {L}_GO")
    a.label(f"{L}_NG2")
    a("s_nop 9")
    a.label(f"{L}_GO")
    lut_half(a, 0)
    valu_half(a, cur, 0)
    a("s_waitcnt lgkmcnt(0)")
    lut_merge(a, 0)
    a(f"s_cmp_le_u32 s{sREM}, 16")
    a(f"s_cbranch_scc1 {L}_HALF")
    lut_half(a, 1)
    if OPT["gspread"]:
        seg3(a, cur, 0)
        if shadow:
            PB_swap(a)
        a(f"s_cmp_le_u32 s{sREM}, 32")
        a(f"s_cbranch_scc1 {L}_LASTV")
        ex = [f"buffer_load_dword v{nxt+q}, v{nxt+q}, s[{SRD_B}:{SRD_B+3}], 0 offen" for q in range(16)]
        valu_half(a, cur, 1, ex)
        if par == 0:
            a(f"s_cmp_le_u32 s{sREM}, 64")
            a(f"s_cbranch_scc1 {L}_NG3")
            PA_issue(a)
            a.label(f"{L}_NG3")
        a("s_waitcnt lgkmcnt(0)")
        lut_merge(a, 1)
        seg3(a, cur, 1)
        a(f"s_sub_u32 s{sREM}, s{sREM}, 32")
        if par == 1:
            a(f"v_add_u32 v{vGA}, 256, v{vGA}")
            if not shadow:
                emit_PB(a)
            emit_masks(a)
            a("s_branch K2_T0")
        else:
            a("s_branch K2_T1")
        a.label(f"{L}_LASTV")
        valu_half(a, cur, 1)
        a("s_waitcnt lgkmcnt(0)")
        lut_merge(a, 1)
        seg3(a, cur, 1)
        a("s_branch K2_LOOP_DONE")
        a.label(f"{L}_HALF")
        seg3(a, cur, 0)
        a("s_branch K2_LOOP_DONE")
        return
    if OPT["glate"]:
        a(f"s_cmp_le_u32 s{sREM}, 32")
        a(f"s_cbranch_scc1 {L}_NG3")
        for q in range(16):
            a(f"buffer_load_dword v{nxt+q}, v{nxt+q}, s[{SRD_B}:{SRD_B+3}], 0 offen")
        if par == 0:
            a(f"s_cmp_le_u32 s{sREM}, 64")
            a(f"s_cbranch_scc1 {L}_NG3")
            PA_issue(a)
        a.label(f"{L}_NG3")
    seg3(a, cur, 0)
    if shadow:
        PB_swap(a)
    valu_half(a, cur, 1)
    a("s_waitcnt lgkmcnt(0)")
    lut_merge(a, 1)
    a(f"s_cmp_le_u32 s{sREM}, 32")
    seg3(a, cur, 1)
    a("s_cbranch_scc1 K2_LOOP_DONE")
    a(f"s_sub_u32 s{sREM}, s{sREM}, 32")
    if par == 1:
        a(f"v_add_u32 v{vGA}, 256, v{vGA}")
        if not shadow:
            emit_PB(a)
        emit_masks(a)
        a("s_branch K2_T0")
    else:
        a("s_branch K2_T1")
    a.label(f"{L}_HALF")
    seg3(a, cur, 0)
    a("s_branch K2_LOOP_DONE")


def lane_id(a, v):
    a(f"v_mbcnt_lo_u32_b32 v{v}, -1, 0")
    a(f"v_mbcnt_hi_u32_b32 v{v}, -1, v{v}")


sTAG, sG, sRK, sVAL, sA0, sA1, sPC = 72, 73, 74, 76, 78, 80, 82
POLL_MAX = 1 << 18


def st1(a, i):
    if OPT["diag"] == 1:
        stamp(a, 86, i)


def append4(a, data, masks, tmp):
    for u in range(4):
        a(f"s_mov_b64 exec, s[{masks+2*u}:{masks+2*u+1}]")
        a(f"v_lshrrev_b32 v{tmp+u}, 10, v{data+2*u+1}")
        a(f"v_and_b32 v{tmp+u}, 0x3c, v{tmp+u}")
        a(f"ds_add_rtn_u32 v{tmp+u}, v{tmp+u}, v48 offset:{L_CNT}")
    for u in range(4):
        a(f"s_mov_b64 exec, s[{masks+2*u}:{masks+2*u+1}]")
        a(f"s_waitcnt lgkmcnt({3 + u})")
        a(f"v_min_u32 v{tmp+u}, {L_INF - 4}, v{tmp+u}")
        a(f"ds_write_b32 v{tmp+u}, v{data+2*u} offset:{L_SRC}")
        a(f"ds_write_b32 v{tmp+u}, v{data+2*u+1} offset:{L_INF}")
    a("s_mov_b64 exec, -1")


def kernel():
    a = Asm()
    vL, vT = 60, 61
    a("s_cmp_ge_u32 s2, 256")
    a("s_cbranch_scc1 K2_END")
    a("s_load_dwordx8 s[4:11], s[0:1], 0")
    a("s_load_dwordx8 s[64:71], s[0:1], 32")
    a("s_load_dwordx2 s[14:15], s[0:1], 64")
    a("s_load_dwordx2 s[16:17], s[0:1], 80")
    stamp(a, 86, 0)
    a("v_lshrrev_b32 v1, 6, v0")
    a(f"v_mov_b32 v{vT}, v0")
    a(f"v_readfirstlane_b32 s{sW}, v1")
    a(f"s_and_b32 s{sB}, s2, 7")
    a(f"s_lshl_b32 s{sB}, s{sB}, 5")
    a("s_lshr_b32 s3, s2, 3")
    a(f"s_add_u32 s{sB}, s{sB}, s3")
    a(f"s_mul_i32 s3, s{sB}, {CH}")
    a("v_lshl_add_u32 v3, v0, 2, s3")
    a(f"v_cmp_gt_u32 vcc, {CH // 4}, v0")
    a(f"s_mov_b32 s{sT0}, {E}")
    a(f"v_cmp_gt_u32 s[{sVAL}:{sVAL+1}], s{sT0}, v3")
    a("v_lshlrev_b32 v4, 2, v3")
    a("v_lshlrev_b32 v5, 1, v3")
    a(f"s_and_b64 s[{sVAL}:{sVAL+1}], s[{sVAL}:{sVAL+1}], vcc")
    a(f"v_and_b32 v{vL}, 63, v0")
    a(f"v_mov_b32 v6, {WS_EPOCH}")
    a(f"s_cmp_gt_u32 s{sW}, 12")
    a("s_waitcnt lgkmcnt(0)")
    a("s_cbranch_scc1 F_NOEDGE0")
    a(f"s_mov_b64 exec, s[{sVAL}:{sVAL+1}]")
    a("global_load_dwordx4 v[8:11], v4, s[64:65]")
    a("global_load_dwordx4 v[12:15], v4, s[10:11]")
    a("global_load_dwordx2 v[16:17], v5, s[8:9]")
    a("s_mov_b64 exec, -1")
    a.label("F_NOEDGE0")
    a("global_load_dword v18, v6, s[16:17] sc1")
    a(f"s_mul_i32 s{sNODE}, s{sB}, {BN}")
    a(f"s_add_u32 s3, s{sNODE}, s{sW}")
    a(f"v_lshrrev_b32 v32, 3, v{vL}")
    a(f"v_xor_b32 v33, v32, v{vL}")
    a("v_and_b32 v33, 7, v33")
    a("s_lshl_b32 s3, s3, 7")
    a("v_lshl_add_u32 v34, v32, 11, s3")
    a(f"v_min_u32 v34, {(N - 1) * 128}, v34")
    a("v_lshl_add_u32 v34, v33, 4, v34")
    a(f"s_lshl_b32 s{sT1}, s{sW}, 10")
    a(f"s_add_u32 m0, s{sT1}, {L_HIMG}")
    a(f"s_and_b32 s{sT0}, s{sW}, 11")
    a("global_load_lds_dwordx4 v34, s[4:5]")
    a(f"s_lshl_b32 s{sT2}, s{sT0}, 11")
    a(f"s_lshr_b32 s{sT0}, s{sW}, 3")
    a(f"s_lshl_b32 s{sT0}, s{sT0}, 13")
    a(f"s_sub_u32 s{sT2}, s{sT2}, s{sT0}")
    a(f"s_bfe_u32 s{sT0}, s{sW}, 0x10002")
    a(f"s_lshl_b32 s{sT0}, s{sT0}, 6")
    a(f"s_add_u32 s{sT2}, s{sT2}, s{sT0}")
    a(f"v_lshrrev_b32 v33, 2, v{vL}")
    a(f"v_lshl_add_u32 v33, v33, 7, s{sT2}")
    a(f"v_and_b32 v35, 3, v{vL}")
    a("v_lshl_add_u32 v33, v35, 4, v33")
    a(f"s_add_u32 m0, s{sT1}, {L_WT}")
    a(f"v_lshlrev_b32 v62, 4, v{vT}")
    a("global_load_lds_dwordx4 v33, s[66:67]")
    a("global_load_dwordx4 v[44:47], v62, s[70:71]")
    a(f"s_cmp_lt_u32 s{sW}, 13")
    a("s_cbranch_scc1 F_SIDE0_DONE")
    a(f"s_cmp_eq_u32 s{sW}, 15")
    a("s_cbranch_scc1 F_SIDE0_W")
    a(f"v_subrev_u32 v20, {13*64}, v{vT}")
    a(f"v_add_u32 v21, s{sNODE}, v20")
    a(f"v_cmp_gt_u32 vcc, {BN}, v20")
    a(f"s_mov_b32 s3, {N}")
    a(f"v_cmp_gt_u32 s[{sA0}:{sA0+1}], s3, v21")
    a("v_mul_u32_u24 v22, 6, v21")
    a(f"s_and_b64 s[{sA0}:{sA0+1}], s[{sA0}:{sA0+1}], vcc")
    a(f"s_mov_b64 exec, s[{sA0}:{sA0+1}]")
    for i in range(3):
        a(f"global_load_ushort v{8+i}, v22, s[6:7] offset:{2*i}")
    a("s_mov_b64 exec, -1")
    a("s_branch F_SIDE0_DONE")
    a.label("F_SIDE0_W")
    a(f"v_and_b32 v20, 31, v{vL}")
    a("v_lshlrev_b32 v21, 1, v20")
    a("v_add_u32 v21, 0x4000, v21")
    for i, off in enumerate((0, 64, 128, 192)):
        a(f"global_load_ushort v{8+i}, v21, s[66:67] offset:{off}")
    a("v_lshrrev_b32 v21, 3, v20")
    a("v_lshlrev_b32 v21, 5, v21")
    a("v_bfe_u32 v22, v20, 1, 1")
    a("v_lshl_add_u32 v21, v22, 4, v21")
    a("v_bfe_u32 v22, v20, 2, 1")
    a("v_lshl_add_u32 v21, v22, 3, v21")
    a("v_and_b32 v22, 1, v20")
    a("v_lshl_add_u32 v21, v22, 2, v21")
    a("global_load_dword v12, v21, s[68:69]")
    a.label("F_SIDE0_DONE")
    a("v_mov_b64 v[36:37], 0")
    a("v_mov_b64 v[38:39], 0")
    a(f"ds_write_b128 v62, v[36:39] offset:{L_ST0}")
    a(f"ds_write_b128 v62, v[36:39] offset:{L_ST0 + 16384}")
    a(f"ds_write_b128 v62, v[36:39] offset:{L_ST1}")
    a(f"s_cmp_gt_u32 s{sW}, 8")
    a("s_cbranch_scc1 F_Z1")
    a(f"v_cmp_gt_u32 vcc, {(PSTR - 16384) // 16}, v{vT}")
    a("s_mov_b64 exec, vcc")
    a(f"ds_write_b128 v62, v[36:39] offset:{L_ST1 + 16384}")
    a("s_mov_b64 exec, -1")
    a(f"s_cmp_gt_u32 s{sW}, 2")
    a("s_cbranch_scc1 F_Z1")
    a(f"s_cmp_eq_u32 s{sW}, 1")
    a("s_cbranch_scc1 F_ZCNT")
    a(f"s_cmp_eq_u32 s{sW}, 2")
    a("s_cbranch_scc1 F_ZOH")
    a(f"ds_write_b128 v62, v[36:39] offset:{L_HIST}")
    a("s_branch F_Z1")
    a.label("F_ZCNT")
    a(f"v_and_b32 v40, 15, v{vL}")
    a(f"v_cmp_lt_u32 vcc, 47, v{vL}")
    a("v_addc_co_u32 v41, vcc, 0, v40, vcc")
    a("v_min_u32 v42, 2, v41")
    a("v_lshlrev_b32 v42, 8, v42")
    a("v_lshl_add_u32 v42, v41, 10, v42")
    a("s_mov_b32 exec_lo, 0")
    a("s_mov_b32 exec_hi, 0xffff")
    a("v_lshlrev_b32 v42, 2, v42")
    a("v_sub_u32 v42, v40, v42")
    a("s_mov_b32 exec_lo, 0xffff0000")
    a("s_mov_b32 exec_hi, 0")
    a("v_mov_b32 v42, 0")
    a("s_mov_b64 exec, -1")
    a(f"v_lshlrev_b32 v41, 2, v{vL}")
    a(f"ds_write_b32 v41, v42 offset:{L_CNT}")
    a("s_mov_b32 exec_hi, 0")
    a(f"ds_write_b32 v41, v42 offset:{L_CNT + 256}")
    a("s_mov_b64 exec, -1")
    a("s_branch F_Z1")
    a.label("F_ZOH")
    a(f"v_and_b32 v40, 1, v{vL}")
    a("v_lshlrev_b32 v40, 4, v40")
    a("v_mov_b32 v41, 0x3f80")
    a("v_lshlrev_b32 v40, v40, v41")
    a(f"v_bfe_u32 v41, v{vL}, 1, 2")
    for d in range(4):
        a(f"v_cmp_eq_u32 s[{sM+2*d}:{sM+2*d+1}], {d}, v41")
    for d in range(4):
        a(f"v_cndmask_b32 v{52+d}, 0, v40, s[{sM+2*d}:{sM+2*d+1}]")
    a(f"v_lshlrev_b32 v41, 5, v{vL}")
    a(f"ds_write_b128 v41, v[52:55] offset:{L_TAB}")
    a(f"ds_write_b128 v41, v[52:55] offset:{L_TAB + 2048}")
    a.label("F_Z1")
    a("s_mov_b32 s83, 43826197")
    a(f"s_mov_b32 s84, {-BN}")
    a("v_mov_b32 v19, 1")
    a("s_waitcnt lgkmcnt(0)")
    a("s_barrier")
    a(f"v_lshrrev_b32 v40, 5, v{vL}")
    a(f"v_xor_b32 v41, v40, v{vL}")
    a("v_and_b32 v41, 7, v41")
    a(f"v_and_b32 v42, 31, v{vL}")
    a(f"s_lshr_b32 s3, s{sW}, 2")
    a("s_lshl_b32 s3, s3, 12")
    a(f"s_add_u32 s3, s3, {L_HIMG}")
    a("v_lshl_add_u32 v43, v42, 7, s3")
    a("v_lshl_add_u32 v4, v41, 4, v43")
    for s_ in range(1, 4):
        a(f"v_xor_b32 v{4+s_}, {32*s_}, v4")
    a(f"v_bfe_u32 v41, v{vL}, 2, 2")
    a("v_lshl_add_u32 v41, v40, 3, v41")
    a("v_lshl_add_u32 v41, v41, 3, v35")
    a(f"v_bfe_u32 v43, v{vL}, 4, 1")
    a("v_lshl_add_u32 v41, v43, 2, v41")
    a(f"s_and_b32 s{sT0}, s{sW}, 1")
    a(f"s_lshl_b32 s{sT0}, s{sT0}, 12")
    a(f"s_and_b32 s{sT2}, s{sW}, 2")
    a(f"s_lshl_b32 s{sT2}, s{sT2}, 13")
    a(f"s_add_u32 s{sT0}, s{sT0}, s{sT2}")
    a(f"s_add_u32 s{sT0}, s{sT0}, {L_WT}")
    a(f"v_lshl_add_u32 v63, v41, 3, s{sT0}")
    a("v_lshlrev_b32 v59, 3, v41")
    a(f"v_add_u32 v59, {L_WT + 8192}, v59")
    a(f"s_and_b32 s{sT0}, s{sW}, 7")
    a(f"s_lshl_b32 s{sT0}, s{sT0}, 9")
    a(f"s_mov_b32 s{sT2}, {L_WT + 16384}")
    a(f"s_cmp_ge_u32 s{sW}, 8")
    a(f"s_cselect_b32 s{sT2}, {L_WH2}, s{sT2}")
    a(f"s_add_u32 s{sT0}, s{sT0}, s{sT2}")
    a(f"v_lshl_add_u32 v58, v{vL}, 3, s{sT0}")
    a("s_mov_b32 s85, 0x05040100")
    a(f"s_mov_b32 s{sSEL}, 0x07060302")
    a(f"s_cmp_gt_u32 s{sW}, 12")
    a("s_cbranch_scc1 F_SIDE1")
    a(f"s_mov_b64 exec, s[{sVAL}:{sVAL+1}]")
    a("s_waitcnt vmcnt(6)")
    st1(a, 1)
    for i in range(4):
        a(f"v_mul_hi_u32 v{20+i}, v{8+i}, s83")
    for i in range(4):
        a(f"v_mad_i32_i24 v{8+i}, v{20+i}, s84, v{8+i}")
        a(f"v_lshlrev_b32 v{20+i}, 2, v{20+i}")
        a(f"ds_add_rtn_u32 v{24+i}, v{20+i}, v19 offset:{L_HIST}")
    a("s_waitcnt vmcnt(4)")
    for i in range(4):
        a(f"v_lshlrev_b32 v{28+2*i}, 2, v{12+i}")
        if i % 2 == 0:
            a(f"v_lshlrev_b32 v{29+2*i}, 16, v{16+i//2}")
        else:
            a(f"v_and_b32 v{29+2*i}, 0xffff0000, v{16+i//2}")
        a(f"v_and_b32 v{12+i}, 15, v{8+i}")
        a(f"v_lshrrev_b32 v{8+i}, 4, v{8+i}")
        a(f"v_lshl_or_b32 v{29+2*i}, v{12+i}, 12, v{29+2*i}")
        a(f"v_lshl_or_b32 v{29+2*i}, v{8+i}, 9, v{29+2*i}")
        a(f"v_lshlrev_b32 v{12+i}, 5, v{20+i}")
        a(f"v_lshlrev_b32 v{20+i}, 1, v{20+i}")
        a(f"v_add_u32 v{20+i}, {L_INFO}, v{20+i}")
    a("s_mov_b64 exec, -1")
    a("s_waitcnt vmcnt(0)")
    a("s_branch F_SIDE1_DONE")
    a.label("F_SIDE1")
    a("s_waitcnt vmcnt(0)")
    a(f"s_cmp_eq_u32 s{sW}, 15")
    a("s_cbranch_scc1 F_SIDE1_W")
    a(f"s_mov_b64 exec, s[{sA0}:{sA0+1}]")
    for i in range(3):
        a(f"v_lshlrev_b32 v{8+i}, 16, v{8+i}")
    a("v_lshrrev_b32 v22, 4, v20")
    a("v_lshlrev_b32 v11, 3, v22")
    a(f"s_mov_b32 s3, {WS_POS}")
    a("v_lshl_add_u32 v21, v21, 4, s3")
    a("global_store_dwordx4 v21, v[8:11], s[16:17] sc1")
    a("v_and_b32 v20, 15, v20")
    a("v_lshl_add_u32 v20, v20, 3, v22")
    a("v_lshlrev_b32 v20, 5, v20")
    a(f"ds_write_b128 v20, v[8:11] offset:{L_TAB + 16}")
    a("s_mov_b64 exec, -1")
    a("s_branch F_SIDE1_DONE")
    a.label("F_SIDE1_W")
    for r in (9, 11):
        a(f"v_lshlrev_b32 v{r}, 16, v{r}")
        a(f"v_mul_f32 v{r}, {NLOG2E}, v{r}")
        a(f"v_cvt_pk_bf16_f32 v20, v{r}, 0")
        a("v_lshlrev_b32 v20, 16, v20")
        a(f"v_sub_f32 v21, v{r}, v20")
        a(f"v_cvt_pk_bf16_f32 v{r}, v20, v21")
    a(f"v_cmp_gt_u32 s[{sA0}:{sA0+1}], 32, v{vL}")
    for i, r in enumerate((8, 10, 9, 11)):
        a(f"v_cndmask_b32 v{20+i}, 0, v{r}, s[{sA0}:{sA0+1}]")
    a(f"v_lshlrev_b32 v8, 3, v{vL}")
    a(f"v_lshlrev_b32 v9, 2, v{vL}")
    a("s_mov_b32 exec_hi, 3")
    a(f"ds_write_b64 v8, v[20:21] offset:{L_WD}")
    a(f"ds_write_b64 v8, v[22:23] offset:{L_WD + 272}")
    a("s_mov_b32 exec_hi, 0")
    a(f"ds_write_b32 v9, v12 offset:{L_WX}")
    a("s_mov_b64 exec, -1")
    a.label("F_SIDE1_DONE")
    a("v_perm_b32 v52, v45, v44, s85")
    a("v_perm_b32 v53, v47, v46, s85")
    a(f"v_perm_b32 v54, v45, v44, s{sSEL}")
    a(f"v_perm_b32 v55, v47, v46, s{sSEL}")
    a("ds_write_b64 v58, v[52:53]")
    a("ds_write_b64 v58, v[54:55] offset:4096")
    a(f"v_readfirstlane_b32 s{sTAG}, v18")
    a("s_waitcnt lgkmcnt(0)")
    a("s_barrier")
    st1(a, 2)
    a(f"s_add_u32 s{sTAG}, s{sTAG}, 0x20000")
    a(f"s_and_b32 s{sTAG}, s{sTAG}, 0xfffe0000")
    a(f"s_cmp_gt_u32 s{sW}, 3")
    a("s_cbranch_scc1 F_NOINFO")
    a(f"v_lshlrev_b32 v40, 2, v{vT}")
    a(f"ds_read_b32 v41, v40 offset:{L_HIST}")
    a("v_mov_b32 v43, 0")
    a(f"v_lshlrev_b32 v40, 3, v{vT}")
    a(f"v_add_u32 v40, {L_INFO}, v40")
    a("s_waitcnt lgkmcnt(0)")
    a("v_add_u32 v41, 15, v41")
    a("v_lshrrev_b32 v41, 4, v41")
    a("v_sub_u32 v41, v41, 1 clamp")
    a("v_cmp_lt_u32 vcc, 0, v41")
    a("s_mov_b64 exec, vcc")
    a(f"ds_add_rtn_u32 v43, v36, v41 offset:{L_CNT + 320}")
    a("s_mov_b64 exec, -1")
    a("v_lshlrev_b32 v41, 1, v41")
    a("v_add_u32 v41, 0x10001, v41")
    a(f"s_mov_b32 s3, {L_ST1 - 128}")
    a("s_waitcnt lgkmcnt(0)")
    a("v_lshl_or_b32 v42, v43, 17, v41")
    a("v_lshl_add_u32 v43, v43, 7, s3")
    a("ds_write_b64 v40, v[42:43]")
    a.label("F_NOINFO")
    for s_ in range(4):
        a(f"ds_read_b128 {vr(64+4*s_, 4)}, v{4+s_}")
        for q in range(2):
            a(f"ds_read_b64_tr_b16 {vr(80+4*s_+2*q, 2)}, v63 offset:{s_*1024 + q*256}")
    a(f"s_cmp_lt_u32 s{sW}, 12")
    a("s_cbranch_scc1 F_NOB1")
    a(f"s_sub_u32 s3, s{sW}, 15")
    a("s_lshl_b32 s3, s3, 12")
    a("s_waitcnt lgkmcnt(8)")
    for s_ in range(4):
        a(f"v_add_u32 v{4+s_}, s3, v{4+s_}")
        a(f"ds_read_b128 {vr(36+4*s_, 4)}, v{4+s_}")
    slots = (52, 0, 4)
    a("s_waitcnt lgkmcnt(4)")

    def rd(k):
        s_, t = k >> 1, k & 1
        for q in range(2):
            a(f"ds_read_b64_tr_b16 {vr(slots[k % 3]+2*q, 2)}, v59 offset:{t*4096 + s_*1024 + q*256}")
    for k in range(3):
        rd(k)
    for k in range(8):
        s_, t = k >> 1, k & 1
        a(f"s_waitcnt lgkmcnt({min(4, 2*(7-k))})")
        d = 96 + 16 * t
        c = "0" if s_ == 0 else vr(d, 16)
        a(f"v_mfma_f32_32x32x16_bf16 {vr(d, 16)}, {vr(36+4*s_, 4)}, {vr(slots[k % 3], 4)}, {c}")
        if k + 3 < 8:
            rd(k + 3)
    a.label("F_NOB1")
    a("s_waitcnt lgkmcnt(0)")
    a("s_barrier")
    a(f"s_cmp_gt_u32 s{sW}, 12")
    a("s_cbranch_scc1 F_NOSCAT")
    a(f"s_mov_b64 exec, s[{sVAL}:{sVAL+1}]")
    for i in range(4):
        a(f"ds_read_b64 {vr(36+2*i, 2)}, v{20+i}")
    for i in range(4):
        a(f"v_lshlrev_b32 v{8+i}, 4, v{24+i}")
        a(f"v_cmp_gt_u32 s[{sM+2*i}:{sM+2*i+1}], 16, v{24+i}")
    for i in range(4):
        a("s_waitcnt lgkmcnt(3)")
        a(f"v_bfe_u32 v{36+2*i}, v{36+2*i}, v{8+i}, 9")
        a(f"v_cndmask_b32 v{37+2*i}, v{37+2*i}, v{12+i}, s[{sM+2*i}:{sM+2*i+1}]")
        a(f"v_or_b32 v{29+2*i}, v{29+2*i}, v{36+2*i}")
        a(f"v_lshl_add_u32 v{37+2*i}, v{24+i}, 3, v{37+2*i}")
        a(f"ds_write_b64 v{37+2*i}, {vr(28+2*i, 2)}")
    a("s_mov_b64 exec, -1")
    a.label("F_NOSCAT")
    a(f"s_cmp_lt_u32 s{sW}, 12")
    a("s_cbranch_scc1 F_NOB2")
    a(f"s_mov_b32 s{SRD_O}, s16")
    a(f"s_mov_b32 s{SRD_O+1}, s17")
    a(f"s_mov_b32 s{SRD_O+2}, {N*128}")
    a(f"s_mov_b32 s{SRD_O+3}, 0x20000")
    a(f"s_sub_u32 s3, s{sW}, 12")
    a(f"s_lshl2_add_u32 s3, s3, s{sNODE}")
    a("s_lshl_b32 s3, s3, 7")
    a(f"v_lshrrev_b32 v40, 5, v{vL}")
    a("v_lshl_add_u32 v40, v40, 13, s3")
    a(f"v_and_b32 v41, 31, v{vL}")
    a("v_lshl_add_u32 v40, v41, 2, v40")
    a("s_mov_b32 s83, 0xffff0000")
    a("s_mov_b32 s84, 0x80000000")
    a("s_movk_i32 s85, 0x1000")
    a(f"s_cmp_eq_u32 s{sW}, 12")
    a(f"s_cselect_b32 s{sT0}, -1, 0")
    for g in range(4):
        R = range(4)
        for i in R:
            a(f"v_cvt_pk_bf16_f32 v{44+i}, v{96+4*g+i}, 0")
        for i in R:
            a(f"v_mul_f32 v{48+i}, {NLOG2E}, v{112+4*g+i}")
        for i in R:
            a(f"v_sub_u32 v{52+i}, 0x8000, v{44+i}")
        for i in R:
            a(f"v_and_b32 v{i}, 0x7fffffff, v{48+i}")
        for i in R:
            a(f"v_add_u32 v{52+i}, v{52+i}, v{i}")
        for i in R:
            a(f"v_max_i32 v{52+i}, 0, v{52+i}")
        for i in R:
            a(f"v_and_or_b32 v{52+i}, v{52+i}, s83, v{44+i}")
        for i in R:
            a(f"v_and_or_b32 v{96+4*g+i}, v{48+i}, s84, v{52+i}")
        for i in R:
            if i == 2:
                a(f"s_mov_b32 exec_hi, {'s' + str(sT0) if g < 2 else '0'}")
            if i == 3 and g < 2:
                a("s_mov_b32 exec_hi, 0")
            a(f"buffer_store_dword v{96+4*g+i}, v40, s[{SRD_O}:{SRD_O+3}], {'s85' if i >= 2 else '0'} offen offset:{g*128 + (i & 1)*2048} sc1")
        a("s_mov_b32 exec_hi, -1")
    a.label("F_NOB2")
    a(f"v_lshrrev_b32 v40, 3, v{vT}")
    a(f"s_lshl_b32 s3, s{sB}, 7")
    a(f"s_add_u32 s3, s3, {WS_PAY0}")
    a(f"v_and_b32 v41, 7, v{vT}")
    a("v_lshl_add_u32 v41, v41, 4, s3")
    a(f"s_mov_b32 s3, {BSTR}")
    a("v_mad_u32_u24 v40, v40, s3, v41")
    a(f"v_add_u32 v41, {128*BSTR}, v40")
    a(f"s_mul_i32 s3, s{sB}, {PSTR}")
    a(f"s_add_u32 s3, s3, {WS_POOL}")
    a("v_add_u32 v42, s3, v62")
    a("v_mov_b32 v36, 0")
    a("s_waitcnt lgkmcnt(0)")
    a("s_barrier")
    st1(a, 3)
    a(f"ds_read_b128 v[8:11], v62 offset:{L_ST0}")
    a(f"ds_read_b128 v[12:15], v62 offset:{L_ST0 + 16384}")
    a(f"ds_read_b32 v43, v36 offset:{L_CNT + 320}")
    a(f"ds_read_b128 v[16:19], v62 offset:{L_ST1}")
    a("s_waitcnt lgkmcnt(3)")
    a(f"v_xor_b32 v8, s{sTAG}, v8")
    a(f"v_xor_b32 v10, s{sTAG}, v10")
    a("global_store_dwordx4 v40, v[8:11], s[16:17] sc1")
    a("s_waitcnt lgkmcnt(2)")
    a(f"v_xor_b32 v12, s{sTAG}, v12")
    a(f"v_xor_b32 v14, s{sTAG}, v14")
    a("global_store_dwordx4 v41, v[12:15], s[16:17] sc1")
    a("s_waitcnt lgkmcnt(0)")
    a("v_lshlrev_b32 v43, 3, v43")
    a(f"v_cmp_gt_u32 vcc, v43, v{vT}")
    a(f"v_xor_b32 v16, s{sTAG}, v16")
    a(f"v_xor_b32 v18, s{sTAG}, v18")
    a("s_and_b64 exec, exec, vcc")
    a("s_cbranch_execz F_POOL_DONE")
    a("global_store_dwordx4 v42, v[16:19], s[16:17] sc1")
    a(f"v_add_u32 v44, 1024, v{vT}")
    a("v_cmp_gt_u32 vcc, v43, v44")
    a("s_and_b64 exec, exec, vcc")
    a("s_cbranch_execz F_POOL_DONE")
    a(f"ds_read_b128 v[20:23], v62 offset:{L_ST1 + 16384}")
    a("v_add_u32 v42, 0x4000, v42")
    a("s_waitcnt lgkmcnt(0)")
    a(f"v_xor_b32 v20, s{sTAG}, v20")
    a(f"v_xor_b32 v22, s{sTAG}, v22")
    a("global_store_dwordx4 v42, v[20:23], s[16:17] sc1")
    a.label("F_POOL_DONE")
    a("s_mov_b64 exec, -1")
    a("s_barrier")
    for s_ in range(4):
        c = "0" if s_ == 0 else vr(96, 16)
        a(f"v_mfma_f32_32x32x16_bf16 {vr(96, 16)}, {vr(64+4*s_, 4)}, {vr(80+4*s_, 4)}, {c}")
    a("v_mov_b64 v[12:13], 0")
    a("v_mov_b64 v[14:15], 0")
    a(f"v_mul_u32_u24 v20, 0x80008, v{vT}")
    a("v_add_u32 v20, 0x10000, v20")
    for k in range(1, 4):
        a(f"v_add_u32 v{20+k}, {hex(0x20002 * k)}, v20")
    a(f"v_mfma_f32_32x32x16_bf16 {vr(112, 16)}, v[12:15], v[12:15], 0")
    a("s_mov_b32 s3, 0x00800080")
    for k in range(4):
        a(f"v_add_u32 v{24+k}, 0x9f809f80, v{20+k}")
        a(f"v_pk_sub_u16 v{20+k}, v{20+k}, s3 clamp")
        a(f"v_or_b32 v{20+k}, 0x80008000, v{20+k}")
    a(f"v_add_u32 v28, {L_LUT}, v62")
    a("ds_write_b128 v28, v[20:23]")
    a(f"v_cmp_gt_u32 vcc, 864, v{vT}")
    a(f"v_lshlrev_b32 v29, 17, v{vT}")
    a(f"v_add_u32 v29, {hex((118*128) << 16)}, v29")
    a("s_mov_b64 exec, vcc")
    a("ds_write_b128 v28, v[24:27] offset:16384")
    a("s_mov_b64 exec, -1")
    a(f"v_cmp_lt_u32 vcc, 95, v{vT}")
    a("v_add_u32 v30, 0x10000, v29")
    a(f"v_mul_f32 v31, {PLOG2E}, v29")
    a("s_mov_b64 exec, vcc")
    a("ds_write_b128 v28, v[12:15] offset:32768")
    a("s_mov_b64 exec, -1")
    a(f"v_mul_f32 v32, {PLOG2E}, v30")
    a("v_exp_f32 v31, v31")
    a("v_exp_f32 v32, v32")
    a(f"v_cmp_lt_u32 vcc, 1007, v{vT}")
    a("v_mov_b32 v33, 0x7fc07fc0")
    a("v_add_f32 v31, 1.0, v31")
    a("v_add_f32 v32, 1.0, v32")
    a("v_cndmask_b32 v20, 0, v33, vcc")
    a("v_rcp_f32 v31, v31")
    a("v_rcp_f32 v32, v32")
    for k in range(1, 4):
        a(f"v_mov_b32 v{20+k}, v20")
    a("ds_write_b128 v28, v[20:23] offset:49152")
    a("v_mul_f32 v31, v29, v31")
    a("v_mul_f32 v32, v30, v32")
    a("v_cvt_pk_bf16_f32 v31, -v31, -v32")
    a(f"v_lshlrev_b32 v33, 2, v{vT}")
    a(f"v_add_u32 v33, {L_LUT + 118*256}, v33")
    a("ds_write_b32 v33, v31")
    a(f"s_mov_b32 s{sT2}, {NLOG2E}")
    a(f"s_mov_b32 s{sT3}, {NLOG2E}")
    a(f"s_and_b32 s{sT0}, s{sW}, 3")
    a(f"s_cmp_lg_u32 s{sT0}, 1")
    a("s_cbranch_scc1 F_NOSC")
    for i in range(8):
        a(f"v_pk_mul_f32 {vr(96+2*i, 2)}, {vr(96+2*i, 2)}, s[{sT2}:{sT3}]")
    a.label("F_NOSC")
    a(f"s_lshl_b32 s{sT0}, s{sT0}, 9")
    a(f"s_lshr_b32 s{sT1}, s{sW}, 2")
    a(f"s_lshl_b32 s3, s{sT1}, 13")
    a(f"s_add_u32 s{sT0}, s{sT0}, s3")
    a(f"s_add_u32 s{sT0}, s{sT0}, {L_OH}")
    a(f"v_lshl_add_u32 v40, v{vL}, 3, s{sT0}")
    for i in range(8):
        a(f"v_cvt_pk_bf16_f32 v{32+i}, v{96+2*i}, v{97+2*i}")
    for g in range(4):
        a(f"ds_write_b64 v40, {vr(32+2*g, 2)} offset:{2048*g}")
    a(f"v_mfma_f32_32x32x16_bf16 {vr(96, 16)}, v[12:15], v[12:15], 0")
    a(f"s_and_b32 s{sRK}, s{sW}, 3")
    a(f"s_bitcmp1_b32 s{sW}, 2")
    a(f"s_cselect_b32 s3, 3, 0")
    a(f"s_xor_b32 s{sRK}, s{sRK}, s3")
    a(f"s_lshl2_add_u32 s{sRK}, s{sT1}, s{sRK}")
    a(f"v_and_b32 v35, 31, v{vL}")
    a(f"v_bfe_u32 v34, v{vL}, 1, 2")
    a(f"v_lshlrev_b32 v{vLB}, 6, v35")
    a(f"v_lshl_add_u32 v{vLB}, v34, 3, v{vLB}")
    a(f"v_lshrrev_b32 v36, 5, v{vL}")
    a(f"v_bfe_u32 v34, v{vL}, 2, 2")
    a("v_lshl_add_u32 v34, v36, 2, v34")
    a(f"v_lshlrev_b32 v{vTRA}, 6, v34")
    a("v_lshrrev_b32 v34, 1, v34")
    a(f"v_xor_b32 v34, v34, v{vL}")
    a("v_and_b32 v34, 3, v34")
    a(f"v_lshl_add_u32 v{vTRA}, v34, 3, v{vTRA}")
    a(f"v_and_b32 v34, 16, v{vL}")
    a(f"v_lshl_add_u32 v{vTRA}, v34, 1, v{vTRA}")
    a(f"v_lshlrev_b32 v{vGA}, 4, v36")
    a("v_lshlrev_b32 v35, 3, v35")
    a("v_mov_b32 v34, 256")
    a(f"v_cmp_gt_u32 vcc, 32, v{vL}")
    a("v_cndmask_b32 v8, v34, v35, vcc")
    a("v_cndmask_b32_e64 v9, v35, v34, vcc")
    a(f"s_mov_b32 s{SRD_B}, s16")
    a(f"s_and_b32 s{SRD_B+1}, s17, 0xffff")
    a(f"s_or_b32 s{SRD_B+1}, s{SRD_B+1}, 0x80000000")
    a(f"s_mov_b32 s{SRD_B+2}, 0x100000")
    a(f"s_mov_b32 s{SRD_B+3}, 0xc00000")
    a(f"s_add_u32 s{SRD_POS}, s16, {WS_POS}")
    a(f"s_addc_u32 s{SRD_POS+1}, s17, 0")
    a(f"s_and_b32 s{SRD_POS+1}, s{SRD_POS+1}, 0xffff")
    a(f"s_or_b32 s{SRD_POS+1}, s{SRD_POS+1}, 0x40000")
    a(f"s_mov_b32 s{SRD_POS+2}, {N*16}")
    a(f"s_mov_b32 s{SRD_POS+3}, 0x20000")
    a(f"s_mov_b32 s{sSEL}, 0x03020302")
    a(f"s_mov_b64 s[{sLO}:{sLO+1}], 0")
    a(f"s_mov_b64 s[{sHI}:{sHI+1}], 0")
    a(f"s_mov_b32 s{sFL}, 0")
    a(f"s_mov_b32 s{sPC}, 0")

    def line_addr():
        a(f"s_mul_i32 s3, s{sB}, {BSTR}")
        a(f"s_lshl_b32 s{sT0}, s{sW}, 11")
        a(f"s_add_u32 s3, s3, s{sT0}")
        a(f"s_add_u32 s3, s3, {WS_PAY0}")
        a(f"v_lshl_add_u32 v52, v{vL}, 4, s3")
        a(f"s_mul_i32 s3, s{sW}, {16*PSTR}")
        a(f"s_add_u32 s3, s3, {WS_POOL}")
        a(f"v_and_b32 v53, 7, v{vL}")
        a("v_lshl_add_u32 v53, v53, 4, s3")
        a(f"v_lshrrev_b32 v54, 3, v{vL}")
        a(f"s_movk_i32 s3, {PSTR}")
        a("v_mad_u32_u24 v53, v54, s3, v53")
    line_addr()
    a(f"v_lshlrev_b32 v50, 2, v{vL}")
    a("v_and_b32 v51, 63, v50")
    a(f"v_and_b32 v49, 48, v{vL}")
    a("v_mov_b32 v48, 4")
    a(f"v_lshlrev_b32 v47, 4, v{vL}")
    a(f"s_lshl_b32 s3, s{sW}, 11")
    a(f"s_add_u32 s3, s3, {WS_FLAG}")
    a("v_lshl_add_u32 v46, v51, 5, s3")
    a("s_mov_b32 s83, 0x20000")
    a(f"s_or_b32 s84, s{sTAG}, 0x1abcd")
    a("s_waitcnt vmcnt(0)")
    st1(a, 4)
    a(f"s_cmp_lt_u32 s{sW}, 12")
    a("s_cbranch_scc1 F_POLL0")
    a("s_mov_b64 exec, 1")
    a(f"ds_add_rtn_u32 v44, v12, v48 offset:{L_CNT + 324}")
    a(f"s_lshl_b32 s3, s{sB}, 7")
    a(f"s_add_u32 s3, s3, {WS_FLAG}")
    a("v_mov_b32 v45, s3")
    a("v_mov_b32 v43, s84")
    a("s_waitcnt lgkmcnt(0)")
    a("v_cmp_eq_u32 vcc, 12, v44")
    a("s_mov_b64 exec, vcc")
    a("s_cbranch_execz F_NOFLAG")
    a("global_store_dword v45, v43, s[16:17] sc1")
    a.label("F_NOFLAG")
    a("s_mov_b64 exec, -1")
    a.label("F_POLL0")
    a("global_load_dwordx4 v[80:83], v52, s[16:17] sc1")
    a("global_load_dwordx4 v[84:87], v52, s[16:17] offset:1024 sc1")
    a(f"s_add_u32 s{sPC}, s{sPC}, 1")
    a(f"s_cmp_gt_u32 s{sPC}, {POLL_MAX}")
    a("s_cbranch_scc1 K2_END")
    a("s_waitcnt vmcnt(0)")
    for r in (80, 82, 84, 86):
        a(f"v_xor_b32 v{r}, s{sTAG}, v{r}")
    a("v_or3_b32 v44, v80, v82, v84")
    a("v_or_b32 v44, v44, v86")
    a("v_cmp_gt_u32 vcc, s83, v44")
    a("s_cmp_eq_u64 vcc, -1")
    a("s_cbranch_scc0 F_POLL0")
    st1(a, 5)
    a("global_load_dword v76, v46, s[16:17] sc1")
    a("v_bfe_u32 v54, v81, 1, 8")
    a("v_bfe_u32 v55, v85, 1, 8")
    a("v_bfe_u32 v56, v83, 1, 8")
    a("v_bfe_u32 v57, v87, 1, 8")
    a(f"v_cmp_lt_u32 s[{sA0}:{sA0+1}], 0, v54")
    a(f"v_cmp_lt_u32 s[{sA1}:{sA1+1}], 0, v55")
    a("v_lshl_add_u32 v56, v56, 7, v53")
    a("v_lshl_add_u32 v57, v57, 7, v53")
    a(f"v_add_u32 v57, {8*PSTR}, v57")
    for u in range(4):
        a(f"v_cmp_ne_u32 s[{sM+2*u}:{sM+2*u+1}], 0, v{81+2*u}")
    a(f"s_mov_b64 exec, s[{sA0}:{sA0+1}]")
    a("global_load_dwordx4 v[88:91], v56, s[16:17] sc1")
    a(f"s_mov_b64 exec, s[{sA1}:{sA1+1}]")
    a("global_load_dwordx4 v[92:95], v57, s[16:17] sc1")
    append4(a, 80, sM, 64)
    a(f"s_mov_b32 s{sJ}, 1")
    a.label("F_LEVEL")
    a(f"s_or_b64 s[{sT2}:{sT3}], s[{sA0}:{sA0+1}], s[{sA1}:{sA1+1}]")
    a("s_cbranch_scc0 F_LEVEL_DONE")
    a("s_waitcnt vmcnt(0)")
    for r in (88, 90, 92, 94):
        a(f"v_xor_b32 v{r}, s{sTAG}, v{r}")
    a("v_or_b32 v44, v88, v90")
    a("v_or_b32 v45, v92, v94")
    a(f"v_cmp_le_u32 vcc, s83, v44")
    a(f"v_cmp_le_u32 s[{sT2}:{sT3}], s83, v45")
    a(f"s_and_b64 vcc, vcc, s[{sA0}:{sA0+1}]")
    a(f"s_and_b64 s[{sT2}:{sT3}], s[{sT2}:{sT3}], s[{sA1}:{sA1+1}]")
    a(f"s_or_b64 vcc, vcc, s[{sT2}:{sT3}]")
    a("s_cbranch_scc1 F_LEVEL_LOAD")
    for u in range(4):
        a(f"v_cmp_ne_u32 s[{sM+2*u}:{sM+2*u+1}], 0, v{89+2*u}")
    for u in range(4):
        m = sA0 if u < 2 else sA1
        a(f"s_and_b64 s[{sM+2*u}:{sM+2*u+1}], s[{sM+2*u}:{sM+2*u+1}], s[{m}:{m+1}]")
    append4(a, 88, sM, 64)
    a(f"v_cmp_lt_u32 s[{sA0}:{sA0+1}], s{sJ}, v54")
    a(f"v_cmp_lt_u32 s[{sA1}:{sA1+1}], s{sJ}, v55")
    a(f"s_add_u32 s{sJ}, s{sJ}, 1")
    a("v_add_u32 v56, 128, v56")
    a("v_add_u32 v57, 128, v57")
    a(f"s_or_b64 s[{sT2}:{sT3}], s[{sA0}:{sA0+1}], s[{sA1}:{sA1+1}]")
    a("s_cbranch_scc0 F_LEVEL_DONE")
    a.label("F_LEVEL_LOAD")
    a(f"s_mov_b64 exec, s[{sA0}:{sA0+1}]")
    a("global_load_dwordx4 v[88:91], v56, s[16:17] sc1")
    a(f"s_mov_b64 exec, s[{sA1}:{sA1+1}]")
    a("global_load_dwordx4 v[92:95], v57, s[16:17] sc1")
    a("s_mov_b64 exec, -1")
    a(f"s_add_u32 s{sPC}, s{sPC}, 1")
    a(f"s_cmp_gt_u32 s{sPC}, {POLL_MAX}")
    a("s_cbranch_scc1 K2_END")
    a("s_branch F_LEVEL")
    a.label("F_LEVEL_DONE")
    a("s_waitcnt vmcnt(0)")
    a("v_cmp_ne_u32 vcc, s84, v76")
    a("s_cbranch_vccz F_READY")
    a("global_load_dword v76, v46, s[16:17] sc1")
    a(f"s_add_u32 s{sPC}, s{sPC}, 1")
    a(f"s_cmp_gt_u32 s{sPC}, {POLL_MAX}")
    a("s_cbranch_scc1 K2_END")
    a("s_branch F_LEVEL_DONE")
    a.label("F_READY")
    a("s_waitcnt lgkmcnt(0)")
    a("s_barrier")
    st1(a, 6)
    if OPT["diag"] == 2:
        stamp(a, 86, 4)
    a(f"ds_read_b32 v33, v51 offset:{L_CNT}")
    a(f"ds_read_b32 v34, v51 offset:{L_CNT + 192}")
    if OPT["bal"]:
        a(f"ds_read_b32 v35, v51 offset:{L_CNT + 128}")
        a(f"ds_read_b128 v[36:39], v49 offset:{L_CNT}")
        a(f"ds_read_b128 v[40:43], v49 offset:{L_CNT + 128}")
    a(f"ds_read_b64 {vr(WE0, 2)}, v9 offset:{L_WD}")
    a(f"ds_read_b64 {vr(WE0+4, 2)}, v8 offset:{L_WD}")
    a(f"ds_read_b64 {vr(WE1, 2)}, v9 offset:{L_WD + 272}")
    a(f"ds_read_b64 {vr(WE1+4, 2)}, v8 offset:{L_WD + 272}")
    a(f"s_or_b32 s3, s{sB}, s{sW}")
    a("s_cbranch_scc1 F_NOEPOCH")
    a(f"v_mov_b32 v44, {WS_EPOCH}")
    a(f"v_mov_b32 v45, s{sTAG}")
    a("s_mov_b64 exec, 1")
    a("global_store_dword v44, v45, s[16:17] sc1")
    a("s_mov_b64 exec, -1")
    a.label("F_NOEPOCH")
    if OPT["bal"]:
        a("s_waitcnt lgkmcnt(4)")
        a("v_lshl_add_u32 v35, v33, 2, v35")
        for k in range(4):
            a(f"v_lshl_add_u32 v{36+k}, v{36+k}, 2, v{40+k}")
        for k in range(4):
            a(f"v_cmp_gt_u32 s[{sM+2*k}:{sM+2*k+1}], v{36+k}, v35")
        a("v_cmp_gt_u32 vcc, v33, v34")
        a(f"v_cndmask_b32 v36, 0, 1, s[{sM}:{sM+1}]")
        for k in range(1, 4):
            a(f"v_addc_co_u32 v36, s[{sT2}:{sT3}], 0, v36, s[{sM+2*k}:{sM+2*k+1}]")
        a("v_mov_b32 v37, v36")
        a("v_permlane32_swap_b32 v37, v36")
        a("v_add_u32 v36, v36, v37")
        a("v_mov_b32 v37, v36")
        a("v_permlane16_swap_b32 v37, v36")
        a("v_add_u32 v36, v36, v37")
        a(f"v_cmp_eq_u32 s[{sT2}:{sT3}], s{sRK}, v36")
        a(f"s_ff1_i32_b32 s{sG}, s{sT2}")
        if OPT["safe"]:
            a(f"s_and_b32 s{sG}, s{sG}, 15")
    else:
        a("s_waitcnt lgkmcnt(4)")
        a("v_cmp_gt_u32 vcc, v33, v34")
        a(f"s_mov_b32 s{sG}, s{sW}")
    a(f"s_lshl_b32 s3, s{sG}, 11")
    a(f"s_add_u32 s3, s3, {L_OH}")
    a(f"v_lshl_add_u32 v63, v{vL}, 3, s3")
    a(f"v_readlane_b32 s{sREM}, v33, s{sG}")
    a(f"ds_read_b64 {vr(WE0+2, 2)}, v63")
    a(f"ds_read_b64 {vr(WE1+2, 2)}, v63 offset:512")
    a(f"ds_read_b64 {vr(CC, 2)}, v63 offset:1024")
    a(f"ds_read_b64 {vr(CC+2, 2)}, v63 offset:1536")
    a("v_add_u32 v3, s3, v47")
    a("ds_write_b128 v3, v[12:15]")
    a("ds_write_b128 v3, v[12:15] offset:1024")
    a(f"v_add_u32 v{vLB}, s3, v{vLB}")
    a(f"v_add_u32 v{vTRA}, s3, v{vTRA}")
    a(f"s_min_u32 s{sBASE}, s{sG}, 2")
    a(f"s_lshl_b32 s{sBASE}, s{sBASE}, 8")
    a(f"s_lshl_b32 s3, s{sG}, 10")
    a(f"s_add_u32 s{sBASE}, s{sBASE}, s3")
    a(f"v_add_u32 v{vGA}, s{sBASE}, v{vGA}")
    a(f"s_add_u32 s{sNODE}, s{sNODE}, s{sG}")
    a("s_cbranch_vccnz K2_SLOW")
    a.label("K2_START")
    a(f"s_sub_u32 s{sREM}, s{sREM}, s{sBASE}")
    a(f"s_lshr_b32 s{sREM}, s{sREM}, 2")
    a("s_cbranch_scc0 K2_LOOP_DONE")
    a(f"s_and_b32 s{sT0}, s{sREM}, 63")
    a("s_cbranch_scc0 K2_NOFILL")
    a(f"s_bfm_b64 s[{sT2}:{sT3}], s{sT0}, 0")
    a(f"s_andn2_b32 s{sT0}, s{sREM}, 63")
    a(f"s_lshl2_add_u32 m0, s{sT0}, s{sBASE}")
    a(f"s_not_b64 exec, s[{sT2}:{sT3}]")
    a(f"ds_write_addtid_b32 v12 offset:{L_SRC}")
    a(f"ds_write_addtid_b32 v12 offset:{L_INF}")
    a("s_mov_b64 exec, -1")
    a.label("K2_NOFILL")
    a(f"s_mov_b32 m0, s{sBASE}")
    G_reads(a, RAWA, 0)
    PA_reads(a)
    G_issue(a, RAWA, 2)
    a("s_waitcnt lgkmcnt(0)")
    PA_issue(a)
    emit_masks(a)
    a("s_waitcnt vmcnt(0)")
    emit_PB(a)
    if OPT["diag"] == 2:
        stamp(a, 86, 5)
        a("s_getreg_b32 s87, hwreg(HW_REG_HW_ID)")
        a("s_and_b32 s87, s87, 0xff")
        a(f"s_lshl_b32 s88, s{sG}, 8")
        a("s_or_b32 s87, s87, s88")
        a("s_memtime s[94:95]")
        a("s_waitcnt lgkmcnt(0)")
        a("s_mov_b32 s88, s94")
    a.label("K2_T0")
    emit_tile(a, 0)
    a.label("K2_T1")
    emit_tile(a, 1)
    a.label("K2_SLOW")
    a(f"s_mov_b32 s{sJ}, -1")
    a(f"s_mov_b32 s{sFL}, 2")
    a.label("K2_ROUND")
    a("s_setprio 0")
    a("s_waitcnt lgkmcnt(0)")
    a("s_barrier")
    lane_id(a, vL)
    a(f"v_lshlrev_b32 v50, 2, v{vL}")
    a("v_and_b32 v51, 63, v50")
    a(f"s_cmp_lg_u32 s{sW}, 0")
    a("s_cbranch_scc1 K2_NOCNT2")
    a(f"ds_read_b32 v33, v51 offset:{L_CNT + 256}")
    a("v_mov_b32 v34, 0")
    a("s_waitcnt lgkmcnt(0)")
    a(f"ds_write_b32 v51, v33 offset:{L_CNT}")
    a(f"ds_write_b32 v51, v34 offset:{L_CNT + 64}")
    a.label("K2_NOCNT2")
    line_addr()
    a("global_load_dwordx4 v[80:83], v52, s[16:17] sc1")
    a("global_load_dwordx4 v[84:87], v52, s[16:17] offset:1024 sc1")
    a(f"s_and_b32 s{sT1}, s{sFL}, 1")
    a(f"s_xor_b32 s{sT1}, s{sT1}, 1")
    a(f"s_add_u32 s{sJ}, s{sJ}, s{sT1}")
    a("s_waitcnt vmcnt(0) lgkmcnt(0)")
    a("s_barrier")
    a("v_bfe_u32 v54, v81, 1, 8")
    a("v_bfe_u32 v55, v85, 1, 8")
    a("v_bfe_u32 v56, v83, 1, 8")
    a("v_bfe_u32 v57, v87, 1, 8")
    a(f"v_cmp_le_u32 s[{sA0}:{sA0+1}], s{sJ}, v54")
    a(f"v_cmp_le_u32 s[{sA1}:{sA1+1}], s{sJ}, v55")
    a("v_max_u32 v54, v54, v55")
    a(f"v_cmp_lt_u32 s[{sLONG}:{sLONG+1}], s{sJ}, v54")
    a(f"s_cmp_eq_u32 s{sJ}, 0")
    a("s_cbranch_scc1 K2_LEV0")
    a(f"s_sub_u32 s3, s{sJ}, 1")
    a("v_add_u32 v56, s3, v56")
    a("v_add_u32 v57, s3, v57")
    a("v_lshl_add_u32 v56, v56, 7, v53")
    a("v_lshl_add_u32 v57, v57, 7, v53")
    a(f"v_add_u32 v57, {8*PSTR}, v57")
    a(f"s_mov_b64 exec, s[{sA0}:{sA0+1}]")
    a("global_load_dwordx4 v[80:83], v56, s[16:17] sc1")
    a(f"s_mov_b64 exec, s[{sA1}:{sA1+1}]")
    a("global_load_dwordx4 v[84:87], v57, s[16:17] sc1")
    a("s_mov_b64 exec, -1")
    a("s_waitcnt vmcnt(0)")
    a.label("K2_LEV0")
    for r in (80, 82, 84, 86):
        a(f"v_xor_b32 v{r}, s{sTAG}, v{r}")
    a(f"s_bitcmp1_b32 s{sFL}, 0")
    a("s_cbranch_scc1 K2_KEEPM")
    for u in range(4):
        m = sA0 if u < 2 else sA1
        a(f"v_cmp_ne_u32 vcc, 0, v{81+2*u}")
        a(f"s_and_b64 s[{sM+2*u}:{sM+2*u+1}], vcc, s[{m}:{m+1}]")
    a.label("K2_KEEPM")
    a("v_mov_b32 v48, 4")
    a("v_mov_b32 v49, 0")
    a(f"s_mov_b64 s[{sT2}:{sT3}], 0")
    for u in range(4):
        a(f"s_mov_b64 exec, s[{sM+2*u}:{sM+2*u+1}]")
        a(f"v_lshrrev_b32 v64, 10, v{81+2*u}")
        a("v_and_b32 v64, 0x3c, v64")
        a(f"ds_read_b32 v65, v64 offset:{L_CNT + 192}")
        a(f"ds_add_rtn_u32 v64, v64, v48 offset:{L_CNT}")
        a("s_waitcnt lgkmcnt(0)")
        a("v_cmp_lt_u32 vcc, v64, v65")
        a(f"s_andn2_b64 s[{sM+2*u}:{sM+2*u+1}], exec, vcc")
        a("s_mov_b64 exec, vcc")
        a(f"ds_write_b32 v64, v{80+2*u} offset:{L_SRC}")
        a(f"ds_write_b32 v64, v{81+2*u} offset:{L_INF}")
        a(f"s_or_b64 s[{sT2}:{sT3}], s[{sT2}:{sT3}], s[{sM+2*u}:{sM+2*u+1}]")
    a(f"s_mov_b64 exec, s[{sT2}:{sT3}]")
    a("s_cbranch_execz K2_NOF1")
    a(f"ds_write_b32 v49, v48 offset:{L_CNT + 64}")
    a.label("K2_NOF1")
    a(f"s_mov_b64 exec, s[{sLONG}:{sLONG+1}]")
    a("s_cbranch_execz K2_NOF2")
    a(f"ds_write_b32 v49, v48 offset:{L_CNT + 68}")
    a.label("K2_NOF2")
    a("s_mov_b64 exec, -1")
    a("s_waitcnt lgkmcnt(0)")
    a("s_barrier")
    a(f"ds_read_b32 v33, v50 offset:{L_CNT}")
    a(f"ds_read_b32 v34, v51 offset:{L_CNT + 192}")
    a(f"v_lshrrev_b32 v{vGA}, 5, v{vL}")
    a(f"v_lshl_add_u32 v{vGA}, v{vGA}, 4, s{sBASE}")
    a("v_mov_b32 v12, 0")
    a("s_waitcnt lgkmcnt(0)")
    a(f"v_readlane_b32 s{sT0}, v33, 16")
    a(f"v_readlane_b32 s{sT1}, v33, 17")
    a("v_min_u32 v33, v33, v34")
    a(f"s_cmp_lg_u32 s{sT0}, 0")
    a(f"s_cselect_b32 s{sFL}, 1, 0")
    a(f"s_cmp_lg_u32 s{sT1}, 0")
    a(f"s_cselect_b32 s{sT1}, 2, 0")
    a(f"s_or_b32 s{sFL}, s{sFL}, s{sT1}")
    a(f"v_readlane_b32 s{sREM}, v33, s{sG}")
    a("s_nop 1")
    a("s_branch K2_START")
    a.label("K2_LOOP_DONE")
    a(f"s_cmp_lg_u32 s{sFL}, 0")
    a("s_cbranch_scc1 K2_ROUND")
    if OPT['diag'] == 2:
        stamp(a, 86, 6)
    if OPT["diag"] == 2:
        a("s_memtime s[94:95]")
        a("s_waitcnt lgkmcnt(0)")
        a("s_mov_b32 s89, s94")
    vL, vJ, vHF = 4, 5, 6
    lane_id(a, vL)
    a(f"v_and_b32 v{vJ}, 31, v{vL}")
    a(f"v_lshrrev_b32 v{vHF}, 5, v{vL}")
    a(f"v_bfe_u32 v7, v{vL}, 2, 2")
    a(f"v_lshl_add_u32 v7, v{vHF}, 2, v7")
    a(f"v_and_b32 v3, 3, v{vL}")
    a("v_lshl_add_u32 v7, v7, 3, v3")
    a(f"v_bfe_u32 v8, v{vL}, 4, 1")
    a("v_lshl_add_u32 v7, v8, 2, v7")
    a("v_lshlrev_b32 v7, 3, v7")
    BT = 64
    for ks in range(4):
        for tc in range(2):
            for q in range(2):
                a(f"ds_read_b64_tr_b16 {vr(BT+8*ks+4*tc+2*q, 2)}, v7 offset:{L_WH2 + tc*4096 + (16*ks + 8*q)*64}")
    a(f"v_lshlrev_b32 v8, 4, v{vHF}")
    WX = 12
    for ks in range(4):
        a(f"ds_read_b128 {vr(WX+4*ks, 4)}, v8 offset:{L_WX + 32*ks}")
    a(f"v_lshrrev_b32 v9, 2, v{vJ}")
    a(f"s_lshl_b32 s{sT0}, s{sG}, 8")
    a(f"v_lshl_add_u32 v10, v9, 5, s{sT0}")
    a(f"v_lshl_add_u32 v9, v9, 4, s{sG}")
    a(f"v_lshl_add_u32 v11, v{vHF}, 3, v10")
    a("v_lshl_add_u32 v10, v3, 2, v10")
    a(f"ds_read_b64 v[0:1], v11 offset:{L_TAB}")
    a(f"ds_read_b32 v2, v10 offset:{L_TAB + 16}")
    for q in range(16):
        a(f"v_mul_f32 v{ACC1+q}, {NLN2}, v{ACC1+q}")
    SP = 32
    for t in range(2):
        for i in range(8):
            b = (ACC0, ACC1)[t]
            a(f"v_cvt_pk_bf16_f32 v{SP+8*t+i}, v{b+2*i}, v{b+2*i+1}")
    D0, D1, D3 = 96, 112, 48
    a("s_waitcnt lgkmcnt(0)")
    a(f"v_mfma_f32_32x32x8bf16_1k {vr(D0, 16)}, v[0:1], {vr(CC, 2)}, 0")
    a(f"v_mfma_f32_32x32x8bf16_1k {vr(D1, 16)}, v[0:1], {vr(CC+2, 2)}, 0")
    a(f"s_lshl_b32 s{sT0}, s{sG}, 10")
    a(f"s_add_u32 s{sT0}, s{sT0}, {L_HIMG}")
    a(f"v_lshlrev_b32 v10, 2, v{vJ}")
    a("v_xor_b32 v11, v10, v8")
    a(f"v_lshl_add_u32 v11, v{vHF}, 7, v11")
    a(f"v_add_u32 v11, s{sT0}, v11")
    for ks in range(4):
        sp = vr(SP + 4 * ks, 4)
        a(f"v_mfma_f32_32x32x16_bf16 {vr(D0, 16)}, {sp}, {vr(BT+8*ks, 4)}, {vr(D0, 16)}")
        a(f"v_mfma_f32_32x32x16_bf16 {vr(D1, 16)}, {sp}, {vr(BT+8*ks+4, 4)}, {vr(D1, 16)}")
        g = ks
        if g:
            a(f"v_xor_b32 v7, {32*g}, v11")
        a(f"ds_read_b32 v{28+g}, v{7 if g else 11} offset:{256*g}")
    for ks in range(4):
        c = "0" if ks == 0 else vr(D3, 16)
        a(f"v_mfma_f32_32x32x16_bf16 {vr(D3, 16)}, {vr(WX+4*ks, 4)}, {vr(SP+4*ks, 4)}, {c}")
    a(f"s_mov_b32 s{SRD_O}, s14")
    a(f"s_mov_b32 s{SRD_O+1}, s15")
    a(f"s_mov_b32 s{SRD_O+2}, {N*128}")
    a(f"s_mov_b32 s{SRD_O+3}, 0x20000")
    a(f"s_lshl_b32 s{sT0}, s{sNODE}, 7")
    a(f"v_lshl_add_u32 v10, v{vHF}, 11, v10")
    a(f"v_add_u32 v10, s{sT0}, v10")
    a(f"s_mov_b32 s{sT1}, {BN}")
    a(f"v_cmp_gt_u32 s[{sT2}:{sT3}], s{sT1}, v9")
    a(f"s_mul_i32 s{sT1}, s{sB}, {BN}")
    a(f"v_add_u32 v9, s{sT1}, v9")
    a(f"v_cmp_gt_u32 vcc, {N}, v9")
    a(f"s_and_b32 s{sT2}, s{sT2}, vcc_lo")
    a(f"s_and_b32 s{sT2}, s{sT2}, 0x77777777")
    a(f"s_mov_b32 s{sT3}, 0")
    a("v_mul_u32_u24 v9, 6, v9")
    a("v_lshl_add_u32 v9, v3, 1, v9")
    a(f"v_add_u32 v9, {N*128}, v9")
    xs = [(D0, D1)[t] + 4 * g + 3 for g in range(4) for t in range(2)]
    ts = [64 + i for i in range(8)]
    hs = [72 + i for i in range(8)]
    for x, t in zip(xs, ts):
        a(f"v_mul_f32 v{t}, {NLOG2E}, v{x}")
    for t in ts:
        a(f"v_exp_f32 v{t}, v{t}")
    a("s_waitcnt lgkmcnt(0)")
    for g in range(4):
        a(f"v_lshlrev_b32 v{hs[2*g]}, 16, v{28+g}")
        a(f"v_and_b32 v{hs[2*g+1]}, 0xffff0000, v{28+g}")
    for t in ts:
        a(f"v_add_f32 v{t}, 1.0, v{t}")
    for t in ts:
        a(f"v_rcp_f32 v{t}, v{t}")
    a(f"v_add_f32 v2, v2, v{D3}")
    for x, t, h in zip(xs, ts, hs):
        a(f"v_fmac_f32 v{h}, v{x}, v{t}")
    a("v_cvt_pk_bf16_f32 v2, v2, v2")
    for g in range(4):
        a(f"v_cvt_pk_bf16_f32 v{28+g}, v{hs[2*g]}, v{hs[2*g+1]}")
    a("s_movk_i32 s24, 0x1000")
    a("s_movk_i32 s25, 0x2000")
    a("s_movk_i32 s26, 0x3000")
    for g in range(3):
        a(f"buffer_store_dword v{28+g}, v10, s[{SRD_O}:{SRD_O+3}], {'0' if g == 0 else 's' + str(23+g)} offen")
    a(f"s_mov_b64 exec, s[{sT2}:{sT3}]")
    a("s_cbranch_execz K2_NOPOS")
    a("global_store_short v9, v2, s[14:15]")
    a.label("K2_NOPOS")
    a(f"s_cmp_ge_u32 s{sG}, {BN - 96}")
    a("s_cbranch_scc1 K2_FIN")
    a("s_mov_b64 exec, 0xffffffff")
    a(f"buffer_store_dword v31, v10, s[{SRD_O}:{SRD_O+3}], s26 offen")
    a.label("K2_FIN")
    stamps_out(a, 86, 0, sW)
    a.label("K2_END")
    a("s_endpgm")
    return a


NAME = "standalone__cheap_equivariant_egnn__graph_kernel"
HEADER = """; EGNN layer on gfx950, one workgroup per CU. Each workgroup bins a chunk of the edges by destination bucket
"""


def make_safe(k):
    out = []
    for l in k.lines:
        if l.startswith("buffer_load_dword ") and f"s[{SRD_B}:{SRD_B+3}]" in l:
            v = l.split()[2].rstrip(",")
            out.append(f"v_min_u32 {v}, {(N - 1) * 4}, {v}")
        out.append(l)
    k.lines = out


def build(aslist):
    s = HEADER
    if aslist:
        s += f"; @launch kernel={NAME} grid=(256,1,1) block=(1024,1,1) lds={K_LDS}\n"
    else:
        s += f"; @launch grid=(256,1,1) block=(1024,1,1) lds={K_LDS}\n"
    s += '.amdgcn_target "amdgcn-amd-amdhsa--gfx950"\n.text\n'
    k = kernel()
    if OPT["safe"]:
        make_safe(k)
    s += f".globl {NAME}\n.p2align 8\n.type {NAME},@function\n{NAME}:\n" + k.render()
    s += f""".section .rodata,"a"
.p2align 6
.amdhsa_kernel {NAME}
  .amdhsa_next_free_vgpr 128
  .amdhsa_next_free_sgpr 96
  .amdhsa_accum_offset 128
  .amdhsa_group_segment_fixed_size 0
  .amdhsa_kernarg_size 88
  .amdhsa_user_sgpr_count 2
  .amdhsa_user_sgpr_kernarg_segment_ptr 1
  .amdhsa_system_sgpr_workgroup_id_x 1
  .amdhsa_float_denorm_mode_32 3
.end_amdhsa_kernel
"""
    return s


if __name__ == "__main__":
    out = sys.argv[1] if len(sys.argv) > 1 else "standalone__cheap_equivariant_egnn__graph.s"
    aslist = 0
    for arg in sys.argv[2:]:
        k, v = arg.split("=")
        if k == "list":
            aslist = int(v)
        else:
            OPT[k] = v if k.startswith('st_') else int(v)
    open(out, "w").write(build(aslist))
    print("wrote", out, "LDS", K_LDS)
```

```python
import struct
import sys
from asmlib import Asm

N = 25000
E = 800000
BN = 98
CH = 3128
CHB = 25088
K1_THREADS = 832
WS_B = 0
WS_PAY0 = 4 << 20
BSTR = 32768 + 256
WS_POS = 13 << 20
WS_FLAG = 14 << 20
WS_EPOCH = WS_FLAG + 65536
WS_POOL = 15 << 20
PSTR = 25088
WS_DIAG = 24 << 20

CAPS = [320, 320] + [256] * 14
BASES = [sum(CAPS[:g]) * 4 for g in range(17)]
L_SRC = 0
L_INF = BASES[16]
L_CNT = 2 * L_INF
L_WX = L_CNT + 384
L_WD = L_WX + 128
L_WH2 = L_WD + 544 + 96
L_TAB = L_WH2 + 8192
L_LUT = L_TAB + 4096
L_HIMG = L_LUT + 65536
L_OH = L_HIMG + 16384
K_LDS = L_OH + 32768
L_ST0 = 0
L_HIST = 32768
L_ST1 = L_LUT
L_WT = L_LUT + PSTR
L_INFO = L_WT + 24576
assert L_LUT < 65536 and L_OH % 64 == 0 and L_HIMG % 128 == 0 and K_LDS <= 163840, K_LDS
assert L_HIST + 1024 <= L_CNT and L_INFO + 2048 <= L_HIMG and L_WH2 % 128 == 0, (L_WH2, L_TAB)


def f2u(x):
    return struct.unpack("<I", struct.pack("<f", x))[0]


LOG2E = 1.4426950408889634
NLOG2E = hex(f2u(-LOG2E))
PLOG2E = hex(f2u(LOG2E))
NLN2 = hex(f2u(-0.6931471805599453))

OPT = dict(faithful_sq=1, prio=2, pk=0, diag=0, abl_lut=0, abl_g=0, abl_trans=0, startprio=0, bwide=1, st_pay='sc1', st_b='sc1', ormfma=0, pbshadow=1, glate=1, gspread=1, pf=0, safe=0, bar0=1, lutpos=1, bal=1, st_out='')


def stamp(a, base, i):
    if OPT["diag"]:
        a("s_waitcnt lgkmcnt(0)")
        a(f"s_memrealtime s[{base+8}:{base+9}]")
        a("s_waitcnt lgkmcnt(0)")
        a(f"s_mov_b32 s{base+i}, s{base+8}")


def stamps_out(a, base, kidx, swave):
    if OPT["diag"] == 3:
        a("s_waitcnt vmcnt(0)")
        stamp(a, base, 7)
        OPT["_n"] = OPT.get("_n", 0) + 1
        a("s_and_b32 s4, s2, 15")
        if not kidx:
            a(f"s_or_b32 s4, s4, s{swave}")
        a("s_cmp_lg_u32 s4, 0")
        a(f"s_cbranch_scc1 DBG_SKIP{OPT['_n']}")
        a(f"s_load_dwordx2 s[4:5], s[0:1], 72")
        a("s_waitcnt lgkmcnt(0)")
        a(f"s_add_u32 s4, s4, {32 if kidx else 512}")
        a("s_addc_u32 s5, s5, 0")
        a(f"s_not_b32 s{base}, s{base}")
        a("s_mov_b64 exec, 1")
        a("v_mov_b32 v0, 0")
        for i in range(8):
            a(f"v_mov_b32 v1, s{base+i}")
            a(f"global_atomic_umax v0, v1, s[4:5] offset:{4*i}")
        a.label(f"DBG_SKIP{OPT['_n']}")
    elif OPT["diag"]:
        a("s_waitcnt vmcnt(0)")
        stamp(a, base, 7)
        a("s_mov_b64 exec, 1")
        a(f"s_lshl_b32 s{base+8}, s2, 4")
        a(f"s_add_u32 s{base+8}, s{base+8}, s{swave}")
        a(f"s_lshl_b32 s{base+8}, s{base+8}, 5")
        a(f"s_add_u32 s{base+8}, s{base+8}, {WS_DIAG + kidx * (1 << 20)}")
        a(f"v_mov_b32 v0, s{base+8}")
        for i in range(8):
            a(f"v_mov_b32 v1, s{base+i}")
            a(f"global_store_dword v0, v1, s[16:17] offset:{4*i}")


def vr(b, n):
    return f"v[{b}:{b+n-1}]"


assert BASES[:4] == [0, 1280, 2560, 3584]

ACC0, ACC1, RAWA, RAWB, X0, OH, T, LA, CC, WE0, WE1, XE, VV, PS = 96, 112, 64, 80, 48, 40, 36, 32, 28, 16, 22, 10, 8, 4
vINF, vOHA, vTRA, vLB, vGA = 7, 3, 2, 1, 0
sB, sW, sREM, sJ, sFL, sNODE = 18, 19, 20, 21, 22, 23
sM = 24
sLO, sHI = 40, 42
SRD_B, SRD_POS = 44, 48
sSEL, sBASE, sT0, sT1, sT2, sT3, sLONG = 52, 53, 54, 55, 56, 57, 58
SRD_O = 60


def P(a, p):
    if OPT["prio"] == 1:
        a(f"s_setprio {p}")


def prog_prio(a, tag):
    if OPT["prio"] == 2:
        a("s_setprio 3")
        a(f"s_cmp_gt_u32 s{sREM}, {OPT.get('p3', 160)}")
        a(f"s_cbranch_scc1 K2_PP{tag}")
        a("s_setprio 2")
        a(f"s_cmp_gt_u32 s{sREM}, {OPT.get('p2', 96)}")
        a(f"s_cbranch_scc1 K2_PP{tag}")
        a("s_setprio 1")
        a(f"s_cmp_gt_u32 s{sREM}, {OPT.get('p1', 32)}")
        a(f"s_cbranch_scc1 K2_PP{tag}")
        a("s_setprio 0")
        a.label(f"K2_PP{tag}")


def G_reads(a, dst, imm):
    for g in range(4):
        a(f"ds_read_b128 {vr(dst+4*g, 4)}, v{vGA} offset:{L_SRC + imm + 32*g}")


def G_issue(a, dst, younger):
    for g in range(4):
        a(f"s_waitcnt lgkmcnt({3 - g + younger})")
        for r in range(4):
            q = dst + 4 * g + r
            if OPT["abl_g"]:
                a("s_nop 0")
            else:
                a(f"buffer_load_dword v{q}, v{q}, s[{SRD_B}:{SRD_B+3}], 0 offen")


def PA_reads(a):
    a(f"ds_read_addtid_b32 v{PS} offset:{L_SRC}")
    a(f"ds_read_addtid_b32 v{vINF} offset:{L_INF}")


def PA_issue(a):
    a(f"buffer_load_dwordx3 {vr(PS, 3)}, v{PS}, s[{SRD_POS}:{SRD_POS+3}], 0 idxen")
    a("s_add_u32 m0, m0, 256")


def PB_read_pos(a):
    a(f"v_lshrrev_b32 v{LA}, 4, v{vINF}")
    a(f"v_and_b32 v{LA}, 0xfe0, v{LA}")
    a(f"ds_read_b128 {vr(T, 4)}, v{LA} offset:{L_TAB + 16}")


def PB_read_oh(a):
    a(f"ds_read_b64 {vr(XE, 2)}, v{LA} offset:{L_TAB}")
    a(f"ds_read_b64 {vr(XE+4, 2)}, v{LA} offset:{L_TAB + 8}")


def PB_math(a):
    a(f"v_perm_b32 v{XE+3}, v{vINF}, v{vINF}, s{sSEL}")
    for i in range(3):
        a(f"v_sub_f32 v{T+i}, v{T+i}, v{PS+i}")
    a(f"v_xor_b32 v{vOHA}, v{T+3}, v{vLB}")
    a(f"v_cvt_pk_bf16_f32 v{VV}, v{T}, v{T+1}")
    a(f"v_cvt_pk_bf16_f32 v{VV+1}, v{T+2}, 1.0")
    a(f"v_lshlrev_b32 v{T}, 16, v{VV}")
    a(f"v_and_b32 v{T+1}, 0xffff0000, v{VV}")
    a(f"v_lshlrev_b32 v{T+2}, 16, v{VV+1}")
    if OPT["faithful_sq"]:
        for i in range(3):
            a(f"v_mul_f32 v{T+i}, v{T+i}, v{T+i}")
        a(f"v_cvt_pk_bf16_f32 v{T+3}, v{T}, v{T+1}")
        a(f"v_cvt_pk_bf16_f32 v{T+2}, 0, v{T+2}")
        a(f"v_lshlrev_b32 v{T}, 16, v{T+3}")
        a(f"v_and_b32 v{T+1}, 0xffff0000, v{T+3}")
        a(f"v_add_f32 v{T}, v{T}, v{T+1}")
        a(f"v_add_f32 v{T}, v{T}, v{T+2}")
    else:
        a(f"v_mul_f32 v{T}, v{T}, v{T}")
        a(f"v_fmac_f32 v{T}, v{T+1}, v{T+1}")
        a(f"v_fmac_f32 v{T}, v{T+2}, v{T+2}")
    a(f"v_cvt_pk_bf16_f32 v{XE+2}, v{T}, v{T}")


def PB_swap(a):
    a(f"v_permlane32_swap_b32 v{XE}, v{XE+4}")
    a(f"v_permlane32_swap_b32 v{XE+1}, v{XE+5}")


def emit_PB(a):
    PB_read_pos(a)
    PB_read_oh(a)
    a("s_waitcnt lgkmcnt(2)")
    PB_math(a)
    a("s_waitcnt lgkmcnt(0)")
    PB_swap(a)


def emit_masks(a):
    a(f"s_bfm_b64 s[{sT2}:{sT2+1}], s{sREM}, 0")
    a(f"s_cmp_ge_u32 s{sREM}, 64")
    a(f"s_cselect_b32 s{sLO}, -1, s{sT2}")
    a(f"s_cselect_b32 s{sHI+1}, -1, s{sT2+1}")


def lut_half(a, h):
    b = X0 + 8 * h
    for i in range(4):
        a(f"v_cvt_pk_bf16_f32 v{b+i}, v{b+2*i}, v{b+2*i+1}")
    for i in range(4):
        a(f"v_lshlrev_b16 v{b+4+i}, 1, v{b+i}")
        a(f"v_lshlrev_b16_sdwa v{LA+i}, 1, v{b+i} dst_sel:DWORD dst_unused:UNUSED_PAD src0_sel:DWORD src1_sel:WORD_1")
        if not OPT["abl_lut"]:
            a(f"ds_read_u16 v{b+4+i}, v{b+4+i} offset:{L_LUT}")
            a(f"ds_read_u16_d16_hi v{LA+i}, v{LA+i} offset:{L_LUT}")
    for i in range(4):
        a(f"v_pk_max_i16 v{b+i}, v{b+i}, 0")


def lut_merge(a, h):
    if OPT["ormfma"]:
        a(f"v_mfma_f32_32x32x16_bf16 {vr(ACC0, 16)}, {vr(LA, 4)}, {vr(OH+4*h, 4)}, {vr(ACC0, 16)}")
        return
    b = X0 + 8 * h
    P(a, 0)
    for i in range(4):
        a(f"v_or_b32 v{b+4+i}, v{b+4+i}, v{LA+i}")
    P(a, 1)


def valu_half(a, raw, h, extra=()):
    if extra:
        b = Asm()
        valu_half(b, raw, h)
        extra = list(extra)
        n, k = len(b.lines), 0
        for i, l in enumerate(b.lines):
            a(l)
            while k < len(extra) and (k + 1) * n <= (i + 1) * len(extra):
                a(extra[k])
                k += 1
        for l in extra[k:]:
            a(l)
        return
    if OPT["abl_trans"]:
        return
    for qq in range(2):
        xs = [raw + 8 * h + 4 * qq + i for i in range(4)]
        ts = [T + i for i in range(4)]
        for x, t in zip(xs, ts):
            a(f"v_exp_f32 v{t}, v{x}")
        if OPT["pk"]:
            for t in ts[::2]:
                a(f"v_pk_add_f32 {vr(t, 2)}, {vr(t, 2)}, 1.0 op_sel_hi:[1,0]")
        else:
            P(a, 0)
            for t in ts:
                a(f"v_add_f32 v{t}, 1.0, v{t}")
            P(a, 1)
        for t in ts:
            a(f"v_rcp_f32 v{t}, v{t}")
        if OPT["pk"]:
            for x, t in zip(xs[::2], ts[::2]):
                a(f"v_pk_mul_f32 {vr(t, 2)}, {vr(t, 2)}, {vr(x, 2)}")
        else:
            P(a, 0)
            for x, t in zip(xs, ts):
                a(f"v_mul_f32 v{t}, v{x}, v{t}")
            P(a, 1)
        for i in range(2):
            a(f"v_cvt_pk_bf16_f32 v{raw+8*h+2*qq+i}, v{ts[2*i]}, v{ts[2*i+1]}")


def seg3(a, raw, h):
    for acc, op in ((ACC0, X0 + 8 * h), (ACC1, raw + 8 * h), (ACC0, X0 + 8 * h + 4)):
        a(f"v_mfma_f32_32x32x16_bf16 {vr(acc, 16)}, {vr(op, 4)}, {vr(OH+4*h, 4)}, {vr(acc, 16)}")


def emit_tile(a, par):
    L = f"K2_T{par}"
    cur, nxt = (RAWA, RAWB) if par == 0 else (RAWB, RAWA)
    m = sLO if par == 0 else sHI
    zz = WE0 if par == 0 else WE0 + 4
    shadow = OPT["pbshadow"] and par == 1
    prog_prio(a, par)
    a(f"s_cmp_le_u32 s{sREM}, 32")
    a(f"s_cbranch_scc1 {L}_NG1")
    if shadow:
        PB_read_pos(a)
    G_reads(a, nxt, 128 if par == 0 else 256)
    a.label(f"{L}_NG1")
    a(f"s_mov_b64 exec, s[{m}:{m+1}]")
    a(f"ds_write_b64 v{vOHA}, {vr(VV, 2)}")
    a("s_mov_b64 exec, -1")
    for q in range(4):
        a(f"ds_read_b64_tr_b16 {vr(OH+2*q, 2)}, v{vTRA} offset:{512*q}")
    a(f"s_mov_b64 exec, s[{m}:{m+1}]")
    a(f"ds_write_b64 v{vOHA}, {vr(zz, 2)}")
    a("s_mov_b64 exec, -1")
    if par == 0:
        PA_reads(a)
    a("s_waitcnt vmcnt(0)")
    P(a, 0)
    for q in range(16):
        a(f"v_lshlrev_b32 v{X0+q}, 16, v{cur+q}")
    P(a, 1)
    xe = XE if par == 0 else XE + 2
    wo = 2 if par == 0 else 0
    a(f"v_mfma_f32_32x32x16_bf16 {vr(X0, 16)}, {vr(xe, 4)}, {vr(WE0+wo, 4)}, {vr(X0, 16)}")
    a(f"v_mfma_f32_32x32x16_bf16 {vr(cur, 16)}, {vr(xe, 4)}, {vr(WE1+wo, 4)}, {vr(cur, 16)}")
    a(f"s_cmp_le_u32 s{sREM}, 32")
    a(f"s_cbranch_scc1 {L}_NG2")
    younger = 8 if par == 0 else 6
    if shadow:
        PB_read_oh(a)
        younger += 2
        a(f"s_waitcnt lgkmcnt({4 + younger})")
        PB_math(a)
    if not OPT["glate"]:
        G_issue(a, nxt, younger)
        if par == 0:
            a(f"s_cmp_le_u32 s{sREM}, 64")
            a(f"s_cbranch_scc1 {L}_GO")
            a("s_waitcnt lgkmcnt(0)")
            PA_issue(a)
    if shadow or not OPT["glate"]:
        a(f"s_branch {L}_GO")
    a.label(f"{L}_NG2")
    a("s_nop 9")
    a.label(f"{L}_GO")
    lut_half(a, 0)
    valu_half(a, cur, 0)
    a("s_waitcnt lgkmcnt(0)")
    lut_merge(a, 0)
    a(f"s_cmp_le_u32 s{sREM}, 16")
    a(f"s_cbranch_scc1 {L}_HALF")
    lut_half(a, 1)
    if OPT["gspread"]:
        seg3(a, cur, 0)
        if shadow:
            PB_swap(a)
        a(f"s_cmp_le_u32 s{sREM}, 32")
        a(f"s_cbranch_scc1 {L}_LASTV")
        ex = [f"buffer_load_dword v{nxt+q}, v{nxt+q}, s[{SRD_B}:{SRD_B+3}], 0 offen" for q in range(16)]
        valu_half(a, cur, 1, ex)
        if par == 0:
            a(f"s_cmp_le_u32 s{sREM}, 64")
            a(f"s_cbranch_scc1 {L}_NG3")
            PA_issue(a)
            a.label(f"{L}_NG3")
        a("s_waitcnt lgkmcnt(0)")
        lut_merge(a, 1)
        seg3(a, cur, 1)
        a(f"s_sub_u32 s{sREM}, s{sREM}, 32")
        if par == 1:
            a(f"v_add_u32 v{vGA}, 256, v{vGA}")
            if not shadow:
                emit_PB(a)
            emit_masks(a)
            a("s_branch K2_T0")
        else:
            a("s_branch K2_T1")
        a.label(f"{L}_LASTV")
        valu_half(a, cur, 1)
        a("s_waitcnt lgkmcnt(0)")
        lut_merge(a, 1)
        seg3(a, cur, 1)
        a("s_branch K2_LOOP_DONE")
        a.label(f"{L}_HALF")
        seg3(a, cur, 0)
        a("s_branch K2_LOOP_DONE")
        return
    if OPT["glate"]:
        a(f"s_cmp_le_u32 s{sREM}, 32")
        a(f"s_cbranch_scc1 {L}_NG3")
        for q in range(16):
            a(f"buffer_load_dword v{nxt+q}, v{nxt+q}, s[{SRD_B}:{SRD_B+3}], 0 offen")
        if par == 0:
            a(f"s_cmp_le_u32 s{sREM}, 64")
            a(f"s_cbranch_scc1 {L}_NG3")
            PA_issue(a)
        a.label(f"{L}_NG3")
    seg3(a, cur, 0)
    if shadow:
        PB_swap(a)
    valu_half(a, cur, 1)
    a("s_waitcnt lgkmcnt(0)")
    lut_merge(a, 1)
    a(f"s_cmp_le_u32 s{sREM}, 32")
    seg3(a, cur, 1)
    a("s_cbranch_scc1 K2_LOOP_DONE")
    a(f"s_sub_u32 s{sREM}, s{sREM}, 32")
    if par == 1:
        a(f"v_add_u32 v{vGA}, 256, v{vGA}")
        if not shadow:
            emit_PB(a)
        emit_masks(a)
        a("s_branch K2_T0")
    else:
        a("s_branch K2_T1")
    a.label(f"{L}_HALF")
    seg3(a, cur, 0)
    a("s_branch K2_LOOP_DONE")


def lane_id(a, v):
    a(f"v_mbcnt_lo_u32_b32 v{v}, -1, 0")
    a(f"v_mbcnt_hi_u32_b32 v{v}, -1, v{v}")


sTAG, sG, sRK, sVAL, sA0, sA1, sPC = 72, 73, 74, 76, 78, 80, 82
POLL_MAX = 1 << 18


def st1(a, i):
    if OPT["diag"] == 1:
        stamp(a, 86, i)


def append4(a, data, masks, tmp):
    for u in range(4):
        a(f"s_mov_b64 exec, s[{masks+2*u}:{masks+2*u+1}]")
        a(f"v_lshrrev_b32 v{tmp+u}, 10, v{data+2*u+1}")
        a(f"v_and_b32 v{tmp+u}, 0x3c, v{tmp+u}")
        a(f"ds_add_rtn_u32 v{tmp+u}, v{tmp+u}, v48 offset:{L_CNT}")
    for u in range(4):
        a(f"s_mov_b64 exec, s[{masks+2*u}:{masks+2*u+1}]")
        a(f"s_waitcnt lgkmcnt({3 + u})")
        a(f"v_min_u32 v{tmp+u}, {L_INF - 4}, v{tmp+u}")
        a(f"ds_write_b32 v{tmp+u}, v{data+2*u} offset:{L_SRC}")
        a(f"ds_write_b32 v{tmp+u}, v{data+2*u+1} offset:{L_INF}")
    a("s_mov_b64 exec, -1")


def kernel():
    a = Asm()
    vL, vT = 60, 61
    a("s_cmp_ge_u32 s2, 256")
    a("s_cbranch_scc1 K2_END")
    a("s_load_dwordx8 s[4:11], s[0:1], 0")
    a("s_load_dwordx8 s[64:71], s[0:1], 32")
    a("s_load_dwordx2 s[14:15], s[0:1], 64")
    a("s_load_dwordx2 s[16:17], s[0:1], 80")
    stamp(a, 86, 0)
    a("v_lshrrev_b32 v1, 6, v0")
    a(f"v_mov_b32 v{vT}, v0")
    a(f"v_readfirstlane_b32 s{sW}, v1")
    a(f"s_and_b32 s{sB}, s2, 7")
    a(f"s_lshl_b32 s{sB}, s{sB}, 5")
    a("s_lshr_b32 s3, s2, 3")
    a(f"s_add_u32 s{sB}, s{sB}, s3")
    a(f"s_mul_i32 s3, s{sB}, {CH}")
    a("v_lshl_add_u32 v3, v0, 2, s3")
    a(f"v_cmp_gt_u32 vcc, {CH // 4}, v0")
    a(f"s_mov_b32 s{sT0}, {E}")
    a(f"v_cmp_gt_u32 s[{sVAL}:{sVAL+1}], s{sT0}, v3")
    a("v_lshlrev_b32 v4, 2, v3")
    a("v_lshlrev_b32 v5, 1, v3")
    a(f"s_and_b64 s[{sVAL}:{sVAL+1}], s[{sVAL}:{sVAL+1}], vcc")
    a(f"v_and_b32 v{vL}, 63, v0")
    a(f"v_mov_b32 v6, {WS_EPOCH}")
    a(f"s_cmp_gt_u32 s{sW}, 12")
    a("s_waitcnt lgkmcnt(0)")
    a("s_cbranch_scc1 F_NOEDGE0")
    a(f"s_mov_b64 exec, s[{sVAL}:{sVAL+1}]")
    a("global_load_dwordx4 v[8:11], v4, s[64:65]")
    a("global_load_dwordx4 v[12:15], v4, s[10:11]")
    a("global_load_dwordx2 v[16:17], v5, s[8:9]")
    a("s_mov_b64 exec, -1")
    a.label("F_NOEDGE0")
    a("global_load_dword v18, v6, s[16:17] sc1")
    a(f"s_mul_i32 s{sNODE}, s{sB}, {BN}")
    a(f"s_add_u32 s3, s{sNODE}, s{sW}")
    a(f"v_lshrrev_b32 v32, 3, v{vL}")
    a(f"v_xor_b32 v33, v32, v{vL}")
    a("v_and_b32 v33, 7, v33")
    a("s_lshl_b32 s3, s3, 7")
    a("v_lshl_add_u32 v34, v32, 11, s3")
    a(f"v_min_u32 v34, {(N - 1) * 128}, v34")
    a("v_lshl_add_u32 v34, v33, 4, v34")
    a(f"s_lshl_b32 s{sT1}, s{sW}, 10")
    a(f"s_add_u32 m0, s{sT1}, {L_HIMG}")
    a(f"s_and_b32 s{sT0}, s{sW}, 11")
    a("global_load_lds_dwordx4 v34, s[4:5]")
    a(f"s_lshl_b32 s{sT2}, s{sT0}, 11")
    a(f"s_lshr_b32 s{sT0}, s{sW}, 3")
    a(f"s_lshl_b32 s{sT0}, s{sT0}, 13")
    a(f"s_sub_u32 s{sT2}, s{sT2}, s{sT0}")
    a(f"s_bfe_u32 s{sT0}, s{sW}, 0x10002")
    a(f"s_lshl_b32 s{sT0}, s{sT0}, 6")
    a(f"s_add_u32 s{sT2}, s{sT2}, s{sT0}")
    a(f"v_lshrrev_b32 v33, 2, v{vL}")
    a(f"v_lshl_add_u32 v33, v33, 7, s{sT2}")
    a(f"v_and_b32 v35, 3, v{vL}")
    a("v_lshl_add_u32 v33, v35, 4, v33")
    a(f"s_add_u32 m0, s{sT1}, {L_WT}")
    a(f"v_lshlrev_b32 v62, 4, v{vT}")
    a("global_load_lds_dwordx4 v33, s[66:67]")
    a("global_load_dwordx4 v[44:47], v62, s[70:71]")
    a(f"s_cmp_lt_u32 s{sW}, 13")
    a("s_cbranch_scc1 F_SIDE0_DONE")
    a(f"s_cmp_eq_u32 s{sW}, 15")
    a("s_cbranch_scc1 F_SIDE0_W")
    a(f"v_subrev_u32 v20, {13*64}, v{vT}")
    a(f"v_add_u32 v21, s{sNODE}, v20")
    a(f"v_cmp_gt_u32 vcc, {BN}, v20")
    a(f"s_mov_b32 s3, {N}")
    a(f"v_cmp_gt_u32 s[{sA0}:{sA0+1}], s3, v21")
    a("v_mul_u32_u24 v22, 6, v21")
    a(f"s_and_b64 s[{sA0}:{sA0+1}], s[{sA0}:{sA0+1}], vcc")
    a(f"s_mov_b64 exec, s[{sA0}:{sA0+1}]")
    for i in range(3):
        a(f"global_load_ushort v{8+i}, v22, s[6:7] offset:{2*i}")
    a("s_mov_b64 exec, -1")
    a("s_branch F_SIDE0_DONE")
    a.label("F_SIDE0_W")
    a(f"v_and_b32 v20, 31, v{vL}")
    a("v_lshlrev_b32 v21, 1, v20")
    a("v_add_u32 v21, 0x4000, v21")
    for i, off in enumerate((0, 64, 128, 192)):
        a(f"global_load_ushort v{8+i}, v21, s[66:67] offset:{off}")
    a("v_lshrrev_b32 v21, 3, v20")
    a("v_lshlrev_b32 v21, 5, v21")
    a("v_bfe_u32 v22, v20, 1, 1")
    a("v_lshl_add_u32 v21, v22, 4, v21")
    a("v_bfe_u32 v22, v20, 2, 1")
    a("v_lshl_add_u32 v21, v22, 3, v21")
    a("v_and_b32 v22, 1, v20")
    a("v_lshl_add_u32 v21, v22, 2, v21")
    a("global_load_dword v12, v21, s[68:69]")
    a.label("F_SIDE0_DONE")
    a("v_mov_b64 v[36:37], 0")
    a("v_mov_b64 v[38:39], 0")
    a(f"ds_write_b128 v62, v[36:39] offset:{L_ST0}")
    a(f"ds_write_b128 v62, v[36:39] offset:{L_ST0 + 16384}")
    a(f"ds_write_b128 v62, v[36:39] offset:{L_ST1}")
    a(f"s_cmp_gt_u32 s{sW}, 8")
    a("s_cbranch_scc1 F_Z1")
    a(f"v_cmp_gt_u32 vcc, {(PSTR - 16384) // 16}, v{vT}")
    a("s_mov_b64 exec, vcc")
    a(f"ds_write_b128 v62, v[36:39] offset:{L_ST1 + 16384}")
    a("s_mov_b64 exec, -1")
    a(f"s_cmp_gt_u32 s{sW}, 2")
    a("s_cbranch_scc1 F_Z1")
    a(f"s_cmp_eq_u32 s{sW}, 1")
    a("s_cbranch_scc1 F_ZCNT")
    a(f"s_cmp_eq_u32 s{sW}, 2")
    a("s_cbranch_scc1 F_ZOH")
    a(f"ds_write_b128 v62, v[36:39] offset:{L_HIST}")
    a("s_branch F_Z1")
    a.label("F_ZCNT")
    a(f"v_and_b32 v40, 15, v{vL}")
    a(f"v_cmp_lt_u32 vcc, 47, v{vL}")
    a("v_addc_co_u32 v41, vcc, 0, v40, vcc")
    a("v_min_u32 v42, 2, v41")
    a("v_lshlrev_b32 v42, 8, v42")
    a("v_lshl_add_u32 v42, v41, 10, v42")
    a("s_mov_b32 exec_lo, 0")
    a("s_mov_b32 exec_hi, 0xffff")
    a("v_lshlrev_b32 v42, 2, v42")
    a("v_sub_u32 v42, v40, v42")
    a("s_mov_b32 exec_lo, 0xffff0000")
    a("s_mov_b32 exec_hi, 0")
    a("v_mov_b32 v42, 0")
    a("s_mov_b64 exec, -1")
    a(f"v_lshlrev_b32 v41, 2, v{vL}")
    a(f"ds_write_b32 v41, v42 offset:{L_CNT}")
    a("s_mov_b32 exec_hi, 0")
    a(f"ds_write_b32 v41, v42 offset:{L_CNT + 256}")
    a("s_mov_b64 exec, -1")
    a("s_branch F_Z1")
    a.label("F_ZOH")
    a(f"v_and_b32 v40, 1, v{vL}")
    a("v_lshlrev_b32 v40, 4, v40")
    a("v_mov_b32 v41, 0x3f80")
    a("v_lshlrev_b32 v40, v40, v41")
    a(f"v_bfe_u32 v41, v{vL}, 1, 2")
    for d in range(4):
        a(f"v_cmp_eq_u32 s[{sM+2*d}:{sM+2*d+1}], {d}, v41")
    for d in range(4):
        a(f"v_cndmask_b32 v{52+d}, 0, v40, s[{sM+2*d}:{sM+2*d+1}]")
    a(f"v_lshlrev_b32 v41, 5, v{vL}")
    a(f"ds_write_b128 v41, v[52:55] offset:{L_TAB}")
    a(f"ds_write_b128 v41, v[52:55] offset:{L_TAB + 2048}")
    a.label("F_Z1")
    a("s_mov_b32 s83, 43826197")
    a(f"s_mov_b32 s84, {-BN}")
    a("v_mov_b32 v19, 1")
    a("s_waitcnt lgkmcnt(0)")
    a("s_barrier")
    a(f"v_lshrrev_b32 v40, 5, v{vL}")
    a(f"v_xor_b32 v41, v40, v{vL}")
    a("v_and_b32 v41, 7, v41")
    a(f"v_and_b32 v42, 31, v{vL}")
    a(f"s_lshr_b32 s3, s{sW}, 2")
    a("s_lshl_b32 s3, s3, 12")
    a(f"s_add_u32 s3, s3, {L_HIMG}")
    a("v_lshl_add_u32 v43, v42, 7, s3")
    a("v_lshl_add_u32 v4, v41, 4, v43")
    for s_ in range(1, 4):
        a(f"v_xor_b32 v{4+s_}, {32*s_}, v4")
    a(f"v_bfe_u32 v41, v{vL}, 2, 2")
    a("v_lshl_add_u32 v41, v40, 3, v41")
    a("v_lshl_add_u32 v41, v41, 3, v35")
    a(f"v_bfe_u32 v43, v{vL}, 4, 1")
    a("v_lshl_add_u32 v41, v43, 2, v41")
    a(f"s_and_b32 s{sT0}, s{sW}, 1")
    a(f"s_lshl_b32 s{sT0}, s{sT0}, 12")
    a(f"s_and_b32 s{sT2}, s{sW}, 2")
    a(f"s_lshl_b32 s{sT2}, s{sT2}, 13")
    a(f"s_add_u32 s{sT0}, s{sT0}, s{sT2}")
    a(f"s_add_u32 s{sT0}, s{sT0}, {L_WT}")
    a(f"v_lshl_add_u32 v63, v41, 3, s{sT0}")
    a("v_lshlrev_b32 v59, 3, v41")
    a(f"v_add_u32 v59, {L_WT + 8192}, v59")
    a(f"s_and_b32 s{sT0}, s{sW}, 7")
    a(f"s_lshl_b32 s{sT0}, s{sT0}, 9")
    a(f"s_mov_b32 s{sT2}, {L_WT + 16384}")
    a(f"s_cmp_ge_u32 s{sW}, 8")
    a(f"s_cselect_b32 s{sT2}, {L_WH2}, s{sT2}")
    a(f"s_add_u32 s{sT0}, s{sT0}, s{sT2}")
    a(f"v_lshl_add_u32 v58, v{vL}, 3, s{sT0}")
    a("s_mov_b32 s85, 0x05040100")
    a(f"s_mov_b32 s{sSEL}, 0x07060302")
    a(f"s_cmp_gt_u32 s{sW}, 12")
    a("s_cbranch_scc1 F_SIDE1")
    a(f"s_mov_b64 exec, s[{sVAL}:{sVAL+1}]")
    a("s_waitcnt vmcnt(6)")
    st1(a, 1)
    for i in range(4):
        a(f"v_mul_hi_u32 v{20+i}, v{8+i}, s83")
    for i in range(4):
        a(f"v_mad_i32_i24 v{8+i}, v{20+i}, s84, v{8+i}")
        a(f"v_lshlrev_b32 v{20+i}, 2, v{20+i}")
        a(f"ds_add_rtn_u32 v{24+i}, v{20+i}, v19 offset:{L_HIST}")
    a("s_waitcnt vmcnt(4)")
    for i in range(4):
        a(f"v_lshlrev_b32 v{28+2*i}, 2, v{12+i}")
        if i % 2 == 0:
            a(f"v_lshlrev_b32 v{29+2*i}, 16, v{16+i//2}")
        else:
            a(f"v_and_b32 v{29+2*i}, 0xffff0000, v{16+i//2}")
        a(f"v_and_b32 v{12+i}, 15, v{8+i}")
        a(f"v_lshrrev_b32 v{8+i}, 4, v{8+i}")
        a(f"v_lshl_or_b32 v{29+2*i}, v{12+i}, 12, v{29+2*i}")
        a(f"v_lshl_or_b32 v{29+2*i}, v{8+i}, 9, v{29+2*i}")
        a(f"v_lshlrev_b32 v{12+i}, 5, v{20+i}")
        a(f"v_lshlrev_b32 v{20+i}, 1, v{20+i}")
        a(f"v_add_u32 v{20+i}, {L_INFO}, v{20+i}")
    a("s_mov_b64 exec, -1")
    a("s_waitcnt vmcnt(0)")
    a("s_branch F_SIDE1_DONE")
    a.label("F_SIDE1")
    a("s_waitcnt vmcnt(0)")
    a(f"s_cmp_eq_u32 s{sW}, 15")
    a("s_cbranch_scc1 F_SIDE1_W")
    a(f"s_mov_b64 exec, s[{sA0}:{sA0+1}]")
    for i in range(3):
        a(f"v_lshlrev_b32 v{8+i}, 16, v{8+i}")
    a("v_lshrrev_b32 v22, 4, v20")
    a("v_lshlrev_b32 v11, 3, v22")
    a(f"s_mov_b32 s3, {WS_POS}")
    a("v_lshl_add_u32 v21, v21, 4, s3")
    a("global_store_dwordx4 v21, v[8:11], s[16:17] sc1")
    a("v_and_b32 v20, 15, v20")
    a("v_lshl_add_u32 v20, v20, 3, v22")
    a("v_lshlrev_b32 v20, 5, v20")
    a(f"ds_write_b128 v20, v[8:11] offset:{L_TAB + 16}")
    a("s_mov_b64 exec, -1")
    a("s_branch F_SIDE1_DONE")
    a.label("F_SIDE1_W")
    for r in (9, 11):
        a(f"v_lshlrev_b32 v{r}, 16, v{r}")
        a(f"v_mul_f32 v{r}, {NLOG2E}, v{r}")
        a(f"v_cvt_pk_bf16_f32 v20, v{r}, 0")
        a("v_lshlrev_b32 v20, 16, v20")
        a(f"v_sub_f32 v21, v{r}, v20")
        a(f"v_cvt_pk_bf16_f32 v{r}, v20, v21")
    a(f"v_cmp_gt_u32 s[{sA0}:{sA0+1}], 32, v{vL}")
    for i, r in enumerate((8, 10, 9, 11)):
        a(f"v_cndmask_b32 v{20+i}, 0, v{r}, s[{sA0}:{sA0+1}]")
    a(f"v_lshlrev_b32 v8, 3, v{vL}")
    a(f"v_lshlrev_b32 v9, 2, v{vL}")
    a("s_mov_b32 exec_hi, 3")
    a(f"ds_write_b64 v8, v[20:21] offset:{L_WD}")
    a(f"ds_write_b64 v8, v[22:23] offset:{L_WD + 272}")
    a("s_mov_b32 exec_hi, 0")
    a(f"ds_write_b32 v9, v12 offset:{L_WX}")
    a("s_mov_b64 exec, -1")
    a.label("F_SIDE1_DONE")
    a("v_perm_b32 v52, v45, v44, s85")
    a("v_perm_b32 v53, v47, v46, s85")
    a(f"v_perm_b32 v54, v45, v44, s{sSEL}")
    a(f"v_perm_b32 v55, v47, v46, s{sSEL}")
    a("ds_write_b64 v58, v[52:53]")
    a("ds_write_b64 v58, v[54:55] offset:4096")
    a(f"v_readfirstlane_b32 s{sTAG}, v18")
    a("s_waitcnt lgkmcnt(0)")
    a("s_barrier")
    st1(a, 2)
    a(f"s_add_u32 s{sTAG}, s{sTAG}, 0x20000")
    a(f"s_and_b32 s{sTAG}, s{sTAG}, 0xfffe0000")
    a(f"s_cmp_gt_u32 s{sW}, 3")
    a("s_cbranch_scc1 F_NOINFO")
    a(f"v_lshlrev_b32 v40, 2, v{vT}")
    a(f"ds_read_b32 v41, v40 offset:{L_HIST}")
    a("v_mov_b32 v43, 0")
    a(f"v_lshlrev_b32 v40, 3, v{vT}")
    a(f"v_add_u32 v40, {L_INFO}, v40")
    a("s_waitcnt lgkmcnt(0)")
    a("v_add_u32 v41, 15, v41")
    a("v_lshrrev_b32 v41, 4, v41")
    a("v_sub_u32 v41, v41, 1 clamp")
    a("v_cmp_lt_u32 vcc, 0, v41")
    a("s_mov_b64 exec, vcc")
    a(f"ds_add_rtn_u32 v43, v36, v41 offset:{L_CNT + 320}")
    a("s_mov_b64 exec, -1")
    a("v_lshlrev_b32 v41, 1, v41")
    a("v_add_u32 v41, 0x10001, v41")
    a(f"s_mov_b32 s3, {L_ST1 - 128}")
    a("s_waitcnt lgkmcnt(0)")
    a("v_lshl_or_b32 v42, v43, 17, v41")
    a("v_lshl_add_u32 v43, v43, 7, s3")
    a("ds_write_b64 v40, v[42:43]")
    a.label("F_NOINFO")
    for s_ in range(4):
        a(f"ds_read_b128 {vr(64+4*s_, 4)}, v{4+s_}")
        for q in range(2):
            a(f"ds_read_b64_tr_b16 {vr(80+4*s_+2*q, 2)}, v63 offset:{s_*1024 + q*256}")
    a(f"s_cmp_lt_u32 s{sW}, 12")
    a("s_cbranch_scc1 F_NOB1")
    a(f"s_sub_u32 s3, s{sW}, 15")
    a("s_lshl_b32 s3, s3, 12")
    a("s_waitcnt lgkmcnt(8)")
    for s_ in range(4):
        a(f"v_add_u32 v{4+s_}, s3, v{4+s_}")
        a(f"ds_read_b128 {vr(36+4*s_, 4)}, v{4+s_}")
    slots = (52, 0, 4)
    a("s_waitcnt lgkmcnt(4)")

    def rd(k):
        s_, t = k >> 1, k & 1
        for q in range(2):
            a(f"ds_read_b64_tr_b16 {vr(slots[k % 3]+2*q, 2)}, v59 offset:{t*4096 + s_*1024 + q*256}")
    for k in range(3):
        rd(k)
    for k in range(8):
        s_, t = k >> 1, k & 1
        a(f"s_waitcnt lgkmcnt({min(4, 2*(7-k))})")
        d = 96 + 16 * t
        c = "0" if s_ == 0 else vr(d, 16)
        a(f"v_mfma_f32_32x32x16_bf16 {vr(d, 16)}, {vr(36+4*s_, 4)}, {vr(slots[k % 3], 4)}, {c}")
        if k + 3 < 8:
            rd(k + 3)
    a.label("F_NOB1")
    a("s_waitcnt lgkmcnt(0)")
    a("s_barrier")
    a(f"s_cmp_gt_u32 s{sW}, 12")
    a("s_cbranch_scc1 F_NOSCAT")
    a(f"s_mov_b64 exec, s[{sVAL}:{sVAL+1}]")
    for i in range(4):
        a(f"ds_read_b64 {vr(36+2*i, 2)}, v{20+i}")
    for i in range(4):
        a(f"v_lshlrev_b32 v{8+i}, 4, v{24+i}")
        a(f"v_cmp_gt_u32 s[{sM+2*i}:{sM+2*i+1}], 16, v{24+i}")
    for i in range(4):
        a("s_waitcnt lgkmcnt(3)")
        a(f"v_bfe_u32 v{36+2*i}, v{36+2*i}, v{8+i}, 9")
        a(f"v_cndmask_b32 v{37+2*i}, v{37+2*i}, v{12+i}, s[{sM+2*i}:{sM+2*i+1}]")
        a(f"v_or_b32 v{29+2*i}, v{29+2*i}, v{36+2*i}")
        a(f"v_lshl_add_u32 v{37+2*i}, v{24+i}, 3, v{37+2*i}")
        a(f"ds_write_b64 v{37+2*i}, {vr(28+2*i, 2)}")
    a("s_mov_b64 exec, -1")
    a.label("F_NOSCAT")
    a(f"s_cmp_lt_u32 s{sW}, 12")
    a("s_cbranch_scc1 F_NOB2")
    a(f"s_mov_b32 s{SRD_O}, s16")
    a(f"s_mov_b32 s{SRD_O+1}, s17")
    a(f"s_mov_b32 s{SRD_O+2}, {N*128}")
    a(f"s_mov_b32 s{SRD_O+3}, 0x20000")
    a(f"s_sub_u32 s3, s{sW}, 12")
    a(f"s_lshl2_add_u32 s3, s3, s{sNODE}")
    a("s_lshl_b32 s3, s3, 7")
    a(f"v_lshrrev_b32 v40, 5, v{vL}")
    a("v_lshl_add_u32 v40, v40, 13, s3")
    a(f"v_and_b32 v41, 31, v{vL}")
    a("v_lshl_add_u32 v40, v41, 2, v40")
    a("s_mov_b32 s83, 0xffff0000")
    a("s_mov_b32 s84, 0x80000000")
    a("s_movk_i32 s85, 0x1000")
    a(f"s_cmp_eq_u32 s{sW}, 12")
    a(f"s_cselect_b32 s{sT0}, -1, 0")
    for g in range(4):
        R = range(4)
        for i in R:
            a(f"v_cvt_pk_bf16_f32 v{44+i}, v{96+4*g+i}, 0")
        for i in R:
            a(f"v_mul_f32 v{48+i}, {NLOG2E}, v{112+4*g+i}")
        for i in R:
            a(f"v_sub_u32 v{52+i}, 0x8000, v{44+i}")
        for i in R:
            a(f"v_and_b32 v{i}, 0x7fffffff, v{48+i}")
        for i in R:
            a(f"v_add_u32 v{52+i}, v{52+i}, v{i}")
        for i in R:
            a(f"v_max_i32 v{52+i}, 0, v{52+i}")
        for i in R:
            a(f"v_and_or_b32 v{52+i}, v{52+i}, s83, v{44+i}")
        for i in R:
            a(f"v_and_or_b32 v{96+4*g+i}, v{48+i}, s84, v{52+i}")
        for i in R:
            if i == 2:
                a(f"s_mov_b32 exec_hi, {'s' + str(sT0) if g < 2 else '0'}")
            if i == 3 and g < 2:
                a("s_mov_b32 exec_hi, 0")
            a(f"buffer_store_dword v{96+4*g+i}, v40, s[{SRD_O}:{SRD_O+3}], {'s85' if i >= 2 else '0'} offen offset:{g*128 + (i & 1)*2048} sc1")
        a("s_mov_b32 exec_hi, -1")
    a.label("F_NOB2")
    a(f"v_lshrrev_b32 v40, 3, v{vT}")
    a(f"s_lshl_b32 s3, s{sB}, 7")
    a(f"s_add_u32 s3, s3, {WS_PAY0}")
    a(f"v_and_b32 v41, 7, v{vT}")
    a("v_lshl_add_u32 v41, v41, 4, s3")
    a(f"s_mov_b32 s3, {BSTR}")
    a("v_mad_u32_u24 v40, v40, s3, v41")
    a(f"v_add_u32 v41, {128*BSTR}, v40")
    a(f"s_mul_i32 s3, s{sB}, {PSTR}")
    a(f"s_add_u32 s3, s3, {WS_POOL}")
    a("v_add_u32 v42, s3, v62")
    a("v_mov_b32 v36, 0")
    a("s_waitcnt lgkmcnt(0)")
    a("s_barrier")
    st1(a, 3)
    a(f"ds_read_b128 v[8:11], v62 offset:{L_ST0}")
    a(f"ds_read_b128 v[12:15], v62 offset:{L_ST0 + 16384}")
    a(f"ds_read_b32 v43, v36 offset:{L_CNT + 320}")
    a(f"ds_read_b128 v[16:19], v62 offset:{L_ST1}")
    a("s_waitcnt lgkmcnt(3)")
    a(f"v_xor_b32 v8, s{sTAG}, v8")
    a(f"v_xor_b32 v10, s{sTAG}, v10")
    a("global_store_dwordx4 v40, v[8:11], s[16:17] sc1")
    a("s_waitcnt lgkmcnt(2)")
    a(f"v_xor_b32 v12, s{sTAG}, v12")
    a(f"v_xor_b32 v14, s{sTAG}, v14")
    a("global_store_dwordx4 v41, v[12:15], s[16:17] sc1")
    a("s_waitcnt lgkmcnt(0)")
    a("v_lshlrev_b32 v43, 3, v43")
    a(f"v_cmp_gt_u32 vcc, v43, v{vT}")
    a(f"v_xor_b32 v16, s{sTAG}, v16")
    a(f"v_xor_b32 v18, s{sTAG}, v18")
    a("s_and_b64 exec, exec, vcc")
    a("s_cbranch_execz F_POOL_DONE")
    a("global_store_dwordx4 v42, v[16:19], s[16:17] sc1")
    a(f"v_add_u32 v44, 1024, v{vT}")
    a("v_cmp_gt_u32 vcc, v43, v44")
    a("s_and_b64 exec, exec, vcc")
    a("s_cbranch_execz F_POOL_DONE")
    a(f"ds_read_b128 v[20:23], v62 offset:{L_ST1 + 16384}")
    a("v_add_u32 v42, 0x4000, v42")
    a("s_waitcnt lgkmcnt(0)")
    a(f"v_xor_b32 v20, s{sTAG}, v20")
    a(f"v_xor_b32 v22, s{sTAG}, v22")
    a("global_store_dwordx4 v42, v[20:23], s[16:17] sc1")
    a.label("F_POOL_DONE")
    a("s_mov_b64 exec, -1")
    a("s_barrier")
    for s_ in range(4):
        c = "0" if s_ == 0 else vr(96, 16)
        a(f"v_mfma_f32_32x32x16_bf16 {vr(96, 16)}, {vr(64+4*s_, 4)}, {vr(80+4*s_, 4)}, {c}")
    a("v_mov_b64 v[12:13], 0")
    a("v_mov_b64 v[14:15], 0")
    a(f"v_mul_u32_u24 v20, 0x80008, v{vT}")
    a("v_add_u32 v20, 0x10000, v20")
    for k in range(1, 4):
        a(f"v_add_u32 v{20+k}, {hex(0x20002 * k)}, v20")
    a(f"v_mfma_f32_32x32x16_bf16 {vr(112, 16)}, v[12:15], v[12:15], 0")
    a("s_mov_b32 s3, 0x00800080")
    for k in range(4):
        a(f"v_add_u32 v{24+k}, 0x9f809f80, v{20+k}")
        a(f"v_pk_sub_u16 v{20+k}, v{20+k}, s3 clamp")
        a(f"v_or_b32 v{20+k}, 0x80008000, v{20+k}")
    a(f"v_add_u32 v28, {L_LUT}, v62")
    a("ds_write_b128 v28, v[20:23]")
    a(f"v_cmp_gt_u32 vcc, 864, v{vT}")
    a(f"v_lshlrev_b32 v29, 17, v{vT}")
    a(f"v_add_u32 v29, {hex((118*128) << 16)}, v29")
    a("s_mov_b64 exec, vcc")
    a("ds_write_b128 v28, v[24:27] offset:16384")
    a("s_mov_b64 exec, -1")
    a(f"v_cmp_lt_u32 vcc, 95, v{vT}")
    a("v_add_u32 v30, 0x10000, v29")
    a(f"v_mul_f32 v31, {PLOG2E}, v29")
    a("s_mov_b64 exec, vcc")
    a("ds_write_b128 v28, v[12:15] offset:32768")
    a("s_mov_b64 exec, -1")
    a(f"v_mul_f32 v32, {PLOG2E}, v30")
    a("v_exp_f32 v31, v31")
    a("v_exp_f32 v32, v32")
    a(f"v_cmp_lt_u32 vcc, 1007, v{vT}")
    a("v_mov_b32 v33, 0x7fc07fc0")
    a("v_add_f32 v31, 1.0, v31")
    a("v_add_f32 v32, 1.0, v32")
    a("v_cndmask_b32 v20, 0, v33, vcc")
    a("v_rcp_f32 v31, v31")
    a("v_rcp_f32 v32, v32")
    for k in range(1, 4):
        a(f"v_mov_b32 v{20+k}, v20")
    a("ds_write_b128 v28, v[20:23] offset:49152")
    a("v_mul_f32 v31, v29, v31")
    a("v_mul_f32 v32, v30, v32")
    a("v_cvt_pk_bf16_f32 v31, -v31, -v32")
    a(f"v_lshlrev_b32 v33, 2, v{vT}")
    a(f"v_add_u32 v33, {L_LUT + 118*256}, v33")
    a("ds_write_b32 v33, v31")
    a(f"s_mov_b32 s{sT2}, {NLOG2E}")
    a(f"s_mov_b32 s{sT3}, {NLOG2E}")
    a(f"s_and_b32 s{sT0}, s{sW}, 3")
    a(f"s_cmp_lg_u32 s{sT0}, 1")
    a("s_cbranch_scc1 F_NOSC")
    for i in range(8):
        a(f"v_pk_mul_f32 {vr(96+2*i, 2)}, {vr(96+2*i, 2)}, s[{sT2}:{sT3}]")
    a.label("F_NOSC")
    a(f"s_lshl_b32 s{sT0}, s{sT0}, 9")
    a(f"s_lshr_b32 s{sT1}, s{sW}, 2")
    a(f"s_lshl_b32 s3, s{sT1}, 13")
    a(f"s_add_u32 s{sT0}, s{sT0}, s3")
    a(f"s_add_u32 s{sT0}, s{sT0}, {L_OH}")
    a(f"v_lshl_add_u32 v40, v{vL}, 3, s{sT0}")
    for i in range(8):
        a(f"v_cvt_pk_bf16_f32 v{32+i}, v{96+2*i}, v{97+2*i}")
    for g in range(4):
        a(f"ds_write_b64 v40, {vr(32+2*g, 2)} offset:{2048*g}")
    a(f"v_mfma_f32_32x32x16_bf16 {vr(96, 16)}, v[12:15], v[12:15], 0")
    a(f"s_and_b32 s{sRK}, s{sW}, 3")
    a(f"s_bitcmp1_b32 s{sW}, 2")
    a(f"s_cselect_b32 s3, 3, 0")
    a(f"s_xor_b32 s{sRK}, s{sRK}, s3")
    a(f"s_lshl2_add_u32 s{sRK}, s{sT1}, s{sRK}")
    a(f"v_and_b32 v35, 31, v{vL}")
    a(f"v_bfe_u32 v34, v{vL}, 1, 2")
    a(f"v_lshlrev_b32 v{vLB}, 6, v35")
    a(f"v_lshl_add_u32 v{vLB}, v34, 3, v{vLB}")
    a(f"v_lshrrev_b32 v36, 5, v{vL}")
    a(f"v_bfe_u32 v34, v{vL}, 2, 2")
    a("v_lshl_add_u32 v34, v36, 2, v34")
    a(f"v_lshlrev_b32 v{vTRA}, 6, v34")
    a("v_lshrrev_b32 v34, 1, v34")
    a(f"v_xor_b32 v34, v34, v{vL}")
    a("v_and_b32 v34, 3, v34")
    a(f"v_lshl_add_u32 v{vTRA}, v34, 3, v{vTRA}")
    a(f"v_and_b32 v34, 16, v{vL}")
    a(f"v_lshl_add_u32 v{vTRA}, v34, 1, v{vTRA}")
    a(f"v_lshlrev_b32 v{vGA}, 4, v36")
    a("v_lshlrev_b32 v35, 3, v35")
    a("v_mov_b32 v34, 256")
    a(f"v_cmp_gt_u32 vcc, 32, v{vL}")
    a("v_cndmask_b32 v8, v34, v35, vcc")
    a("v_cndmask_b32_e64 v9, v35, v34, vcc")
    a(f"s_mov_b32 s{SRD_B}, s16")
    a(f"s_and_b32 s{SRD_B+1}, s17, 0xffff")
    a(f"s_or_b32 s{SRD_B+1}, s{SRD_B+1}, 0x80000000")
    a(f"s_mov_b32 s{SRD_B+2}, 0x100000")
    a(f"s_mov_b32 s{SRD_B+3}, 0xc00000")
    a(f"s_add_u32 s{SRD_POS}, s16, {WS_POS}")
    a(f"s_addc_u32 s{SRD_POS+1}, s17, 0")
    a(f"s_and_b32 s{SRD_POS+1}, s{SRD_POS+1}, 0xffff")
    a(f"s_or_b32 s{SRD_POS+1}, s{SRD_POS+1}, 0x40000")
    a(f"s_mov_b32 s{SRD_POS+2}, {N*16}")
    a(f"s_mov_b32 s{SRD_POS+3}, 0x20000")
    a(f"s_mov_b32 s{sSEL}, 0x03020302")
    a(f"s_mov_b64 s[{sLO}:{sLO+1}], 0")
    a(f"s_mov_b64 s[{sHI}:{sHI+1}], 0")
    a(f"s_mov_b32 s{sFL}, 0")
    a(f"s_mov_b32 s{sPC}, 0")

    def line_addr():
        a(f"s_mul_i32 s3, s{sB}, {BSTR}")
        a(f"s_lshl_b32 s{sT0}, s{sW}, 11")
        a(f"s_add_u32 s3, s3, s{sT0}")
        a(f"s_add_u32 s3, s3, {WS_PAY0}")
        a(f"v_lshl_add_u32 v52, v{vL}, 4, s3")
        a(f"s_mul_i32 s3, s{sW}, {16*PSTR}")
        a(f"s_add_u32 s3, s3, {WS_POOL}")
        a(f"v_and_b32 v53, 7, v{vL}")
        a("v_lshl_add_u32 v53, v53, 4, s3")
        a(f"v_lshrrev_b32 v54, 3, v{vL}")
        a(f"s_movk_i32 s3, {PSTR}")
        a("v_mad_u32_u24 v53, v54, s3, v53")
    line_addr()
    a(f"v_lshlrev_b32 v50, 2, v{vL}")
    a("v_and_b32 v51, 63, v50")
    a(f"v_and_b32 v49, 48, v{vL}")
    a("v_mov_b32 v48, 4")
    a(f"v_lshlrev_b32 v47, 4, v{vL}")
    a(f"s_lshl_b32 s3, s{sW}, 11")
    a(f"s_add_u32 s3, s3, {WS_FLAG}")
    a("v_lshl_add_u32 v46, v51, 5, s3")
    a("s_mov_b32 s83, 0x20000")
    a(f"s_or_b32 s84, s{sTAG}, 0x1abcd")
    a("s_waitcnt vmcnt(0)")
    st1(a, 4)
    a(f"s_cmp_lt_u32 s{sW}, 12")
    a("s_cbranch_scc1 F_POLL0")
    a("s_mov_b64 exec, 1")
    a(f"ds_add_rtn_u32 v44, v12, v48 offset:{L_CNT + 324}")
    a(f"s_lshl_b32 s3, s{sB}, 7")
    a(f"s_add_u32 s3, s3, {WS_FLAG}")
    a("v_mov_b32 v45, s3")
    a("v_mov_b32 v43, s84")
    a("s_waitcnt lgkmcnt(0)")
    a("v_cmp_eq_u32 vcc, 12, v44")
    a("s_mov_b64 exec, vcc")
    a("s_cbranch_execz F_NOFLAG")
    a("global_store_dword v45, v43, s[16:17] sc1")
    a.label("F_NOFLAG")
    a("s_mov_b64 exec, -1")
    a.label("F_POLL0")
    a("global_load_dwordx4 v[80:83], v52, s[16:17] sc1")
    a("global_load_dwordx4 v[84:87], v52, s[16:17] offset:1024 sc1")
    a(f"s_add_u32 s{sPC}, s{sPC}, 1")
    a(f"s_cmp_gt_u32 s{sPC}, {POLL_MAX}")
    a("s_cbranch_scc1 K2_END")
    a("s_waitcnt vmcnt(0)")
    for r in (80, 82, 84, 86):
        a(f"v_xor_b32 v{r}, s{sTAG}, v{r}")
    a("v_or3_b32 v44, v80, v82, v84")
    a("v_or_b32 v44, v44, v86")
    a("v_cmp_gt_u32 vcc, s83, v44")
    a("s_cmp_eq_u64 vcc, -1")
    a("s_cbranch_scc0 F_POLL0")
    st1(a, 5)
    a("global_load_dword v76, v46, s[16:17] sc1")
    a("v_bfe_u32 v54, v81, 1, 8")
    a("v_bfe_u32 v55, v85, 1, 8")
    a("v_bfe_u32 v56, v83, 1, 8")
    a("v_bfe_u32 v57, v87, 1, 8")
    a(f"v_cmp_lt_u32 s[{sA0}:{sA0+1}], 0, v54")
    a(f"v_cmp_lt_u32 s[{sA1}:{sA1+1}], 0, v55")
    a("v_lshl_add_u32 v56, v56, 7, v53")
    a("v_lshl_add_u32 v57, v57, 7, v53")
    a(f"v_add_u32 v57, {8*PSTR}, v57")
    for u in range(4):
        a(f"v_cmp_ne_u32 s[{sM+2*u}:{sM+2*u+1}], 0, v{81+2*u}")
    a(f"s_mov_b64 exec, s[{sA0}:{sA0+1}]")
    a("global_load_dwordx4 v[88:91], v56, s[16:17] sc1")
    a(f"s_mov_b64 exec, s[{sA1}:{sA1+1}]")
    a("global_load_dwordx4 v[92:95], v57, s[16:17] sc1")
    append4(a, 80, sM, 64)
    a(f"s_mov_b32 s{sJ}, 1")
    a.label("F_LEVEL")
    a(f"s_or_b64 s[{sT2}:{sT3}], s[{sA0}:{sA0+1}], s[{sA1}:{sA1+1}]")
    a("s_cbranch_scc0 F_LEVEL_DONE")
    a("s_waitcnt vmcnt(0)")
    for r in (88, 90, 92, 94):
        a(f"v_xor_b32 v{r}, s{sTAG}, v{r}")
    a("v_or_b32 v44, v88, v90")
    a("v_or_b32 v45, v92, v94")
    a(f"v_cmp_le_u32 vcc, s83, v44")
    a(f"v_cmp_le_u32 s[{sT2}:{sT3}], s83, v45")
    a(f"s_and_b64 vcc, vcc, s[{sA0}:{sA0+1}]")
    a(f"s_and_b64 s[{sT2}:{sT3}], s[{sT2}:{sT3}], s[{sA1}:{sA1+1}]")
    a(f"s_or_b64 vcc, vcc, s[{sT2}:{sT3}]")
    a("s_cbranch_scc1 F_LEVEL_LOAD")
    for u in range(4):
        a(f"v_cmp_ne_u32 s[{sM+2*u}:{sM+2*u+1}], 0, v{89+2*u}")
    for u in range(4):
        m = sA0 if u < 2 else sA1
        a(f"s_and_b64 s[{sM+2*u}:{sM+2*u+1}], s[{sM+2*u}:{sM+2*u+1}], s[{m}:{m+1}]")
    append4(a, 88, sM, 64)
    a(f"v_cmp_lt_u32 s[{sA0}:{sA0+1}], s{sJ}, v54")
    a(f"v_cmp_lt_u32 s[{sA1}:{sA1+1}], s{sJ}, v55")
    a(f"s_add_u32 s{sJ}, s{sJ}, 1")
    a("v_add_u32 v56, 128, v56")
    a("v_add_u32 v57, 128, v57")
    a(f"s_or_b64 s[{sT2}:{sT3}], s[{sA0}:{sA0+1}], s[{sA1}:{sA1+1}]")
    a("s_cbranch_scc0 F_LEVEL_DONE")
    a.label("F_LEVEL_LOAD")
    a(f"s_mov_b64 exec, s[{sA0}:{sA0+1}]")
    a("global_load_dwordx4 v[88:91], v56, s[16:17] sc1")
    a(f"s_mov_b64 exec, s[{sA1}:{sA1+1}]")
    a("global_load_dwordx4 v[92:95], v57, s[16:17] sc1")
    a("s_mov_b64 exec, -1")
    a(f"s_add_u32 s{sPC}, s{sPC}, 1")
    a(f"s_cmp_gt_u32 s{sPC}, {POLL_MAX}")
    a("s_cbranch_scc1 K2_END")
    a("s_branch F_LEVEL")
    a.label("F_LEVEL_DONE")
    a("s_waitcnt vmcnt(0)")
    a("v_cmp_ne_u32 vcc, s84, v76")
    a("s_cbranch_vccz F_READY")
    a("global_load_dword v76, v46, s[16:17] sc1")
    a(f"s_add_u32 s{sPC}, s{sPC}, 1")
    a(f"s_cmp_gt_u32 s{sPC}, {POLL_MAX}")
    a("s_cbranch_scc1 K2_END")
    a("s_branch F_LEVEL_DONE")
    a.label("F_READY")
    a("s_waitcnt lgkmcnt(0)")
    a("s_barrier")
    st1(a, 6)
    if OPT["diag"] == 2:
        stamp(a, 86, 4)
    a(f"ds_read_b32 v33, v51 offset:{L_CNT}")
    a(f"ds_read_b32 v34, v51 offset:{L_CNT + 192}")
    if OPT["bal"]:
        a(f"ds_read_b32 v35, v51 offset:{L_CNT + 128}")
        a(f"ds_read_b128 v[36:39], v49 offset:{L_CNT}")
        a(f"ds_read_b128 v[40:43], v49 offset:{L_CNT + 128}")
    a(f"ds_read_b64 {vr(WE0, 2)}, v9 offset:{L_WD}")
    a(f"ds_read_b64 {vr(WE0+4, 2)}, v8 offset:{L_WD}")
    a(f"ds_read_b64 {vr(WE1, 2)}, v9 offset:{L_WD + 272}")
    a(f"ds_read_b64 {vr(WE1+4, 2)}, v8 offset:{L_WD + 272}")
    a(f"s_or_b32 s3, s{sB}, s{sW}")
    a("s_cbranch_scc1 F_NOEPOCH")
    a(f"v_mov_b32 v44, {WS_EPOCH}")
    a(f"v_mov_b32 v45, s{sTAG}")
    a("s_mov_b64 exec, 1")
    a("global_store_dword v44, v45, s[16:17] sc1")
    a("s_mov_b64 exec, -1")
    a.label("F_NOEPOCH")
    if OPT["bal"]:
        a("s_waitcnt lgkmcnt(4)")
        a("v_lshl_add_u32 v35, v33, 2, v35")
        for k in range(4):
            a(f"v_lshl_add_u32 v{36+k}, v{36+k}, 2, v{40+k}")
        for k in range(4):
            a(f"v_cmp_gt_u32 s[{sM+2*k}:{sM+2*k+1}], v{36+k}, v35")
        a("v_cmp_gt_u32 vcc, v33, v34")
        a(f"v_cndmask_b32 v36, 0, 1, s[{sM}:{sM+1}]")
        for k in range(1, 4):
            a(f"v_addc_co_u32 v36, s[{sT2}:{sT3}], 0, v36, s[{sM+2*k}:{sM+2*k+1}]")
        a("v_mov_b32 v37, v36")
        a("v_permlane32_swap_b32 v37, v36")
        a("v_add_u32 v36, v36, v37")
        a("v_mov_b32 v37, v36")
        a("v_permlane16_swap_b32 v37, v36")
        a("v_add_u32 v36, v36, v37")
        a(f"v_cmp_eq_u32 s[{sT2}:{sT3}], s{sRK}, v36")
        a(f"s_ff1_i32_b32 s{sG}, s{sT2}")
        if OPT["safe"]:
            a(f"s_and_b32 s{sG}, s{sG}, 15")
    else:
        a("s_waitcnt lgkmcnt(4)")
        a("v_cmp_gt_u32 vcc, v33, v34")
        a(f"s_mov_b32 s{sG}, s{sW}")
    a(f"s_lshl_b32 s3, s{sG}, 11")
    a(f"s_add_u32 s3, s3, {L_OH}")
    a(f"v_lshl_add_u32 v63, v{vL}, 3, s3")
    a(f"v_readlane_b32 s{sREM}, v33, s{sG}")
    a(f"ds_read_b64 {vr(WE0+2, 2)}, v63")
    a(f"ds_read_b64 {vr(WE1+2, 2)}, v63 offset:512")
    a(f"ds_read_b64 {vr(CC, 2)}, v63 offset:1024")
    a(f"ds_read_b64 {vr(CC+2, 2)}, v63 offset:1536")
    a("v_add_u32 v3, s3, v47")
    a("ds_write_b128 v3, v[12:15]")
    a("ds_write_b128 v3, v[12:15] offset:1024")
    a(f"v_add_u32 v{vLB}, s3, v{vLB}")
    a(f"v_add_u32 v{vTRA}, s3, v{vTRA}")
    a(f"s_min_u32 s{sBASE}, s{sG}, 2")
    a(f"s_lshl_b32 s{sBASE}, s{sBASE}, 8")
    a(f"s_lshl_b32 s3, s{sG}, 10")
    a(f"s_add_u32 s{sBASE}, s{sBASE}, s3")
    a(f"v_add_u32 v{vGA}, s{sBASE}, v{vGA}")
    a(f"s_add_u32 s{sNODE}, s{sNODE}, s{sG}")
    a("s_cbranch_vccnz K2_SLOW")
    a.label("K2_START")
    a(f"s_sub_u32 s{sREM}, s{sREM}, s{sBASE}")
    a(f"s_lshr_b32 s{sREM}, s{sREM}, 2")
    a("s_cbranch_scc0 K2_LOOP_DONE")
    a(f"s_and_b32 s{sT0}, s{sREM}, 63")
    a("s_cbranch_scc0 K2_NOFILL")
    a(f"s_bfm_b64 s[{sT2}:{sT3}], s{sT0}, 0")
    a(f"s_andn2_b32 s{sT0}, s{sREM}, 63")
    a(f"s_lshl2_add_u32 m0, s{sT0}, s{sBASE}")
    a(f"s_not_b64 exec, s[{sT2}:{sT3}]")
    a(f"ds_write_addtid_b32 v12 offset:{L_SRC}")
    a(f"ds_write_addtid_b32 v12 offset:{L_INF}")
    a("s_mov_b64 exec, -1")
    a.label("K2_NOFILL")
    a(f"s_mov_b32 m0, s{sBASE}")
    G_reads(a, RAWA, 0)
    PA_reads(a)
    G_issue(a, RAWA, 2)
    a("s_waitcnt lgkmcnt(0)")
    PA_issue(a)
    emit_masks(a)
    a("s_waitcnt vmcnt(0)")
    emit_PB(a)
    if OPT["diag"] == 2:
        stamp(a, 86, 5)
        a("s_getreg_b32 s87, hwreg(HW_REG_HW_ID)")
        a("s_and_b32 s87, s87, 0xff")
        a(f"s_lshl_b32 s88, s{sG}, 8")
        a("s_or_b32 s87, s87, s88")
        a("s_memtime s[94:95]")
        a("s_waitcnt lgkmcnt(0)")
        a("s_mov_b32 s88, s94")
    a.label("K2_T0")
    emit_tile(a, 0)
    a.label("K2_T1")
    emit_tile(a, 1)
    a.label("K2_SLOW")
    a(f"s_mov_b32 s{sJ}, -1")
    a(f"s_mov_b32 s{sFL}, 2")
    a.label("K2_ROUND")
    a("s_setprio 0")
    a("s_waitcnt lgkmcnt(0)")
    a("s_barrier")
    lane_id(a, vL)
    a(f"v_lshlrev_b32 v50, 2, v{vL}")
    a("v_and_b32 v51, 63, v50")
    a(f"s_cmp_lg_u32 s{sW}, 0")
    a("s_cbranch_scc1 K2_NOCNT2")
    a(f"ds_read_b32 v33, v51 offset:{L_CNT + 256}")
    a("v_mov_b32 v34, 0")
    a("s_waitcnt lgkmcnt(0)")
    a(f"ds_write_b32 v51, v33 offset:{L_CNT}")
    a(f"ds_write_b32 v51, v34 offset:{L_CNT + 64}")
    a.label("K2_NOCNT2")
    line_addr()
    a("global_load_dwordx4 v[80:83], v52, s[16:17] sc1")
    a("global_load_dwordx4 v[84:87], v52, s[16:17] offset:1024 sc1")
    a(f"s_and_b32 s{sT1}, s{sFL}, 1")
    a(f"s_xor_b32 s{sT1}, s{sT1}, 1")
    a(f"s_add_u32 s{sJ}, s{sJ}, s{sT1}")
    a("s_waitcnt vmcnt(0) lgkmcnt(0)")
    a("s_barrier")
    a("v_bfe_u32 v54, v81, 1, 8")
    a("v_bfe_u32 v55, v85, 1, 8")
    a("v_bfe_u32 v56, v83, 1, 8")
    a("v_bfe_u32 v57, v87, 1, 8")
    a(f"v_cmp_le_u32 s[{sA0}:{sA0+1}], s{sJ}, v54")
    a(f"v_cmp_le_u32 s[{sA1}:{sA1+1}], s{sJ}, v55")
    a("v_max_u32 v54, v54, v55")
    a(f"v_cmp_lt_u32 s[{sLONG}:{sLONG+1}], s{sJ}, v54")
    a(f"s_cmp_eq_u32 s{sJ}, 0")
    a("s_cbranch_scc1 K2_LEV0")
    a(f"s_sub_u32 s3, s{sJ}, 1")
    a("v_add_u32 v56, s3, v56")
    a("v_add_u32 v57, s3, v57")
    a("v_lshl_add_u32 v56, v56, 7, v53")
    a("v_lshl_add_u32 v57, v57, 7, v53")
    a(f"v_add_u32 v57, {8*PSTR}, v57")
    a(f"s_mov_b64 exec, s[{sA0}:{sA0+1}]")
    a("global_load_dwordx4 v[80:83], v56, s[16:17] sc1")
    a(f"s_mov_b64 exec, s[{sA1}:{sA1+1}]")
    a("global_load_dwordx4 v[84:87], v57, s[16:17] sc1")
    a("s_mov_b64 exec, -1")
    a("s_waitcnt vmcnt(0)")
    a.label("K2_LEV0")
    for r in (80, 82, 84, 86):
        a(f"v_xor_b32 v{r}, s{sTAG}, v{r}")
    a(f"s_bitcmp1_b32 s{sFL}, 0")
    a("s_cbranch_scc1 K2_KEEPM")
    for u in range(4):
        m = sA0 if u < 2 else sA1
        a(f"v_cmp_ne_u32 vcc, 0, v{81+2*u}")
        a(f"s_and_b64 s[{sM+2*u}:{sM+2*u+1}], vcc, s[{m}:{m+1}]")
    a.label("K2_KEEPM")
    a("v_mov_b32 v48, 4")
    a("v_mov_b32 v49, 0")
    a(f"s_mov_b64 s[{sT2}:{sT3}], 0")
    for u in range(4):
        a(f"s_mov_b64 exec, s[{sM+2*u}:{sM+2*u+1}]")
        a(f"v_lshrrev_b32 v64, 10, v{81+2*u}")
        a("v_and_b32 v64, 0x3c, v64")
        a(f"ds_read_b32 v65, v64 offset:{L_CNT + 192}")
        a(f"ds_add_rtn_u32 v64, v64, v48 offset:{L_CNT}")
        a("s_waitcnt lgkmcnt(0)")
        a("v_cmp_lt_u32 vcc, v64, v65")
        a(f"s_andn2_b64 s[{sM+2*u}:{sM+2*u+1}], exec, vcc")
        a("s_mov_b64 exec, vcc")
        a(f"ds_write_b32 v64, v{80+2*u} offset:{L_SRC}")
        a(f"ds_write_b32 v64, v{81+2*u} offset:{L_INF}")
        a(f"s_or_b64 s[{sT2}:{sT3}], s[{sT2}:{sT3}], s[{sM+2*u}:{sM+2*u+1}]")
    a(f"s_mov_b64 exec, s[{sT2}:{sT3}]")
    a("s_cbranch_execz K2_NOF1")
    a(f"ds_write_b32 v49, v48 offset:{L_CNT + 64}")
    a.label("K2_NOF1")
    a(f"s_mov_b64 exec, s[{sLONG}:{sLONG+1}]")
    a("s_cbranch_execz K2_NOF2")
    a(f"ds_write_b32 v49, v48 offset:{L_CNT + 68}")
    a.label("K2_NOF2")
    a("s_mov_b64 exec, -1")
    a("s_waitcnt lgkmcnt(0)")
    a("s_barrier")
    a(f"ds_read_b32 v33, v50 offset:{L_CNT}")
    a(f"ds_read_b32 v34, v51 offset:{L_CNT + 192}")
    a(f"v_lshrrev_b32 v{vGA}, 5, v{vL}")
    a(f"v_lshl_add_u32 v{vGA}, v{vGA}, 4, s{sBASE}")
    a("v_mov_b32 v12, 0")
    a("s_waitcnt lgkmcnt(0)")
    a(f"v_readlane_b32 s{sT0}, v33, 16")
    a(f"v_readlane_b32 s{sT1}, v33, 17")
    a("v_min_u32 v33, v33, v34")
    a(f"s_cmp_lg_u32 s{sT0}, 0")
    a(f"s_cselect_b32 s{sFL}, 1, 0")
    a(f"s_cmp_lg_u32 s{sT1}, 0")
    a(f"s_cselect_b32 s{sT1}, 2, 0")
    a(f"s_or_b32 s{sFL}, s{sFL}, s{sT1}")
    a(f"v_readlane_b32 s{sREM}, v33, s{sG}")
    a("s_nop 1")
    a("s_branch K2_START")
    a.label("K2_LOOP_DONE")
    a(f"s_cmp_lg_u32 s{sFL}, 0")
    a("s_cbranch_scc1 K2_ROUND")
    if OPT['diag'] == 2:
        stamp(a, 86, 6)
    if OPT["diag"] == 2:
        a("s_memtime s[94:95]")
        a("s_waitcnt lgkmcnt(0)")
        a("s_mov_b32 s89, s94")
    vL, vJ, vHF = 4, 5, 6
    lane_id(a, vL)
    a(f"v_and_b32 v{vJ}, 31, v{vL}")
    a(f"v_lshrrev_b32 v{vHF}, 5, v{vL}")
    a(f"v_bfe_u32 v7, v{vL}, 2, 2")
    a(f"v_lshl_add_u32 v7, v{vHF}, 2, v7")
    a(f"v_and_b32 v3, 3, v{vL}")
    a("v_lshl_add_u32 v7, v7, 3, v3")
    a(f"v_bfe_u32 v8, v{vL}, 4, 1")
    a("v_lshl_add_u32 v7, v8, 2, v7")
    a("v_lshlrev_b32 v7, 3, v7")
    BT = 64
    for ks in range(4):
        for tc in range(2):
            for q in range(2):
                a(f"ds_read_b64_tr_b16 {vr(BT+8*ks+4*tc+2*q, 2)}, v7 offset:{L_WH2 + tc*4096 + (16*ks + 8*q)*64}")
    a(f"v_lshlrev_b32 v8, 4, v{vHF}")
    WX = 12
    for ks in range(4):
        a(f"ds_read_b128 {vr(WX+4*ks, 4)}, v8 offset:{L_WX + 32*ks}")
    a(f"v_lshrrev_b32 v9, 2, v{vJ}")
    a(f"s_lshl_b32 s{sT0}, s{sG}, 8")
    a(f"v_lshl_add_u32 v10, v9, 5, s{sT0}")
    a(f"v_lshl_add_u32 v9, v9, 4, s{sG}")
    a(f"v_lshl_add_u32 v11, v{vHF}, 3, v10")
    a("v_lshl_add_u32 v10, v3, 2, v10")
    a(f"ds_read_b64 v[0:1], v11 offset:{L_TAB}")
    a(f"ds_read_b32 v2, v10 offset:{L_TAB + 16}")
    for q in range(16):
        a(f"v_mul_f32 v{ACC1+q}, {NLN2}, v{ACC1+q}")
    SP = 32
    for t in range(2):
        for i in range(8):
            b = (ACC0, ACC1)[t]
            a(f"v_cvt_pk_bf16_f32 v{SP+8*t+i}, v{b+2*i}, v{b+2*i+1}")
    D0, D1, D3 = 96, 112, 48
    a("s_waitcnt lgkmcnt(0)")
    a(f"v_mfma_f32_32x32x8bf16_1k {vr(D0, 16)}, v[0:1], {vr(CC, 2)}, 0")
    a(f"v_mfma_f32_32x32x8bf16_1k {vr(D1, 16)}, v[0:1], {vr(CC+2, 2)}, 0")
    a(f"s_lshl_b32 s{sT0}, s{sG}, 10")
    a(f"s_add_u32 s{sT0}, s{sT0}, {L_HIMG}")
    a(f"v_lshlrev_b32 v10, 2, v{vJ}")
    a("v_xor_b32 v11, v10, v8")
    a(f"v_lshl_add_u32 v11, v{vHF}, 7, v11")
    a(f"v_add_u32 v11, s{sT0}, v11")
    for ks in range(4):
        sp = vr(SP + 4 * ks, 4)
        a(f"v_mfma_f32_32x32x16_bf16 {vr(D0, 16)}, {sp}, {vr(BT+8*ks, 4)}, {vr(D0, 16)}")
        a(f"v_mfma_f32_32x32x16_bf16 {vr(D1, 16)}, {sp}, {vr(BT+8*ks+4, 4)}, {vr(D1, 16)}")
        g = ks
        if g:
            a(f"v_xor_b32 v7, {32*g}, v11")
        a(f"ds_read_b32 v{28+g}, v{7 if g else 11} offset:{256*g}")
    for ks in range(4):
        c = "0" if ks == 0 else vr(D3, 16)
        a(f"v_mfma_f32_32x32x16_bf16 {vr(D3, 16)}, {vr(WX+4*ks, 4)}, {vr(SP+4*ks, 4)}, {c}")
    a(f"s_mov_b32 s{SRD_O}, s14")
    a(f"s_mov_b32 s{SRD_O+1}, s15")
    a(f"s_mov_b32 s{SRD_O+2}, {N*128}")
    a(f"s_mov_b32 s{SRD_O+3}, 0x20000")
    a(f"s_lshl_b32 s{sT0}, s{sNODE}, 7")
    a(f"v_lshl_add_u32 v10, v{vHF}, 11, v10")
    a(f"v_add_u32 v10, s{sT0}, v10")
    a(f"s_mov_b32 s{sT1}, {BN}")
    a(f"v_cmp_gt_u32 s[{sT2}:{sT3}], s{sT1}, v9")
    a(f"s_mul_i32 s{sT1}, s{sB}, {BN}")
    a(f"v_add_u32 v9, s{sT1}, v9")
    a(f"v_cmp_gt_u32 vcc, {N}, v9")
    a(f"s_and_b32 s{sT2}, s{sT2}, vcc_lo")
    a(f"s_and_b32 s{sT2}, s{sT2}, 0x77777777")
    a(f"s_mov_b32 s{sT3}, 0")
    a("v_mul_u32_u24 v9, 6, v9")
    a("v_lshl_add_u32 v9, v3, 1, v9")
    a(f"v_add_u32 v9, {N*128}, v9")
    xs = [(D0, D1)[t] + 4 * g + 3 for g in range(4) for t in range(2)]
    ts = [64 + i for i in range(8)]
    hs = [72 + i for i in range(8)]
    for x, t in zip(xs, ts):
        a(f"v_mul_f32 v{t}, {NLOG2E}, v{x}")
    for t in ts:
        a(f"v_exp_f32 v{t}, v{t}")
    a("s_waitcnt lgkmcnt(0)")
    for g in range(4):
        a(f"v_lshlrev_b32 v{hs[2*g]}, 16, v{28+g}")
        a(f"v_and_b32 v{hs[2*g+1]}, 0xffff0000, v{28+g}")
    for t in ts:
        a(f"v_add_f32 v{t}, 1.0, v{t}")
    for t in ts:
        a(f"v_rcp_f32 v{t}, v{t}")
    a(f"v_add_f32 v2, v2, v{D3}")
    for x, t, h in zip(xs, ts, hs):
        a(f"v_fmac_f32 v{h}, v{x}, v{t}")
    a("v_cvt_pk_bf16_f32 v2, v2, v2")
    for g in range(4):
        a(f"v_cvt_pk_bf16_f32 v{28+g}, v{hs[2*g]}, v{hs[2*g+1]}")
    a("s_movk_i32 s24, 0x1000")
    a("s_movk_i32 s25, 0x2000")
    a("s_movk_i32 s26, 0x3000")
    for g in range(3):
        a(f"buffer_store_dword v{28+g}, v10, s[{SRD_O}:{SRD_O+3}], {'0' if g == 0 else 's' + str(23+g)} offen {OPT['st_out']}")
    a(f"s_mov_b64 exec, s[{sT2}:{sT3}]")
    a("s_cbranch_execz K2_NOPOS")
    a("global_store_short v9, v2, s[14:15] " + OPT.get("st_pos", ""))
    a.label("K2_NOPOS")
    a(f"s_cmp_ge_u32 s{sG}, {BN - 96}")
    a("s_cbranch_scc1 K2_FIN")
    a("s_mov_b64 exec, 0xffffffff")
    a(f"buffer_store_dword v31, v10, s[{SRD_O}:{SRD_O+3}], s26 offen {OPT['st_out']}")
    a.label("K2_FIN")
    stamps_out(a, 86, 0, sW)
    a.label("K2_END")
    a("s_endpgm")
    return a


NAME = "standalone__cheap_equivariant_egnn__graph_kernel"
HEADER = """; EGNN layer on gfx950, one workgroup per CU. Each workgroup bins a chunk of the edges by destination bucket
"""


def make_safe(k):
    out = []
    for l in k.lines:
        if l.startswith("buffer_load_dword ") and f"s[{SRD_B}:{SRD_B+3}]" in l:
            v = l.split()[2].rstrip(",")
            out.append(f"v_min_u32 {v}, {(N - 1) * 4}, {v}")
        out.append(l)
    k.lines = out


def build(aslist):
    s = HEADER
    if aslist:
        s += f"; @launch kernel={NAME} grid=(256,1,1) block=(1024,1,1) lds={K_LDS}\n"
    else:
        s += f"; @launch grid=(256,1,1) block=(1024,1,1) lds={K_LDS}\n"
    s += '.amdgcn_target "amdgcn-amd-amdhsa--gfx950"\n.text\n'
    k = kernel()
    if OPT["safe"]:
        make_safe(k)
    s += f".globl {NAME}\n.p2align 8\n.type {NAME},@function\n{NAME}:\n" + k.render()
    s += f""".section .rodata,"a"
.p2align 6
.amdhsa_kernel {NAME}
  .amdhsa_next_free_vgpr 128
  .amdhsa_next_free_sgpr 96
  .amdhsa_accum_offset 128
  .amdhsa_group_segment_fixed_size 0
  .amdhsa_kernarg_size 88
  .amdhsa_user_sgpr_count 2
  .amdhsa_user_sgpr_kernarg_segment_ptr 1
  .amdhsa_system_sgpr_workgroup_id_x 1
  .amdhsa_float_denorm_mode_32 3
.end_amdhsa_kernel
"""
    return s


if __name__ == "__main__":
    out = sys.argv[1] if len(sys.argv) > 1 else "standalone__cheap_equivariant_egnn__graph.s"
    aslist = 0
    for arg in sys.argv[2:]:
        k, v = arg.split("=")
        if k == "list":
            aslist = int(v)
        else:
            OPT[k] = v if k.startswith('st_') else int(v)
    open(out, "w").write(build(aslist))
    print("wrote", out, "LDS", K_LDS)
```

```python
import struct
import sys
from asmlib import Asm

N = 25000
E = 800000
BN = 98
CH = 3128
CHB = 25088
K1_THREADS = 832
WS_B = 0
WS_PAY0 = 4 << 20
BSTR = 32768 + 256
WS_POS = 13 << 20
WS_FLAG = 14 << 20
WS_EPOCH = WS_FLAG + 65536
WS_POOL = 15 << 20
PSTR = 25088
WS_DIAG = 24 << 20

CAPS = [320, 320] + [256] * 14
BASES = [sum(CAPS[:g]) * 4 for g in range(17)]
L_SRC = 0
L_INF = BASES[16]
L_CNT = 2 * L_INF
L_WX = L_CNT + 384
L_WD = L_WX + 128
L_WH2 = L_WD + 544 + 96
L_TAB = L_WH2 + 8192
L_LUT = L_TAB + 4096
L_HIMG = L_LUT + 65536
L_OH = L_HIMG + 16384
K_LDS = L_OH + 32768
L_ST0 = 0
L_HIST = 32768
L_ST1 = L_LUT
L_WT = L_LUT + PSTR
L_INFO = L_WT + 24576
assert L_LUT < 65536 and L_OH % 64 == 0 and L_HIMG % 128 == 0 and K_LDS <= 163840, K_LDS
assert L_HIST + 1024 <= L_CNT and L_INFO + 2048 <= L_HIMG and L_WH2 % 128 == 0, (L_WH2, L_TAB)


def f2u(x):
    return struct.unpack("<I", struct.pack("<f", x))[0]


LOG2E = 1.4426950408889634
NLOG2E = hex(f2u(-LOG2E))
PLOG2E = hex(f2u(LOG2E))
NLN2 = hex(f2u(-0.6931471805599453))

OPT = dict(faithful_sq=1, prio=2, pk=0, diag=0, abl_lut=0, abl_g=0, abl_trans=0, startprio=0, bwide=1, st_pay='sc1', st_b='sc1', ormfma=0, pbshadow=1, glate=1, gspread=1, pf=0, safe=0, bar0=1, lutpos=1, bal=1, st_out='sc1', st_pos='sc1')


def stamp(a, base, i):
    if OPT["diag"]:
        a("s_waitcnt lgkmcnt(0)")
        a(f"s_memrealtime s[{base+8}:{base+9}]")
        a("s_waitcnt lgkmcnt(0)")
        a(f"s_mov_b32 s{base+i}, s{base+8}")


def stamps_out(a, base, kidx, swave):
    if OPT["diag"] == 3:
        a("s_waitcnt vmcnt(0)")
        stamp(a, base, 7)
        OPT["_n"] = OPT.get("_n", 0) + 1
        a("s_and_b32 s4, s2, 15")
        a("s_cmp_lg_u32 s4, 0")
        a(f"s_cbranch_scc1 DBG_SKIP{OPT['_n']}")
        a(f"s_load_dwordx2 s[4:5], s[0:1], 72")
        a("s_waitcnt lgkmcnt(0)")
        a(f"s_not_b32 s{base}, s{base}")
        a("s_mov_b64 exec, 1")
        a("v_mov_b32 v0, 0")
        for i in range(8):
            a(f"v_mov_b32 v1, s{base+i}")
            a(f"global_atomic_umax v0, v1, s[4:5] offset:{4*i}")
        a.label(f"DBG_SKIP{OPT['_n']}")
    elif OPT["diag"]:
        a("s_waitcnt vmcnt(0)")
        stamp(a, base, 7)
        a("s_mov_b64 exec, 1")
        a(f"s_lshl_b32 s{base+8}, s2, 4")
        a(f"s_add_u32 s{base+8}, s{base+8}, s{swave}")
        a(f"s_lshl_b32 s{base+8}, s{base+8}, 5")
        a(f"s_add_u32 s{base+8}, s{base+8}, {WS_DIAG + kidx * (1 << 20)}")
        a(f"v_mov_b32 v0, s{base+8}")
        for i in range(8):
            a(f"v_mov_b32 v1, s{base+i}")
            a(f"global_store_dword v0, v1, s[16:17] offset:{4*i}")


def vr(b, n):
    return f"v[{b}:{b+n-1}]"


assert BASES[:4] == [0, 1280, 2560, 3584]

ACC0, ACC1, RAWA, RAWB, X0, OH, T, LA, CC, WE0, WE1, XE, VV, PS = 96, 112, 64, 80, 48, 40, 36, 32, 28, 16, 22, 10, 8, 4
vINF, vOHA, vTRA, vLB, vGA = 7, 3, 2, 1, 0
sB, sW, sREM, sJ, sFL, sNODE = 18, 19, 20, 21, 22, 23
sM = 24
sLO, sHI = 40, 42
SRD_B, SRD_POS = 44, 48
sSEL, sBASE, sT0, sT1, sT2, sT3, sLONG = 52, 53, 54, 55, 56, 57, 58
SRD_O = 60


def P(a, p):
    if OPT["prio"] == 1:
        a(f"s_setprio {p}")


def prog_prio(a, tag):
    if OPT["prio"] == 2:
        a("s_setprio 3")
        a(f"s_cmp_gt_u32 s{sREM}, {OPT.get('p3', 160)}")
        a(f"s_cbranch_scc1 K2_PP{tag}")
        a("s_setprio 2")
        a(f"s_cmp_gt_u32 s{sREM}, {OPT.get('p2', 96)}")
        a(f"s_cbranch_scc1 K2_PP{tag}")
        a("s_setprio 1")
        a(f"s_cmp_gt_u32 s{sREM}, {OPT.get('p1', 32)}")
        a(f"s_cbranch_scc1 K2_PP{tag}")
        a("s_setprio 0")
        a.label(f"K2_PP{tag}")


def G_reads(a, dst, imm):
    for g in range(4):
        a(f"ds_read_b128 {vr(dst+4*g, 4)}, v{vGA} offset:{L_SRC + imm + 32*g}")


def G_issue(a, dst, younger):
    for g in range(4):
        a(f"s_waitcnt lgkmcnt({3 - g + younger})")
        for r in range(4):
            q = dst + 4 * g + r
            if OPT["abl_g"]:
                a("s_nop 0")
            else:
                a(f"buffer_load_dword v{q}, v{q}, s[{SRD_B}:{SRD_B+3}], 0 offen")


def PA_reads(a):
    a(f"ds_read_addtid_b32 v{PS} offset:{L_SRC}")
    a(f"ds_read_addtid_b32 v{vINF} offset:{L_INF}")


def PA_issue(a):
    a(f"buffer_load_dwordx3 {vr(PS, 3)}, v{PS}, s[{SRD_POS}:{SRD_POS+3}], 0 idxen")
    a("s_add_u32 m0, m0, 256")


def PB_read_pos(a):
    a(f"v_lshrrev_b32 v{LA}, 4, v{vINF}")
    a(f"v_and_b32 v{LA}, 0xfe0, v{LA}")
    a(f"ds_read_b128 {vr(T, 4)}, v{LA} offset:{L_TAB + 16}")


def PB_read_oh(a):
    a(f"ds_read_b64 {vr(XE, 2)}, v{LA} offset:{L_TAB}")
    a(f"ds_read_b64 {vr(XE+4, 2)}, v{LA} offset:{L_TAB + 8}")


def PB_math(a):
    a(f"v_perm_b32 v{XE+3}, v{vINF}, v{vINF}, s{sSEL}")
    for i in range(3):
        a(f"v_sub_f32 v{T+i}, v{T+i}, v{PS+i}")
    a(f"v_xor_b32 v{vOHA}, v{T+3}, v{vLB}")
    a(f"v_cvt_pk_bf16_f32 v{VV}, v{T}, v{T+1}")
    a(f"v_cvt_pk_bf16_f32 v{VV+1}, v{T+2}, 1.0")
    a(f"v_lshlrev_b32 v{T}, 16, v{VV}")
    a(f"v_and_b32 v{T+1}, 0xffff0000, v{VV}")
    a(f"v_lshlrev_b32 v{T+2}, 16, v{VV+1}")
    if OPT["faithful_sq"]:
        for i in range(3):
            a(f"v_mul_f32 v{T+i}, v{T+i}, v{T+i}")
        a(f"v_cvt_pk_bf16_f32 v{T+3}, v{T}, v{T+1}")
        a(f"v_cvt_pk_bf16_f32 v{T+2}, 0, v{T+2}")
        a(f"v_lshlrev_b32 v{T}, 16, v{T+3}")
        a(f"v_and_b32 v{T+1}, 0xffff0000, v{T+3}")
        a(f"v_add_f32 v{T}, v{T}, v{T+1}")
        a(f"v_add_f32 v{T}, v{T}, v{T+2}")
    else:
        a(f"v_mul_f32 v{T}, v{T}, v{T}")
        a(f"v_fmac_f32 v{T}, v{T+1}, v{T+1}")
        a(f"v_fmac_f32 v{T}, v{T+2}, v{T+2}")
    a(f"v_cvt_pk_bf16_f32 v{XE+2}, v{T}, v{T}")


def PB_swap(a):
    a(f"v_permlane32_swap_b32 v{XE}, v{XE+4}")
    a(f"v_permlane32_swap_b32 v{XE+1}, v{XE+5}")


def emit_PB(a):
    PB_read_pos(a)
    PB_read_oh(a)
    a("s_waitcnt lgkmcnt(2)")
    PB_math(a)
    a("s_waitcnt lgkmcnt(0)")
    PB_swap(a)


def emit_masks(a):
    a(f"s_bfm_b64 s[{sT2}:{sT2+1}], s{sREM}, 0")
    a(f"s_cmp_ge_u32 s{sREM}, 64")
    a(f"s_cselect_b32 s{sLO}, -1, s{sT2}")
    a(f"s_cselect_b32 s{sHI+1}, -1, s{sT2+1}")


def lut_half(a, h):
    b = X0 + 8 * h
    for i in range(4):
        a(f"v_cvt_pk_bf16_f32 v{b+i}, v{b+2*i}, v{b+2*i+1}")
    for i in range(4):
        a(f"v_lshlrev_b16 v{b+4+i}, 1, v{b+i}")
        a(f"v_lshlrev_b16_sdwa v{LA+i}, 1, v{b+i} dst_sel:DWORD dst_unused:UNUSED_PAD src0_sel:DWORD src1_sel:WORD_1")
        if not OPT["abl_lut"]:
            a(f"ds_read_u16 v{b+4+i}, v{b+4+i} offset:{L_LUT}")
            a(f"ds_read_u16_d16_hi v{LA+i}, v{LA+i} offset:{L_LUT}")
    for i in range(4):
        a(f"v_pk_max_i16 v{b+i}, v{b+i}, 0")


def lut_merge(a, h):
    if OPT["ormfma"]:
        a(f"v_mfma_f32_32x32x16_bf16 {vr(ACC0, 16)}, {vr(LA, 4)}, {vr(OH+4*h, 4)}, {vr(ACC0, 16)}")
        return
    b = X0 + 8 * h
    P(a, 0)
    for i in range(4):
        a(f"v_or_b32 v{b+4+i}, v{b+4+i}, v{LA+i}")
    P(a, 1)


def valu_half(a, raw, h, extra=()):
    if extra:
        b = Asm()
        valu_half(b, raw, h)
        extra = list(extra)
        n, k = len(b.lines), 0
        for i, l in enumerate(b.lines):
            a(l)
            while k < len(extra) and (k + 1) * n <= (i + 1) * len(extra):
                a(extra[k])
                k += 1
        for l in extra[k:]:
            a(l)
        return
    if OPT["abl_trans"]:
        return
    for qq in range(2):
        xs = [raw + 8 * h + 4 * qq + i for i in range(4)]
        ts = [T + i for i in range(4)]
        for x, t in zip(xs, ts):
            a(f"v_exp_f32 v{t}, v{x}")
        if OPT["pk"]:
            for t in ts[::2]:
                a(f"v_pk_add_f32 {vr(t, 2)}, {vr(t, 2)}, 1.0 op_sel_hi:[1,0]")
        else:
            P(a, 0)
            for t in ts:
                a(f"v_add_f32 v{t}, 1.0, v{t}")
            P(a, 1)
        for t in ts:
            a(f"v_rcp_f32 v{t}, v{t}")
        if OPT["pk"]:
            for x, t in zip(xs[::2], ts[::2]):
                a(f"v_pk_mul_f32 {vr(t, 2)}, {vr(t, 2)}, {vr(x, 2)}")
        else:
            P(a, 0)
            for x, t in zip(xs, ts):
                a(f"v_mul_f32 v{t}, v{x}, v{t}")
            P(a, 1)
        for i in range(2):
            a(f"v_cvt_pk_bf16_f32 v{raw+8*h+2*qq+i}, v{ts[2*i]}, v{ts[2*i+1]}")


def seg3(a, raw, h):
    for acc, op in ((ACC0, X0 + 8 * h), (ACC1, raw + 8 * h), (ACC0, X0 + 8 * h + 4)):
        a(f"v_mfma_f32_32x32x16_bf16 {vr(acc, 16)}, {vr(op, 4)}, {vr(OH+4*h, 4)}, {vr(acc, 16)}")


def emit_tile(a, par):
    L = f"K2_T{par}"
    cur, nxt = (RAWA, RAWB) if par == 0 else (RAWB, RAWA)
    m = sLO if par == 0 else sHI
    zz = WE0 if par == 0 else WE0 + 4
    shadow = OPT["pbshadow"] and par == 1
    prog_prio(a, par)
    a(f"s_cmp_le_u32 s{sREM}, 32")
    a(f"s_cbranch_scc1 {L}_NG1")
    if shadow:
        PB_read_pos(a)
    G_reads(a, nxt, 128 if par == 0 else 256)
    a.label(f"{L}_NG1")
    a(f"s_mov_b64 exec, s[{m}:{m+1}]")
    a(f"ds_write_b64 v{vOHA}, {vr(VV, 2)}")
    a("s_mov_b64 exec, -1")
    for q in range(4):
        a(f"ds_read_b64_tr_b16 {vr(OH+2*q, 2)}, v{vTRA} offset:{512*q}")
    a(f"s_mov_b64 exec, s[{m}:{m+1}]")
    a(f"ds_write_b64 v{vOHA}, {vr(zz, 2)}")
    a("s_mov_b64 exec, -1")
    if par == 0:
        PA_reads(a)
    a("s_waitcnt vmcnt(0)")
    P(a, 0)
    for q in range(16):
        a(f"v_lshlrev_b32 v{X0+q}, 16, v{cur+q}")
    P(a, 1)
    xe = XE if par == 0 else XE + 2
    wo = 2 if par == 0 else 0
    a(f"v_mfma_f32_32x32x16_bf16 {vr(X0, 16)}, {vr(xe, 4)}, {vr(WE0+wo, 4)}, {vr(X0, 16)}")
    a(f"v_mfma_f32_32x32x16_bf16 {vr(cur, 16)}, {vr(xe, 4)}, {vr(WE1+wo, 4)}, {vr(cur, 16)}")
    a(f"s_cmp_le_u32 s{sREM}, 32")
    a(f"s_cbranch_scc1 {L}_NG2")
    younger = 8 if par == 0 else 6
    if shadow:
        PB_read_oh(a)
        younger += 2
        a(f"s_waitcnt lgkmcnt({4 + younger})")
        PB_math(a)
    if not OPT["glate"]:
        G_issue(a, nxt, younger)
        if par == 0:
            a(f"s_cmp_le_u32 s{sREM}, 64")
            a(f"s_cbranch_scc1 {L}_GO")
            a("s_waitcnt lgkmcnt(0)")
            PA_issue(a)
    if shadow or not OPT["glate"]:
        a(f"s_branch {L}_GO")
    a.label(f"{L}_NG2")
    a("s_nop 9")
    a.label(f"{L}_GO")
    lut_half(a, 0)
    valu_half(a, cur, 0)
    a("s_waitcnt lgkmcnt(0)")
    lut_merge(a, 0)
    a(f"s_cmp_le_u32 s{sREM}, 16")
    a(f"s_cbranch_scc1 {L}_HALF")
    lut_half(a, 1)
    if OPT["gspread"]:
        seg3(a, cur, 0)
        if shadow:
            PB_swap(a)
        a(f"s_cmp_le_u32 s{sREM}, 32")
        a(f"s_cbranch_scc1 {L}_LASTV")
        ex = [f"buffer_load_dword v{nxt+q}, v{nxt+q}, s[{SRD_B}:{SRD_B+3}], 0 offen" for q in range(16)]
        valu_half(a, cur, 1, ex)
        if par == 0:
            a(f"s_cmp_le_u32 s{sREM}, 64")
            a(f"s_cbranch_scc1 {L}_NG3")
            PA_issue(a)
            a.label(f"{L}_NG3")
        a("s_waitcnt lgkmcnt(0)")
        lut_merge(a, 1)
        seg3(a, cur, 1)
        a(f"s_sub_u32 s{sREM}, s{sREM}, 32")
        if par == 1:
            a(f"v_add_u32 v{vGA}, 256, v{vGA}")
            if not shadow:
                emit_PB(a)
            emit_masks(a)
            a("s_branch K2_T0")
        else:
            a("s_branch K2_T1")
        a.label(f"{L}_LASTV")
        valu_half(a, cur, 1)
        a("s_waitcnt lgkmcnt(0)")
        lut_merge(a, 1)
        seg3(a, cur, 1)
        a("s_branch K2_LOOP_DONE")
        a.label(f"{L}_HALF")
        seg3(a, cur, 0)
        a("s_branch K2_LOOP_DONE")
        return
    if OPT["glate"]:
        a(f"s_cmp_le_u32 s{sREM}, 32")
        a(f"s_cbranch_scc1 {L}_NG3")
        for q in range(16):
            a(f"buffer_load_dword v{nxt+q}, v{nxt+q}, s[{SRD_B}:{SRD_B+3}], 0 offen")
        if par == 0:
            a(f"s_cmp_le_u32 s{sREM}, 64")
            a(f"s_cbranch_scc1 {L}_NG3")
            PA_issue(a)
        a.label(f"{L}_NG3")
    seg3(a, cur, 0)
    if shadow:
        PB_swap(a)
    valu_half(a, cur, 1)
    a("s_waitcnt lgkmcnt(0)")
    lut_merge(a, 1)
    a(f"s_cmp_le_u32 s{sREM}, 32")
    seg3(a, cur, 1)
    a("s_cbranch_scc1 K2_LOOP_DONE")
    a(f"s_sub_u32 s{sREM}, s{sREM}, 32")
    if par == 1:
        a(f"v_add_u32 v{vGA}, 256, v{vGA}")
        if not shadow:
            emit_PB(a)
        emit_masks(a)
        a("s_branch K2_T0")
    else:
        a("s_branch K2_T1")
    a.label(f"{L}_HALF")
    seg3(a, cur, 0)
    a("s_branch K2_LOOP_DONE")


def lane_id(a, v):
    a(f"v_mbcnt_lo_u32_b32 v{v}, -1, 0")
    a(f"v_mbcnt_hi_u32_b32 v{v}, -1, v{v}")


sTAG, sG, sRK, sVAL, sA0, sA1, sPC = 72, 73, 74, 76, 78, 80, 82
POLL_MAX = 1 << 18


def st1(a, i):
    if OPT["diag"] in (1, 3):
        stamp(a, 86, i)


def append4(a, data, masks, tmp):
    for u in range(4):
        a(f"s_mov_b64 exec, s[{masks+2*u}:{masks+2*u+1}]")
        a(f"v_lshrrev_b32 v{tmp+u}, 10, v{data+2*u+1}")
        a(f"v_and_b32 v{tmp+u}, 0x3c, v{tmp+u}")
        a(f"ds_add_rtn_u32 v{tmp+u}, v{tmp+u}, v48 offset:{L_CNT}")
    for u in range(4):
        a(f"s_mov_b64 exec, s[{masks+2*u}:{masks+2*u+1}]")
        a(f"s_waitcnt lgkmcnt({3 + u})")
        a(f"v_min_u32 v{tmp+u}, {L_INF - 4}, v{tmp+u}")
        a(f"ds_write_b32 v{tmp+u}, v{data+2*u} offset:{L_SRC}")
        a(f"ds_write_b32 v{tmp+u}, v{data+2*u+1} offset:{L_INF}")
    a("s_mov_b64 exec, -1")


def kernel():
    a = Asm()
    vL, vT = 60, 61
    a("s_cmp_ge_u32 s2, 256")
    a("s_cbranch_scc1 K2_END")
    a("s_load_dwordx8 s[4:11], s[0:1], 0")
    a("s_load_dwordx8 s[64:71], s[0:1], 32")
    a("s_load_dwordx2 s[14:15], s[0:1], 64")
    a("s_load_dwordx2 s[16:17], s[0:1], 80")
    stamp(a, 86, 0)
    if OPT["diag"] == 3:
        a("s_mov_b32 s87, 0")
    a("v_lshrrev_b32 v1, 6, v0")
    a(f"v_mov_b32 v{vT}, v0")
    a(f"v_readfirstlane_b32 s{sW}, v1")
    a(f"s_and_b32 s{sB}, s2, 7")
    a(f"s_lshl_b32 s{sB}, s{sB}, 5")
    a("s_lshr_b32 s3, s2, 3")
    a(f"s_add_u32 s{sB}, s{sB}, s3")
    a(f"s_mul_i32 s3, s{sB}, {CH}")
    a("v_lshl_add_u32 v3, v0, 2, s3")
    a(f"v_cmp_gt_u32 vcc, {CH // 4}, v0")
    a(f"s_mov_b32 s{sT0}, {E}")
    a(f"v_cmp_gt_u32 s[{sVAL}:{sVAL+1}], s{sT0}, v3")
    a("v_lshlrev_b32 v4, 2, v3")
    a("v_lshlrev_b32 v5, 1, v3")
    a(f"s_and_b64 s[{sVAL}:{sVAL+1}], s[{sVAL}:{sVAL+1}], vcc")
    a(f"v_and_b32 v{vL}, 63, v0")
    a(f"v_mov_b32 v6, {WS_EPOCH}")
    a(f"s_cmp_gt_u32 s{sW}, 12")
    a("s_waitcnt lgkmcnt(0)")
    a("s_cbranch_scc1 F_NOEDGE0")
    a(f"s_mov_b64 exec, s[{sVAL}:{sVAL+1}]")
    a("global_load_dwordx4 v[8:11], v4, s[64:65]")
    a("global_load_dwordx4 v[12:15], v4, s[10:11]")
    a("global_load_dwordx2 v[16:17], v5, s[8:9]")
    a("s_mov_b64 exec, -1")
    a.label("F_NOEDGE0")
    a("global_load_dword v18, v6, s[16:17] sc1")
    a(f"s_mul_i32 s{sNODE}, s{sB}, {BN}")
    a(f"s_add_u32 s3, s{sNODE}, s{sW}")
    a(f"v_lshrrev_b32 v32, 3, v{vL}")
    a(f"v_xor_b32 v33, v32, v{vL}")
    a("v_and_b32 v33, 7, v33")
    a("s_lshl_b32 s3, s3, 7")
    a("v_lshl_add_u32 v34, v32, 11, s3")
    a(f"v_min_u32 v34, {(N - 1) * 128}, v34")
    a("v_lshl_add_u32 v34, v33, 4, v34")
    a(f"s_lshl_b32 s{sT1}, s{sW}, 10")
    a(f"s_add_u32 m0, s{sT1}, {L_HIMG}")
    a(f"s_and_b32 s{sT0}, s{sW}, 11")
    a("global_load_lds_dwordx4 v34, s[4:5]")
    a(f"s_lshl_b32 s{sT2}, s{sT0}, 11")
    a(f"s_lshr_b32 s{sT0}, s{sW}, 3")
    a(f"s_lshl_b32 s{sT0}, s{sT0}, 13")
    a(f"s_sub_u32 s{sT2}, s{sT2}, s{sT0}")
    a(f"s_bfe_u32 s{sT0}, s{sW}, 0x10002")
    a(f"s_lshl_b32 s{sT0}, s{sT0}, 6")
    a(f"s_add_u32 s{sT2}, s{sT2}, s{sT0}")
    a(f"v_lshrrev_b32 v33, 2, v{vL}")
    a(f"v_lshl_add_u32 v33, v33, 7, s{sT2}")
    a(f"v_and_b32 v35, 3, v{vL}")
    a("v_lshl_add_u32 v33, v35, 4, v33")
    a(f"s_add_u32 m0, s{sT1}, {L_WT}")
    a(f"v_lshlrev_b32 v62, 4, v{vT}")
    a("global_load_lds_dwordx4 v33, s[66:67]")
    a("global_load_dwordx4 v[44:47], v62, s[70:71]")
    a(f"s_cmp_lt_u32 s{sW}, 13")
    a("s_cbranch_scc1 F_SIDE0_DONE")
    a(f"s_cmp_eq_u32 s{sW}, 15")
    a("s_cbranch_scc1 F_SIDE0_W")
    a(f"v_subrev_u32 v20, {13*64}, v{vT}")
    a(f"v_add_u32 v21, s{sNODE}, v20")
    a(f"v_cmp_gt_u32 vcc, {BN}, v20")
    a(f"s_mov_b32 s3, {N}")
    a(f"v_cmp_gt_u32 s[{sA0}:{sA0+1}], s3, v21")
    a("v_mul_u32_u24 v22, 6, v21")
    a(f"s_and_b64 s[{sA0}:{sA0+1}], s[{sA0}:{sA0+1}], vcc")
    a(f"s_mov_b64 exec, s[{sA0}:{sA0+1}]")
    for i in range(3):
        a(f"global_load_ushort v{8+i}, v22, s[6:7] offset:{2*i}")
    a("s_mov_b64 exec, -1")
    a("s_branch F_SIDE0_DONE")
    a.label("F_SIDE0_W")
    a(f"v_and_b32 v20, 31, v{vL}")
    a("v_lshlrev_b32 v21, 1, v20")
    a("v_add_u32 v21, 0x4000, v21")
    for i, off in enumerate((0, 64, 128, 192)):
        a(f"global_load_ushort v{8+i}, v21, s[66:67] offset:{off}")
    a("v_lshrrev_b32 v21, 3, v20")
    a("v_lshlrev_b32 v21, 5, v21")
    a("v_bfe_u32 v22, v20, 1, 1")
    a("v_lshl_add_u32 v21, v22, 4, v21")
    a("v_bfe_u32 v22, v20, 2, 1")
    a("v_lshl_add_u32 v21, v22, 3, v21")
    a("v_and_b32 v22, 1, v20")
    a("v_lshl_add_u32 v21, v22, 2, v21")
    a("global_load_dword v12, v21, s[68:69]")
    a.label("F_SIDE0_DONE")
    a("v_mov_b64 v[36:37], 0")
    a("v_mov_b64 v[38:39], 0")
    a(f"ds_write_b128 v62, v[36:39] offset:{L_ST0}")
    a(f"ds_write_b128 v62, v[36:39] offset:{L_ST0 + 16384}")
    a(f"ds_write_b128 v62, v[36:39] offset:{L_ST1}")
    a(f"s_cmp_gt_u32 s{sW}, 8")
    a("s_cbranch_scc1 F_Z1")
    a(f"v_cmp_gt_u32 vcc, {(PSTR - 16384) // 16}, v{vT}")
    a("s_mov_b64 exec, vcc")
    a(f"ds_write_b128 v62, v[36:39] offset:{L_ST1 + 16384}")
    a("s_mov_b64 exec, -1")
    a(f"s_cmp_gt_u32 s{sW}, 2")
    a("s_cbranch_scc1 F_Z1")
    a(f"s_cmp_eq_u32 s{sW}, 1")
    a("s_cbranch_scc1 F_ZCNT")
    a(f"s_cmp_eq_u32 s{sW}, 2")
    a("s_cbranch_scc1 F_ZOH")
    a(f"ds_write_b128 v62, v[36:39] offset:{L_HIST}")
    a("s_branch F_Z1")
    a.label("F_ZCNT")
    a(f"v_and_b32 v40, 15, v{vL}")
    a(f"v_cmp_lt_u32 vcc, 47, v{vL}")
    a("v_addc_co_u32 v41, vcc, 0, v40, vcc")
    a("v_min_u32 v42, 2, v41")
    a("v_lshlrev_b32 v42, 8, v42")
    a("v_lshl_add_u32 v42, v41, 10, v42")
    a("s_mov_b32 exec_lo, 0")
    a("s_mov_b32 exec_hi, 0xffff")
    a("v_lshlrev_b32 v42, 2, v42")
    a("v_sub_u32 v42, v40, v42")
    a("s_mov_b32 exec_lo, 0xffff0000")
    a("s_mov_b32 exec_hi, 0")
    a("v_mov_b32 v42, 0")
    a("s_mov_b64 exec, -1")
    a(f"v_lshlrev_b32 v41, 2, v{vL}")
    a(f"ds_write_b32 v41, v42 offset:{L_CNT}")
    a("s_mov_b32 exec_hi, 0")
    a(f"ds_write_b32 v41, v42 offset:{L_CNT + 256}")
    a("s_mov_b64 exec, -1")
    a("s_branch F_Z1")
    a.label("F_ZOH")
    a(f"v_and_b32 v40, 1, v{vL}")
    a("v_lshlrev_b32 v40, 4, v40")
    a("v_mov_b32 v41, 0x3f80")
    a("v_lshlrev_b32 v40, v40, v41")
    a(f"v_bfe_u32 v41, v{vL}, 1, 2")
    for d in range(4):
        a(f"v_cmp_eq_u32 s[{sM+2*d}:{sM+2*d+1}], {d}, v41")
    for d in range(4):
        a(f"v_cndmask_b32 v{52+d}, 0, v40, s[{sM+2*d}:{sM+2*d+1}]")
    a(f"v_lshlrev_b32 v41, 5, v{vL}")
    a(f"ds_write_b128 v41, v[52:55] offset:{L_TAB}")
    a(f"ds_write_b128 v41, v[52:55] offset:{L_TAB + 2048}")
    a.label("F_Z1")
    a("s_mov_b32 s83, 43826197")
    a(f"s_mov_b32 s84, {-BN}")
    a("v_mov_b32 v19, 1")
    a("s_waitcnt lgkmcnt(0)")
    a("s_barrier")
    a(f"v_lshrrev_b32 v40, 5, v{vL}")
    a(f"v_xor_b32 v41, v40, v{vL}")
    a("v_and_b32 v41, 7, v41")
    a(f"v_and_b32 v42, 31, v{vL}")
    a(f"s_lshr_b32 s3, s{sW}, 2")
    a("s_lshl_b32 s3, s3, 12")
    a(f"s_add_u32 s3, s3, {L_HIMG}")
    a("v_lshl_add_u32 v43, v42, 7, s3")
    a("v_lshl_add_u32 v4, v41, 4, v43")
    for s_ in range(1, 4):
        a(f"v_xor_b32 v{4+s_}, {32*s_}, v4")
    a(f"v_bfe_u32 v41, v{vL}, 2, 2")
    a("v_lshl_add_u32 v41, v40, 3, v41")
    a("v_lshl_add_u32 v41, v41, 3, v35")
    a(f"v_bfe_u32 v43, v{vL}, 4, 1")
    a("v_lshl_add_u32 v41, v43, 2, v41")
    a(f"s_and_b32 s{sT0}, s{sW}, 1")
    a(f"s_lshl_b32 s{sT0}, s{sT0}, 12")
    a(f"s_and_b32 s{sT2}, s{sW}, 2")
    a(f"s_lshl_b32 s{sT2}, s{sT2}, 13")
    a(f"s_add_u32 s{sT0}, s{sT0}, s{sT2}")
    a(f"s_add_u32 s{sT0}, s{sT0}, {L_WT}")
    a(f"v_lshl_add_u32 v63, v41, 3, s{sT0}")
    a("v_lshlrev_b32 v59, 3, v41")
    a(f"v_add_u32 v59, {L_WT + 8192}, v59")
    a(f"s_and_b32 s{sT0}, s{sW}, 7")
    a(f"s_lshl_b32 s{sT0}, s{sT0}, 9")
    a(f"s_mov_b32 s{sT2}, {L_WT + 16384}")
    a(f"s_cmp_ge_u32 s{sW}, 8")
    a(f"s_cselect_b32 s{sT2}, {L_WH2}, s{sT2}")
    a(f"s_add_u32 s{sT0}, s{sT0}, s{sT2}")
    a(f"v_lshl_add_u32 v58, v{vL}, 3, s{sT0}")
    a("s_mov_b32 s85, 0x05040100")
    a(f"s_mov_b32 s{sSEL}, 0x07060302")
    a(f"s_cmp_gt_u32 s{sW}, 12")
    a("s_cbranch_scc1 F_SIDE1")
    a(f"s_mov_b64 exec, s[{sVAL}:{sVAL+1}]")
    a("s_waitcnt vmcnt(6)")
    st1(a, 1)
    for i in range(4):
        a(f"v_mul_hi_u32 v{20+i}, v{8+i}, s83")
    for i in range(4):
        a(f"v_mad_i32_i24 v{8+i}, v{20+i}, s84, v{8+i}")
        a(f"v_lshlrev_b32 v{20+i}, 2, v{20+i}")
        a(f"ds_add_rtn_u32 v{24+i}, v{20+i}, v19 offset:{L_HIST}")
    a("s_waitcnt vmcnt(4)")
    for i in range(4):
        a(f"v_lshlrev_b32 v{28+2*i}, 2, v{12+i}")
        if i % 2 == 0:
            a(f"v_lshlrev_b32 v{29+2*i}, 16, v{16+i//2}")
        else:
            a(f"v_and_b32 v{29+2*i}, 0xffff0000, v{16+i//2}")
        a(f"v_and_b32 v{12+i}, 15, v{8+i}")
        a(f"v_lshrrev_b32 v{8+i}, 4, v{8+i}")
        a(f"v_lshl_or_b32 v{29+2*i}, v{12+i}, 12, v{29+2*i}")
        a(f"v_lshl_or_b32 v{29+2*i}, v{8+i}, 9, v{29+2*i}")
        a(f"v_lshlrev_b32 v{12+i}, 5, v{20+i}")
        a(f"v_lshlrev_b32 v{20+i}, 1, v{20+i}")
        a(f"v_add_u32 v{20+i}, {L_INFO}, v{20+i}")
    a("s_mov_b64 exec, -1")
    a("s_waitcnt vmcnt(0)")
    a("s_branch F_SIDE1_DONE")
    a.label("F_SIDE1")
    a("s_waitcnt vmcnt(0)")
    a(f"s_cmp_eq_u32 s{sW}, 15")
    a("s_cbranch_scc1 F_SIDE1_W")
    a(f"s_mov_b64 exec, s[{sA0}:{sA0+1}]")
    for i in range(3):
        a(f"v_lshlrev_b32 v{8+i}, 16, v{8+i}")
    a("v_lshrrev_b32 v22, 4, v20")
    a("v_lshlrev_b32 v11, 3, v22")
    a(f"s_mov_b32 s3, {WS_POS}")
    a("v_lshl_add_u32 v21, v21, 4, s3")
    a("global_store_dwordx4 v21, v[8:11], s[16:17] sc1")
    a("v_and_b32 v20, 15, v20")
    a("v_lshl_add_u32 v20, v20, 3, v22")
    a("v_lshlrev_b32 v20, 5, v20")
    a(f"ds_write_b128 v20, v[8:11] offset:{L_TAB + 16}")
    a("s_mov_b64 exec, -1")
    a("s_branch F_SIDE1_DONE")
    a.label("F_SIDE1_W")
    for r in (9, 11):
        a(f"v_lshlrev_b32 v{r}, 16, v{r}")
        a(f"v_mul_f32 v{r}, {NLOG2E}, v{r}")
        a(f"v_cvt_pk_bf16_f32 v20, v{r}, 0")
        a("v_lshlrev_b32 v20, 16, v20")
        a(f"v_sub_f32 v21, v{r}, v20")
        a(f"v_cvt_pk_bf16_f32 v{r}, v20, v21")
    a(f"v_cmp_gt_u32 s[{sA0}:{sA0+1}], 32, v{vL}")
    for i, r in enumerate((8, 10, 9, 11)):
        a(f"v_cndmask_b32 v{20+i}, 0, v{r}, s[{sA0}:{sA0+1}]")
    a(f"v_lshlrev_b32 v8, 3, v{vL}")
    a(f"v_lshlrev_b32 v9, 2, v{vL}")
    a("s_mov_b32 exec_hi, 3")
    a(f"ds_write_b64 v8, v[20:21] offset:{L_WD}")
    a(f"ds_write_b64 v8, v[22:23] offset:{L_WD + 272}")
    a("s_mov_b32 exec_hi, 0")
    a(f"ds_write_b32 v9, v12 offset:{L_WX}")
    a("s_mov_b64 exec, -1")
    a.label("F_SIDE1_DONE")
    a("v_perm_b32 v52, v45, v44, s85")
    a("v_perm_b32 v53, v47, v46, s85")
    a(f"v_perm_b32 v54, v45, v44, s{sSEL}")
    a(f"v_perm_b32 v55, v47, v46, s{sSEL}")
    a("ds_write_b64 v58, v[52:53]")
    a("ds_write_b64 v58, v[54:55] offset:4096")
    a(f"v_readfirstlane_b32 s{sTAG}, v18")
    a("s_waitcnt lgkmcnt(0)")
    a("s_barrier")
    st1(a, 2)
    a(f"s_add_u32 s{sTAG}, s{sTAG}, 0x20000")
    a(f"s_and_b32 s{sTAG}, s{sTAG}, 0xfffe0000")
    a(f"s_cmp_gt_u32 s{sW}, 3")
    a("s_cbranch_scc1 F_NOINFO")
    a(f"v_lshlrev_b32 v40, 2, v{vT}")
    a(f"ds_read_b32 v41, v40 offset:{L_HIST}")
    a("v_mov_b32 v43, 0")
    a(f"v_lshlrev_b32 v40, 3, v{vT}")
    a(f"v_add_u32 v40, {L_INFO}, v40")
    a("s_waitcnt lgkmcnt(0)")
    a("v_add_u32 v41, 15, v41")
    a("v_lshrrev_b32 v41, 4, v41")
    a("v_sub_u32 v41, v41, 1 clamp")
    a("v_cmp_lt_u32 vcc, 0, v41")
    a("s_mov_b64 exec, vcc")
    a(f"ds_add_rtn_u32 v43, v36, v41 offset:{L_CNT + 320}")
    a("s_mov_b64 exec, -1")
    a("v_lshlrev_b32 v41, 1, v41")
    a("v_add_u32 v41, 0x10001, v41")
    a(f"s_mov_b32 s3, {L_ST1 - 128}")
    a("s_waitcnt lgkmcnt(0)")
    a("v_lshl_or_b32 v42, v43, 17, v41")
    a("v_lshl_add_u32 v43, v43, 7, s3")
    a("ds_write_b64 v40, v[42:43]")
    a.label("F_NOINFO")
    for s_ in range(4):
        a(f"ds_read_b128 {vr(64+4*s_, 4)}, v{4+s_}")
        for q in range(2):
            a(f"ds_read_b64_tr_b16 {vr(80+4*s_+2*q, 2)}, v63 offset:{s_*1024 + q*256}")
    a(f"s_cmp_lt_u32 s{sW}, 12")
    a("s_cbranch_scc1 F_NOB1")
    a(f"s_sub_u32 s3, s{sW}, 15")
    a("s_lshl_b32 s3, s3, 12")
    a("s_waitcnt lgkmcnt(8)")
    for s_ in range(4):
        a(f"v_add_u32 v{4+s_}, s3, v{4+s_}")
        a(f"ds_read_b128 {vr(36+4*s_, 4)}, v{4+s_}")
    slots = (52, 0, 4)
    a("s_waitcnt lgkmcnt(4)")

    def rd(k):
        s_, t = k >> 1, k & 1
        for q in range(2):
            a(f"ds_read_b64_tr_b16 {vr(slots[k % 3]+2*q, 2)}, v59 offset:{t*4096 + s_*1024 + q*256}")
    for k in range(3):
        rd(k)
    for k in range(8):
        s_, t = k >> 1, k & 1
        a(f"s_waitcnt lgkmcnt({min(4, 2*(7-k))})")
        d = 96 + 16 * t
        c = "0" if s_ == 0 else vr(d, 16)
        a(f"v_mfma_f32_32x32x16_bf16 {vr(d, 16)}, {vr(36+4*s_, 4)}, {vr(slots[k % 3], 4)}, {c}")
        if k + 3 < 8:
            rd(k + 3)
    a.label("F_NOB1")
    a("s_waitcnt lgkmcnt(0)")
    a("s_barrier")
    a(f"s_cmp_gt_u32 s{sW}, 12")
    a("s_cbranch_scc1 F_NOSCAT")
    a(f"s_mov_b64 exec, s[{sVAL}:{sVAL+1}]")
    for i in range(4):
        a(f"ds_read_b64 {vr(36+2*i, 2)}, v{20+i}")
    for i in range(4):
        a(f"v_lshlrev_b32 v{8+i}, 4, v{24+i}")
        a(f"v_cmp_gt_u32 s[{sM+2*i}:{sM+2*i+1}], 16, v{24+i}")
    for i in range(4):
        a("s_waitcnt lgkmcnt(3)")
        a(f"v_bfe_u32 v{36+2*i}, v{36+2*i}, v{8+i}, 9")
        a(f"v_cndmask_b32 v{37+2*i}, v{37+2*i}, v{12+i}, s[{sM+2*i}:{sM+2*i+1}]")
        a(f"v_or_b32 v{29+2*i}, v{29+2*i}, v{36+2*i}")
        a(f"v_lshl_add_u32 v{37+2*i}, v{24+i}, 3, v{37+2*i}")
        a(f"ds_write_b64 v{37+2*i}, {vr(28+2*i, 2)}")
    a("s_mov_b64 exec, -1")
    a.label("F_NOSCAT")
    a(f"s_cmp_lt_u32 s{sW}, 12")
    a("s_cbranch_scc1 F_NOB2")
    a(f"s_mov_b32 s{SRD_O}, s16")
    a(f"s_mov_b32 s{SRD_O+1}, s17")
    a(f"s_mov_b32 s{SRD_O+2}, {N*128}")
    a(f"s_mov_b32 s{SRD_O+3}, 0x20000")
    a(f"s_sub_u32 s3, s{sW}, 12")
    a(f"s_lshl2_add_u32 s3, s3, s{sNODE}")
    a("s_lshl_b32 s3, s3, 7")
    a(f"v_lshrrev_b32 v40, 5, v{vL}")
    a("v_lshl_add_u32 v40, v40, 13, s3")
    a(f"v_and_b32 v41, 31, v{vL}")
    a("v_lshl_add_u32 v40, v41, 2, v40")
    a("s_mov_b32 s83, 0xffff0000")
    a("s_mov_b32 s84, 0x80000000")
    a("s_movk_i32 s85, 0x1000")
    a(f"s_cmp_eq_u32 s{sW}, 12")
    a(f"s_cselect_b32 s{sT0}, -1, 0")
    for g in range(4):
        R = range(4)
        for i in R:
            a(f"v_cvt_pk_bf16_f32 v{44+i}, v{96+4*g+i}, 0")
        for i in R:
            a(f"v_mul_f32 v{48+i}, {NLOG2E}, v{112+4*g+i}")
        for i in R:
            a(f"v_sub_u32 v{52+i}, 0x8000, v{44+i}")
        for i in R:
            a(f"v_and_b32 v{i}, 0x7fffffff, v{48+i}")
        for i in R:
            a(f"v_add_u32 v{52+i}, v{52+i}, v{i}")
        for i in R:
            a(f"v_max_i32 v{52+i}, 0, v{52+i}")
        for i in R:
            a(f"v_and_or_b32 v{52+i}, v{52+i}, s83, v{44+i}")
        for i in R:
            a(f"v_and_or_b32 v{96+4*g+i}, v{48+i}, s84, v{52+i}")
        for i in R:
            if i == 2:
                a(f"s_mov_b32 exec_hi, {'s' + str(sT0) if g < 2 else '0'}")
            if i == 3 and g < 2:
                a("s_mov_b32 exec_hi, 0")
            a(f"buffer_store_dword v{96+4*g+i}, v40, s[{SRD_O}:{SRD_O+3}], {'s85' if i >= 2 else '0'} offen offset:{g*128 + (i & 1)*2048} sc1")
        a("s_mov_b32 exec_hi, -1")
    a.label("F_NOB2")
    a(f"v_lshrrev_b32 v40, 3, v{vT}")
    a(f"s_lshl_b32 s3, s{sB}, 7")
    a(f"s_add_u32 s3, s3, {WS_PAY0}")
    a(f"v_and_b32 v41, 7, v{vT}")
    a("v_lshl_add_u32 v41, v41, 4, s3")
    a(f"s_mov_b32 s3, {BSTR}")
    a("v_mad_u32_u24 v40, v40, s3, v41")
    a(f"v_add_u32 v41, {128*BSTR}, v40")
    a(f"s_mul_i32 s3, s{sB}, {PSTR}")
    a(f"s_add_u32 s3, s3, {WS_POOL}")
    a("v_add_u32 v42, s3, v62")
    a("v_mov_b32 v36, 0")
    a("s_waitcnt lgkmcnt(0)")
    a("s_barrier")
    st1(a, 3)
    a(f"ds_read_b128 v[8:11], v62 offset:{L_ST0}")
    a(f"ds_read_b128 v[12:15], v62 offset:{L_ST0 + 16384}")
    a(f"ds_read_b32 v43, v36 offset:{L_CNT + 320}")
    a(f"ds_read_b128 v[16:19], v62 offset:{L_ST1}")
    a("s_waitcnt lgkmcnt(3)")
    a(f"v_xor_b32 v8, s{sTAG}, v8")
    a(f"v_xor_b32 v10, s{sTAG}, v10")
    a("global_store_dwordx4 v40, v[8:11], s[16:17] sc1")
    a("s_waitcnt lgkmcnt(2)")
    a(f"v_xor_b32 v12, s{sTAG}, v12")
    a(f"v_xor_b32 v14, s{sTAG}, v14")
    a("global_store_dwordx4 v41, v[12:15], s[16:17] sc1")
    a("s_waitcnt lgkmcnt(0)")
    a("v_lshlrev_b32 v43, 3, v43")
    a(f"v_cmp_gt_u32 vcc, v43, v{vT}")
    a(f"v_xor_b32 v16, s{sTAG}, v16")
    a(f"v_xor_b32 v18, s{sTAG}, v18")
    a("s_and_b64 exec, exec, vcc")
    a("s_cbranch_execz F_POOL_DONE")
    a("global_store_dwordx4 v42, v[16:19], s[16:17] sc1")
    a(f"v_add_u32 v44, 1024, v{vT}")
    a("v_cmp_gt_u32 vcc, v43, v44")
    a("s_and_b64 exec, exec, vcc")
    a("s_cbranch_execz F_POOL_DONE")
    a(f"ds_read_b128 v[20:23], v62 offset:{L_ST1 + 16384}")
    a("v_add_u32 v42, 0x4000, v42")
    a("s_waitcnt lgkmcnt(0)")
    a(f"v_xor_b32 v20, s{sTAG}, v20")
    a(f"v_xor_b32 v22, s{sTAG}, v22")
    a("global_store_dwordx4 v42, v[20:23], s[16:17] sc1")
    a.label("F_POOL_DONE")
    a("s_mov_b64 exec, -1")
    a("s_barrier")
    for s_ in range(4):
        c = "0" if s_ == 0 else vr(96, 16)
        a(f"v_mfma_f32_32x32x16_bf16 {vr(96, 16)}, {vr(64+4*s_, 4)}, {vr(80+4*s_, 4)}, {c}")
    a("v_mov_b64 v[12:13], 0")
    a("v_mov_b64 v[14:15], 0")
    a(f"v_mul_u32_u24 v20, 0x80008, v{vT}")
    a("v_add_u32 v20, 0x10000, v20")
    for k in range(1, 4):
        a(f"v_add_u32 v{20+k}, {hex(0x20002 * k)}, v20")
    a(f"v_mfma_f32_32x32x16_bf16 {vr(112, 16)}, v[12:15], v[12:15], 0")
    a("s_mov_b32 s3, 0x00800080")
    for k in range(4):
        a(f"v_add_u32 v{24+k}, 0x9f809f80, v{20+k}")
        a(f"v_pk_sub_u16 v{20+k}, v{20+k}, s3 clamp")
        a(f"v_or_b32 v{20+k}, 0x80008000, v{20+k}")
    a(f"v_add_u32 v28, {L_LUT}, v62")
    a("ds_write_b128 v28, v[20:23]")
    a(f"v_cmp_gt_u32 vcc, 864, v{vT}")
    a(f"v_lshlrev_b32 v29, 17, v{vT}")
    a(f"v_add_u32 v29, {hex((118*128) << 16)}, v29")
    a("s_mov_b64 exec, vcc")
    a("ds_write_b128 v28, v[24:27] offset:16384")
    a("s_mov_b64 exec, -1")
    a(f"v_cmp_lt_u32 vcc, 95, v{vT}")
    a("v_add_u32 v30, 0x10000, v29")
    a(f"v_mul_f32 v31, {PLOG2E}, v29")
    a("s_mov_b64 exec, vcc")
    a("ds_write_b128 v28, v[12:15] offset:32768")
    a("s_mov_b64 exec, -1")
    a(f"v_mul_f32 v32, {PLOG2E}, v30")
    a("v_exp_f32 v31, v31")
    a("v_exp_f32 v32, v32")
    a(f"v_cmp_lt_u32 vcc, 1007, v{vT}")
    a("v_mov_b32 v33, 0x7fc07fc0")
    a("v_add_f32 v31, 1.0, v31")
    a("v_add_f32 v32, 1.0, v32")
    a("v_cndmask_b32 v20, 0, v33, vcc")
    a("v_rcp_f32 v31, v31")
    a("v_rcp_f32 v32, v32")
    for k in range(1, 4):
        a(f"v_mov_b32 v{20+k}, v20")
    a("ds_write_b128 v28, v[20:23] offset:49152")
    a("v_mul_f32 v31, v29, v31")
    a("v_mul_f32 v32, v30, v32")
    a("v_cvt_pk_bf16_f32 v31, -v31, -v32")
    a(f"v_lshlrev_b32 v33, 2, v{vT}")
    a(f"v_add_u32 v33, {L_LUT + 118*256}, v33")
    a("ds_write_b32 v33, v31")
    a(f"s_mov_b32 s{sT2}, {NLOG2E}")
    a(f"s_mov_b32 s{sT3}, {NLOG2E}")
    a(f"s_and_b32 s{sT0}, s{sW}, 3")
    a(f"s_cmp_lg_u32 s{sT0}, 1")
    a("s_cbranch_scc1 F_NOSC")
    for i in range(8):
        a(f"v_pk_mul_f32 {vr(96+2*i, 2)}, {vr(96+2*i, 2)}, s[{sT2}:{sT3}]")
    a.label("F_NOSC")
    a(f"s_lshl_b32 s{sT0}, s{sT0}, 9")
    a(f"s_lshr_b32 s{sT1}, s{sW}, 2")
    a(f"s_lshl_b32 s3, s{sT1}, 13")
    a(f"s_add_u32 s{sT0}, s{sT0}, s3")
    a(f"s_add_u32 s{sT0}, s{sT0}, {L_OH}")
    a(f"v_lshl_add_u32 v40, v{vL}, 3, s{sT0}")
    for i in range(8):
        a(f"v_cvt_pk_bf16_f32 v{32+i}, v{96+2*i}, v{97+2*i}")
    for g in range(4):
        a(f"ds_write_b64 v40, {vr(32+2*g, 2)} offset:{2048*g}")
    a(f"v_mfma_f32_32x32x16_bf16 {vr(96, 16)}, v[12:15], v[12:15], 0")
    a(f"s_and_b32 s{sRK}, s{sW}, 3")
    a(f"s_bitcmp1_b32 s{sW}, 2")
    a(f"s_cselect_b32 s3, 3, 0")
    a(f"s_xor_b32 s{sRK}, s{sRK}, s3")
    a(f"s_lshl2_add_u32 s{sRK}, s{sT1}, s{sRK}")
    a(f"v_and_b32 v35, 31, v{vL}")
    a(f"v_bfe_u32 v34, v{vL}, 1, 2")
    a(f"v_lshlrev_b32 v{vLB}, 6, v35")
    a(f"v_lshl_add_u32 v{vLB}, v34, 3, v{vLB}")
    a(f"v_lshrrev_b32 v36, 5, v{vL}")
    a(f"v_bfe_u32 v34, v{vL}, 2, 2")
    a("v_lshl_add_u32 v34, v36, 2, v34")
    a(f"v_lshlrev_b32 v{vTRA}, 6, v34")
    a("v_lshrrev_b32 v34, 1, v34")
    a(f"v_xor_b32 v34, v34, v{vL}")
    a("v_and_b32 v34, 3, v34")
    a(f"v_lshl_add_u32 v{vTRA}, v34, 3, v{vTRA}")
    a(f"v_and_b32 v34, 16, v{vL}")
    a(f"v_lshl_add_u32 v{vTRA}, v34, 1, v{vTRA}")
    a(f"v_lshlrev_b32 v{vGA}, 4, v36")
    a("v_lshlrev_b32 v35, 3, v35")
    a("v_mov_b32 v34, 256")
    a(f"v_cmp_gt_u32 vcc, 32, v{vL}")
    a("v_cndmask_b32 v8, v34, v35, vcc")
    a("v_cndmask_b32_e64 v9, v35, v34, vcc")
    a(f"s_mov_b32 s{SRD_B}, s16")
    a(f"s_and_b32 s{SRD_B+1}, s17, 0xffff")
    a(f"s_or_b32 s{SRD_B+1}, s{SRD_B+1}, 0x80000000")
    a(f"s_mov_b32 s{SRD_B+2}, 0x100000")
    a(f"s_mov_b32 s{SRD_B+3}, 0xc00000")
    a(f"s_add_u32 s{SRD_POS}, s16, {WS_POS}")
    a(f"s_addc_u32 s{SRD_POS+1}, s17, 0")
    a(f"s_and_b32 s{SRD_POS+1}, s{SRD_POS+1}, 0xffff")
    a(f"s_or_b32 s{SRD_POS+1}, s{SRD_POS+1}, 0x40000")
    a(f"s_mov_b32 s{SRD_POS+2}, {N*16}")
    a(f"s_mov_b32 s{SRD_POS+3}, 0x20000")
    a(f"s_mov_b32 s{sSEL}, 0x03020302")
    a(f"s_mov_b64 s[{sLO}:{sLO+1}], 0")
    a(f"s_mov_b64 s[{sHI}:{sHI+1}], 0")
    a(f"s_mov_b32 s{sFL}, 0")
    a(f"s_mov_b32 s{sPC}, 0")

    def line_addr():
        a(f"s_mul_i32 s3, s{sB}, {BSTR}")
        a(f"s_lshl_b32 s{sT0}, s{sW}, 11")
        a(f"s_add_u32 s3, s3, s{sT0}")
        a(f"s_add_u32 s3, s3, {WS_PAY0}")
        a(f"v_lshl_add_u32 v52, v{vL}, 4, s3")
        a(f"s_mul_i32 s3, s{sW}, {16*PSTR}")
        a(f"s_add_u32 s3, s3, {WS_POOL}")
        a(f"v_and_b32 v53, 7, v{vL}")
        a("v_lshl_add_u32 v53, v53, 4, s3")
        a(f"v_lshrrev_b32 v54, 3, v{vL}")
        a(f"s_movk_i32 s3, {PSTR}")
        a("v_mad_u32_u24 v53, v54, s3, v53")
    line_addr()
    a(f"v_lshlrev_b32 v50, 2, v{vL}")
    a("v_and_b32 v51, 63, v50")
    a(f"v_and_b32 v49, 48, v{vL}")
    a("v_mov_b32 v48, 4")
    a(f"v_lshlrev_b32 v47, 4, v{vL}")
    a(f"s_lshl_b32 s3, s{sW}, 11")
    a(f"s_add_u32 s3, s3, {WS_FLAG}")
    a("v_lshl_add_u32 v46, v51, 5, s3")
    a("s_mov_b32 s83, 0x20000")
    a(f"s_or_b32 s84, s{sTAG}, 0x1abcd")
    a("s_waitcnt vmcnt(0)")
    st1(a, 4)
    a(f"s_cmp_lt_u32 s{sW}, 12")
    a("s_cbranch_scc1 F_POLL0")
    a("s_mov_b64 exec, 1")
    a(f"ds_add_rtn_u32 v44, v12, v48 offset:{L_CNT + 324}")
    a(f"s_lshl_b32 s3, s{sB}, 7")
    a(f"s_add_u32 s3, s3, {WS_FLAG}")
    a("v_mov_b32 v45, s3")
    a("v_mov_b32 v43, s84")
    a("s_waitcnt lgkmcnt(0)")
    a("v_cmp_eq_u32 vcc, 12, v44")
    a("s_mov_b64 exec, vcc")
    a("s_cbranch_execz F_NOFLAG")
    a("global_store_dword v45, v43, s[16:17] sc1")
    a.label("F_NOFLAG")
    a("s_mov_b64 exec, -1")
    a.label("F_POLL0")
    a("global_load_dwordx4 v[80:83], v52, s[16:17] sc1")
    a("global_load_dwordx4 v[84:87], v52, s[16:17] offset:1024 sc1")
    a(f"s_add_u32 s{sPC}, s{sPC}, 1")
    a(f"s_cmp_gt_u32 s{sPC}, {POLL_MAX}")
    a("s_cbranch_scc1 K2_END")
    a("s_waitcnt vmcnt(0)")
    for r in (80, 82, 84, 86):
        a(f"v_xor_b32 v{r}, s{sTAG}, v{r}")
    a("v_or3_b32 v44, v80, v82, v84")
    a("v_or_b32 v44, v44, v86")
    a("v_cmp_gt_u32 vcc, s83, v44")
    a("s_cmp_eq_u64 vcc, -1")
    a("s_cbranch_scc0 F_POLL0")
    st1(a, 5)
    a("global_load_dword v76, v46, s[16:17] sc1")
    a("v_bfe_u32 v54, v81, 1, 8")
    a("v_bfe_u32 v55, v85, 1, 8")
    a("v_bfe_u32 v56, v83, 1, 8")
    a("v_bfe_u32 v57, v87, 1, 8")
    a(f"v_cmp_lt_u32 s[{sA0}:{sA0+1}], 0, v54")
    a(f"v_cmp_lt_u32 s[{sA1}:{sA1+1}], 0, v55")
    a("v_lshl_add_u32 v56, v56, 7, v53")
    a("v_lshl_add_u32 v57, v57, 7, v53")
    a(f"v_add_u32 v57, {8*PSTR}, v57")
    for u in range(4):
        a(f"v_cmp_ne_u32 s[{sM+2*u}:{sM+2*u+1}], 0, v{81+2*u}")
    a(f"s_mov_b64 exec, s[{sA0}:{sA0+1}]")
    a("global_load_dwordx4 v[88:91], v56, s[16:17] sc1")
    a(f"s_mov_b64 exec, s[{sA1}:{sA1+1}]")
    a("global_load_dwordx4 v[92:95], v57, s[16:17] sc1")
    append4(a, 80, sM, 64)
    a(f"s_mov_b32 s{sJ}, 1")
    a.label("F_LEVEL")
    a(f"s_or_b64 s[{sT2}:{sT3}], s[{sA0}:{sA0+1}], s[{sA1}:{sA1+1}]")
    a("s_cbranch_scc0 F_LEVEL_DONE")
    a("s_waitcnt vmcnt(0)")
    for r in (88, 90, 92, 94):
        a(f"v_xor_b32 v{r}, s{sTAG}, v{r}")
    a("v_or_b32 v44, v88, v90")
    a("v_or_b32 v45, v92, v94")
    a(f"v_cmp_le_u32 vcc, s83, v44")
    a(f"v_cmp_le_u32 s[{sT2}:{sT3}], s83, v45")
    a(f"s_and_b64 vcc, vcc, s[{sA0}:{sA0+1}]")
    a(f"s_and_b64 s[{sT2}:{sT3}], s[{sT2}:{sT3}], s[{sA1}:{sA1+1}]")
    a(f"s_or_b64 vcc, vcc, s[{sT2}:{sT3}]")
    a("s_cbranch_scc1 F_LEVEL_LOAD")
    for u in range(4):
        a(f"v_cmp_ne_u32 s[{sM+2*u}:{sM+2*u+1}], 0, v{89+2*u}")
    for u in range(4):
        m = sA0 if u < 2 else sA1
        a(f"s_and_b64 s[{sM+2*u}:{sM+2*u+1}], s[{sM+2*u}:{sM+2*u+1}], s[{m}:{m+1}]")
    append4(a, 88, sM, 64)
    a(f"v_cmp_lt_u32 s[{sA0}:{sA0+1}], s{sJ}, v54")
    a(f"v_cmp_lt_u32 s[{sA1}:{sA1+1}], s{sJ}, v55")
    a(f"s_add_u32 s{sJ}, s{sJ}, 1")
    a("v_add_u32 v56, 128, v56")
    a("v_add_u32 v57, 128, v57")
    a(f"s_or_b64 s[{sT2}:{sT3}], s[{sA0}:{sA0+1}], s[{sA1}:{sA1+1}]")
    a("s_cbranch_scc0 F_LEVEL_DONE")
    a.label("F_LEVEL_LOAD")
    a(f"s_mov_b64 exec, s[{sA0}:{sA0+1}]")
    a("global_load_dwordx4 v[88:91], v56, s[16:17] sc1")
    a(f"s_mov_b64 exec, s[{sA1}:{sA1+1}]")
    a("global_load_dwordx4 v[92:95], v57, s[16:17] sc1")
    a("s_mov_b64 exec, -1")
    a(f"s_add_u32 s{sPC}, s{sPC}, 1")
    a(f"s_cmp_gt_u32 s{sPC}, {POLL_MAX}")
    a("s_cbranch_scc1 K2_END")
    a("s_branch F_LEVEL")
    a.label("F_LEVEL_DONE")
    a("s_waitcnt vmcnt(0)")
    a("v_cmp_ne_u32 vcc, s84, v76")
    a("s_cbranch_vccz F_READY")
    a("global_load_dword v76, v46, s[16:17] sc1")
    a(f"s_add_u32 s{sPC}, s{sPC}, 1")
    a(f"s_cmp_gt_u32 s{sPC}, {POLL_MAX}")
    a("s_cbranch_scc1 K2_END")
    a("s_branch F_LEVEL_DONE")
    a.label("F_READY")
    a("s_waitcnt lgkmcnt(0)")
    a("s_barrier")
    st1(a, 6)
    if OPT["diag"] == 2:
        stamp(a, 86, 4)
    a(f"ds_read_b32 v33, v51 offset:{L_CNT}")
    a(f"ds_read_b32 v34, v51 offset:{L_CNT + 192}")
    if OPT["bal"]:
        a(f"ds_read_b32 v35, v51 offset:{L_CNT + 128}")
        a(f"ds_read_b128 v[36:39], v49 offset:{L_CNT}")
        a(f"ds_read_b128 v[40:43], v49 offset:{L_CNT + 128}")
    a(f"ds_read_b64 {vr(WE0, 2)}, v9 offset:{L_WD}")
    a(f"ds_read_b64 {vr(WE0+4, 2)}, v8 offset:{L_WD}")
    a(f"ds_read_b64 {vr(WE1, 2)}, v9 offset:{L_WD + 272}")
    a(f"ds_read_b64 {vr(WE1+4, 2)}, v8 offset:{L_WD + 272}")
    a(f"s_or_b32 s3, s{sB}, s{sW}")
    a("s_cbranch_scc1 F_NOEPOCH")
    a(f"v_mov_b32 v44, {WS_EPOCH}")
    a(f"v_mov_b32 v45, s{sTAG}")
    a("s_mov_b64 exec, 1")
    a("global_store_dword v44, v45, s[16:17] sc1")
    a("s_mov_b64 exec, -1")
    a.label("F_NOEPOCH")
    if OPT["bal"]:
        a("s_waitcnt lgkmcnt(4)")
        a("v_lshl_add_u32 v35, v33, 2, v35")
        for k in range(4):
            a(f"v_lshl_add_u32 v{36+k}, v{36+k}, 2, v{40+k}")
        for k in range(4):
            a(f"v_cmp_gt_u32 s[{sM+2*k}:{sM+2*k+1}], v{36+k}, v35")
        a("v_cmp_gt_u32 vcc, v33, v34")
        a(f"v_cndmask_b32 v36, 0, 1, s[{sM}:{sM+1}]")
        for k in range(1, 4):
            a(f"v_addc_co_u32 v36, s[{sT2}:{sT3}], 0, v36, s[{sM+2*k}:{sM+2*k+1}]")
        a("v_mov_b32 v37, v36")
        a("v_permlane32_swap_b32 v37, v36")
        a("v_add_u32 v36, v36, v37")
        a("v_mov_b32 v37, v36")
        a("v_permlane16_swap_b32 v37, v36")
        a("v_add_u32 v36, v36, v37")
        a(f"v_cmp_eq_u32 s[{sT2}:{sT3}], s{sRK}, v36")
        a(f"s_ff1_i32_b32 s{sG}, s{sT2}")
        if OPT["safe"]:
            a(f"s_and_b32 s{sG}, s{sG}, 15")
    else:
        a("s_waitcnt lgkmcnt(4)")
        a("v_cmp_gt_u32 vcc, v33, v34")
        a(f"s_mov_b32 s{sG}, s{sW}")
    a(f"s_lshl_b32 s3, s{sG}, 11")
    a(f"s_add_u32 s3, s3, {L_OH}")
    a(f"v_lshl_add_u32 v63, v{vL}, 3, s3")
    a(f"v_readlane_b32 s{sREM}, v33, s{sG}")
    a(f"ds_read_b64 {vr(WE0+2, 2)}, v63")
    a(f"ds_read_b64 {vr(WE1+2, 2)}, v63 offset:512")
    a(f"ds_read_b64 {vr(CC, 2)}, v63 offset:1024")
    a(f"ds_read_b64 {vr(CC+2, 2)}, v63 offset:1536")
    a("v_add_u32 v3, s3, v47")
    a("ds_write_b128 v3, v[12:15]")
    a("ds_write_b128 v3, v[12:15] offset:1024")
    a(f"v_add_u32 v{vLB}, s3, v{vLB}")
    a(f"v_add_u32 v{vTRA}, s3, v{vTRA}")
    a(f"s_min_u32 s{sBASE}, s{sG}, 2")
    a(f"s_lshl_b32 s{sBASE}, s{sBASE}, 8")
    a(f"s_lshl_b32 s3, s{sG}, 10")
    a(f"s_add_u32 s{sBASE}, s{sBASE}, s3")
    a(f"v_add_u32 v{vGA}, s{sBASE}, v{vGA}")
    a(f"s_add_u32 s{sNODE}, s{sNODE}, s{sG}")
    a("s_cbranch_vccnz K2_SLOW")
    a.label("K2_START")
    a(f"s_sub_u32 s{sREM}, s{sREM}, s{sBASE}")
    a(f"s_lshr_b32 s{sREM}, s{sREM}, 2")
    a("s_cbranch_scc0 K2_LOOP_DONE")
    a(f"s_and_b32 s{sT0}, s{sREM}, 63")
    a("s_cbranch_scc0 K2_NOFILL")
    a(f"s_bfm_b64 s[{sT2}:{sT3}], s{sT0}, 0")
    a(f"s_andn2_b32 s{sT0}, s{sREM}, 63")
    a(f"s_lshl2_add_u32 m0, s{sT0}, s{sBASE}")
    a(f"s_not_b64 exec, s[{sT2}:{sT3}]")
    a(f"ds_write_addtid_b32 v12 offset:{L_SRC}")
    a(f"ds_write_addtid_b32 v12 offset:{L_INF}")
    a("s_mov_b64 exec, -1")
    a.label("K2_NOFILL")
    a(f"s_mov_b32 m0, s{sBASE}")
    G_reads(a, RAWA, 0)
    PA_reads(a)
    G_issue(a, RAWA, 2)
    a("s_waitcnt lgkmcnt(0)")
    PA_issue(a)
    emit_masks(a)
    a("s_waitcnt vmcnt(0)")
    emit_PB(a)
    if OPT["diag"] == 2:
        stamp(a, 86, 5)
        a("s_getreg_b32 s87, hwreg(HW_REG_HW_ID)")
        a("s_and_b32 s87, s87, 0xff")
        a(f"s_lshl_b32 s88, s{sG}, 8")
        a("s_or_b32 s87, s87, s88")
        a("s_memtime s[94:95]")
        a("s_waitcnt lgkmcnt(0)")
        a("s_mov_b32 s88, s94")
    a.label("K2_T0")
    emit_tile(a, 0)
    a.label("K2_T1")
    emit_tile(a, 1)
    a.label("K2_SLOW")
    a(f"s_mov_b32 s{sJ}, -1")
    a(f"s_mov_b32 s{sFL}, 2")
    a.label("K2_ROUND")
    a("s_setprio 0")
    a("s_waitcnt lgkmcnt(0)")
    a("s_barrier")
    lane_id(a, vL)
    a(f"v_lshlrev_b32 v50, 2, v{vL}")
    a("v_and_b32 v51, 63, v50")
    a(f"s_cmp_lg_u32 s{sW}, 0")
    a("s_cbranch_scc1 K2_NOCNT2")
    a(f"ds_read_b32 v33, v51 offset:{L_CNT + 256}")
    a("v_mov_b32 v34, 0")
    a("s_waitcnt lgkmcnt(0)")
    a(f"ds_write_b32 v51, v33 offset:{L_CNT}")
    a(f"ds_write_b32 v51, v34 offset:{L_CNT + 64}")
    a.label("K2_NOCNT2")
    line_addr()
    a("global_load_dwordx4 v[80:83], v52, s[16:17] sc1")
    a("global_load_dwordx4 v[84:87], v52, s[16:17] offset:1024 sc1")
    a(f"s_and_b32 s{sT1}, s{sFL}, 1")
    a(f"s_xor_b32 s{sT1}, s{sT1}, 1")
    a(f"s_add_u32 s{sJ}, s{sJ}, s{sT1}")
    a("s_waitcnt vmcnt(0) lgkmcnt(0)")
    a("s_barrier")
    a("v_bfe_u32 v54, v81, 1, 8")
    a("v_bfe_u32 v55, v85, 1, 8")
    a("v_bfe_u32 v56, v83, 1, 8")
    a("v_bfe_u32 v57, v87, 1, 8")
    a(f"v_cmp_le_u32 s[{sA0}:{sA0+1}], s{sJ}, v54")
    a(f"v_cmp_le_u32 s[{sA1}:{sA1+1}], s{sJ}, v55")
    a("v_max_u32 v54, v54, v55")
    a(f"v_cmp_lt_u32 s[{sLONG}:{sLONG+1}], s{sJ}, v54")
    a(f"s_cmp_eq_u32 s{sJ}, 0")
    a("s_cbranch_scc1 K2_LEV0")
    a(f"s_sub_u32 s3, s{sJ}, 1")
    a("v_add_u32 v56, s3, v56")
    a("v_add_u32 v57, s3, v57")
    a("v_lshl_add_u32 v56, v56, 7, v53")
    a("v_lshl_add_u32 v57, v57, 7, v53")
    a(f"v_add_u32 v57, {8*PSTR}, v57")
    a(f"s_mov_b64 exec, s[{sA0}:{sA0+1}]")
    a("global_load_dwordx4 v[80:83], v56, s[16:17] sc1")
    a(f"s_mov_b64 exec, s[{sA1}:{sA1+1}]")
    a("global_load_dwordx4 v[84:87], v57, s[16:17] sc1")
    a("s_mov_b64 exec, -1")
    a("s_waitcnt vmcnt(0)")
    a.label("K2_LEV0")
    for r in (80, 82, 84, 86):
        a(f"v_xor_b32 v{r}, s{sTAG}, v{r}")
    a(f"s_bitcmp1_b32 s{sFL}, 0")
    a("s_cbranch_scc1 K2_KEEPM")
    for u in range(4):
        m = sA0 if u < 2 else sA1
        a(f"v_cmp_ne_u32 vcc, 0, v{81+2*u}")
        a(f"s_and_b64 s[{sM+2*u}:{sM+2*u+1}], vcc, s[{m}:{m+1}]")
    a.label("K2_KEEPM")
    a("v_mov_b32 v48, 4")
    a("v_mov_b32 v49, 0")
    a(f"s_mov_b64 s[{sT2}:{sT3}], 0")
    for u in range(4):
        a(f"s_mov_b64 exec, s[{sM+2*u}:{sM+2*u+1}]")
        a(f"v_lshrrev_b32 v64, 10, v{81+2*u}")
        a("v_and_b32 v64, 0x3c, v64")
        a(f"ds_read_b32 v65, v64 offset:{L_CNT + 192}")
        a(f"ds_add_rtn_u32 v64, v64, v48 offset:{L_CNT}")
        a("s_waitcnt lgkmcnt(0)")
        a("v_cmp_lt_u32 vcc, v64, v65")
        a(f"s_andn2_b64 s[{sM+2*u}:{sM+2*u+1}], exec, vcc")
        a("s_mov_b64 exec, vcc")
        a(f"ds_write_b32 v64, v{80+2*u} offset:{L_SRC}")
        a(f"ds_write_b32 v64, v{81+2*u} offset:{L_INF}")
        a(f"s_or_b64 s[{sT2}:{sT3}], s[{sT2}:{sT3}], s[{sM+2*u}:{sM+2*u+1}]")
    a(f"s_mov_b64 exec, s[{sT2}:{sT3}]")
    a("s_cbranch_execz K2_NOF1")
    a(f"ds_write_b32 v49, v48 offset:{L_CNT + 64}")
    a.label("K2_NOF1")
    a(f"s_mov_b64 exec, s[{sLONG}:{sLONG+1}]")
    a("s_cbranch_execz K2_NOF2")
    a(f"ds_write_b32 v49, v48 offset:{L_CNT + 68}")
    a.label("K2_NOF2")
    a("s_mov_b64 exec, -1")
    a("s_waitcnt lgkmcnt(0)")
    a("s_barrier")
    a(f"ds_read_b32 v33, v50 offset:{L_CNT}")
    a(f"ds_read_b32 v34, v51 offset:{L_CNT + 192}")
    a(f"v_lshrrev_b32 v{vGA}, 5, v{vL}")
    a(f"v_lshl_add_u32 v{vGA}, v{vGA}, 4, s{sBASE}")
    a("v_mov_b32 v12, 0")
    a("s_waitcnt lgkmcnt(0)")
    a(f"v_readlane_b32 s{sT0}, v33, 16")
    a(f"v_readlane_b32 s{sT1}, v33, 17")
    a("v_min_u32 v33, v33, v34")
    a(f"s_cmp_lg_u32 s{sT0}, 0")
    a(f"s_cselect_b32 s{sFL}, 1, 0")
    a(f"s_cmp_lg_u32 s{sT1}, 0")
    a(f"s_cselect_b32 s{sT1}, 2, 0")
    a(f"s_or_b32 s{sFL}, s{sFL}, s{sT1}")
    a(f"v_readlane_b32 s{sREM}, v33, s{sG}")
    a("s_nop 1")
    a("s_branch K2_START")
    a.label("K2_LOOP_DONE")
    a(f"s_cmp_lg_u32 s{sFL}, 0")
    a("s_cbranch_scc1 K2_ROUND")
    if OPT['diag'] == 2:
        stamp(a, 86, 6)
    if OPT["diag"] == 2:
        a("s_memtime s[94:95]")
        a("s_waitcnt lgkmcnt(0)")
        a("s_mov_b32 s89, s94")
    vL, vJ, vHF = 4, 5, 6
    lane_id(a, vL)
    a(f"v_and_b32 v{vJ}, 31, v{vL}")
    a(f"v_lshrrev_b32 v{vHF}, 5, v{vL}")
    a(f"v_bfe_u32 v7, v{vL}, 2, 2")
    a(f"v_lshl_add_u32 v7, v{vHF}, 2, v7")
    a(f"v_and_b32 v3, 3, v{vL}")
    a("v_lshl_add_u32 v7, v7, 3, v3")
    a(f"v_bfe_u32 v8, v{vL}, 4, 1")
    a("v_lshl_add_u32 v7, v8, 2, v7")
    a("v_lshlrev_b32 v7, 3, v7")
    BT = 64
    for ks in range(4):
        for tc in range(2):
            for q in range(2):
                a(f"ds_read_b64_tr_b16 {vr(BT+8*ks+4*tc+2*q, 2)}, v7 offset:{L_WH2 + tc*4096 + (16*ks + 8*q)*64}")
    a(f"v_lshlrev_b32 v8, 4, v{vHF}")
    WX = 12
    for ks in range(4):
        a(f"ds_read_b128 {vr(WX+4*ks, 4)}, v8 offset:{L_WX + 32*ks}")
    a(f"v_lshrrev_b32 v9, 2, v{vJ}")
    a(f"s_lshl_b32 s{sT0}, s{sG}, 8")
    a(f"v_lshl_add_u32 v10, v9, 5, s{sT0}")
    a(f"v_lshl_add_u32 v9, v9, 4, s{sG}")
    a(f"v_lshl_add_u32 v11, v{vHF}, 3, v10")
    a("v_lshl_add_u32 v10, v3, 2, v10")
    a(f"ds_read_b64 v[0:1], v11 offset:{L_TAB}")
    a(f"ds_read_b32 v2, v10 offset:{L_TAB + 16}")
    for q in range(16):
        a(f"v_mul_f32 v{ACC1+q}, {NLN2}, v{ACC1+q}")
    SP = 32
    for t in range(2):
        for i in range(8):
            b = (ACC0, ACC1)[t]
            a(f"v_cvt_pk_bf16_f32 v{SP+8*t+i}, v{b+2*i}, v{b+2*i+1}")
    D0, D1, D3 = 96, 112, 48
    a("s_waitcnt lgkmcnt(0)")
    a(f"v_mfma_f32_32x32x8bf16_1k {vr(D0, 16)}, v[0:1], {vr(CC, 2)}, 0")
    a(f"v_mfma_f32_32x32x8bf16_1k {vr(D1, 16)}, v[0:1], {vr(CC+2, 2)}, 0")
    a(f"s_lshl_b32 s{sT0}, s{sG}, 10")
    a(f"s_add_u32 s{sT0}, s{sT0}, {L_HIMG}")
    a(f"v_lshlrev_b32 v10, 2, v{vJ}")
    a("v_xor_b32 v11, v10, v8")
    a(f"v_lshl_add_u32 v11, v{vHF}, 7, v11")
    a(f"v_add_u32 v11, s{sT0}, v11")
    for ks in range(4):
        sp = vr(SP + 4 * ks, 4)
        a(f"v_mfma_f32_32x32x16_bf16 {vr(D0, 16)}, {sp}, {vr(BT+8*ks, 4)}, {vr(D0, 16)}")
        a(f"v_mfma_f32_32x32x16_bf16 {vr(D1, 16)}, {sp}, {vr(BT+8*ks+4, 4)}, {vr(D1, 16)}")
        g = ks
        if g:
            a(f"v_xor_b32 v7, {32*g}, v11")
        a(f"ds_read_b32 v{28+g}, v{7 if g else 11} offset:{256*g}")
    for ks in range(4):
        c = "0" if ks == 0 else vr(D3, 16)
        a(f"v_mfma_f32_32x32x16_bf16 {vr(D3, 16)}, {vr(WX+4*ks, 4)}, {vr(SP+4*ks, 4)}, {c}")
    a(f"s_mov_b32 s{SRD_O}, s14")
    a(f"s_mov_b32 s{SRD_O+1}, s15")
    a(f"s_mov_b32 s{SRD_O+2}, {N*128}")
    a(f"s_mov_b32 s{SRD_O+3}, 0x20000")
    a(f"s_lshl_b32 s{sT0}, s{sNODE}, 7")
    a(f"v_lshl_add_u32 v10, v{vHF}, 11, v10")
    a(f"v_add_u32 v10, s{sT0}, v10")
    a(f"s_mov_b32 s{sT1}, {BN}")
    a(f"v_cmp_gt_u32 s[{sT2}:{sT3}], s{sT1}, v9")
    a(f"s_mul_i32 s{sT1}, s{sB}, {BN}")
    a(f"v_add_u32 v9, s{sT1}, v9")
    a(f"v_cmp_gt_u32 vcc, {N}, v9")
    a(f"s_and_b32 s{sT2}, s{sT2}, vcc_lo")
    a(f"s_and_b32 s{sT2}, s{sT2}, 0x77777777")
    a(f"s_mov_b32 s{sT3}, 0")
    a("v_mul_u32_u24 v9, 6, v9")
    a("v_lshl_add_u32 v9, v3, 1, v9")
    a(f"v_add_u32 v9, {N*128}, v9")
    xs = [(D0, D1)[t] + 4 * g + 3 for g in range(4) for t in range(2)]
    ts = [64 + i for i in range(8)]
    hs = [72 + i for i in range(8)]
    for x, t in zip(xs, ts):
        a(f"v_mul_f32 v{t}, {NLOG2E}, v{x}")
    for t in ts:
        a(f"v_exp_f32 v{t}, v{t}")
    a("s_waitcnt lgkmcnt(0)")
    for g in range(4):
        a(f"v_lshlrev_b32 v{hs[2*g]}, 16, v{28+g}")
        a(f"v_and_b32 v{hs[2*g+1]}, 0xffff0000, v{28+g}")
    for t in ts:
        a(f"v_add_f32 v{t}, 1.0, v{t}")
    for t in ts:
        a(f"v_rcp_f32 v{t}, v{t}")
    a(f"v_add_f32 v2, v2, v{D3}")
    for x, t, h in zip(xs, ts, hs):
        a(f"v_fmac_f32 v{h}, v{x}, v{t}")
    a("v_cvt_pk_bf16_f32 v2, v2, v2")
    for g in range(4):
        a(f"v_cvt_pk_bf16_f32 v{28+g}, v{hs[2*g]}, v{hs[2*g+1]}")
    a("s_movk_i32 s24, 0x1000")
    a("s_movk_i32 s25, 0x2000")
    a("s_movk_i32 s26, 0x3000")
    for g in range(3):
        a(f"buffer_store_dword v{28+g}, v10, s[{SRD_O}:{SRD_O+3}], {'0' if g == 0 else 's' + str(23+g)} offen {OPT['st_out']}")
    a(f"s_mov_b64 exec, s[{sT2}:{sT3}]")
    a("s_cbranch_execz K2_NOPOS")
    a("global_store_short v9, v2, s[14:15] " + OPT.get("st_pos", ""))
    a.label("K2_NOPOS")
    a(f"s_cmp_ge_u32 s{sG}, {BN - 96}")
    a("s_cbranch_scc1 K2_FIN")
    a("s_mov_b64 exec, 0xffffffff")
    a(f"buffer_store_dword v31, v10, s[{SRD_O}:{SRD_O+3}], s26 offen {OPT['st_out']}")
    a.label("K2_FIN")
    stamps_out(a, 86, 0, sW)
    a.label("K2_END")
    a("s_endpgm")
    return a


NAME = "standalone__cheap_equivariant_egnn__graph_kernel"
HEADER = """; EGNN layer on gfx950, one workgroup per CU. Each workgroup bins a chunk of the edges by destination bucket
"""


def make_safe(k):
    out = []
    for l in k.lines:
        if l.startswith("buffer_load_dword ") and f"s[{SRD_B}:{SRD_B+3}]" in l:
            v = l.split()[2].rstrip(",")
            out.append(f"v_min_u32 {v}, {(N - 1) * 4}, {v}")
        out.append(l)
    k.lines = out


def build(aslist):
    s = HEADER
    if aslist:
        s += f"; @launch kernel={NAME} grid=(256,1,1) block=(1024,1,1) lds={K_LDS}\n"
    else:
        s += f"; @launch grid=(256,1,1) block=(1024,1,1) lds={K_LDS}\n"
    s += '.amdgcn_target "amdgcn-amd-amdhsa--gfx950"\n.text\n'
    k = kernel()
    if OPT["safe"]:
        make_safe(k)
    s += f".globl {NAME}\n.p2align 8\n.type {NAME},@function\n{NAME}:\n" + k.render()
    s += f""".section .rodata,"a"
.p2align 6
.amdhsa_kernel {NAME}
  .amdhsa_next_free_vgpr 128
  .amdhsa_next_free_sgpr 96
  .amdhsa_accum_offset 128
  .amdhsa_group_segment_fixed_size 0
  .amdhsa_kernarg_size 88
  .amdhsa_user_sgpr_count 2
  .amdhsa_user_sgpr_kernarg_segment_ptr 1
  .amdhsa_system_sgpr_workgroup_id_x 1
  .amdhsa_float_denorm_mode_32 3
.end_amdhsa_kernel
"""
    return s


if __name__ == "__main__":
    out = sys.argv[1] if len(sys.argv) > 1 else "standalone__cheap_equivariant_egnn__graph.s"
    aslist = 0
    for arg in sys.argv[2:]:
        k, v = arg.split("=")
        if k == "list":
            aslist = int(v)
        else:
            OPT[k] = v if k.startswith('st_') else int(v)
    open(out, "w").write(build(aslist))
    print("wrote", out, "LDS", K_LDS)
```

```python
import struct
import sys
from asmlib import Asm

N = 25000
E = 800000
BN = 98
CH = 3128
CHB = 25088
K1_THREADS = 832
WS_B = 0
WS_PAY0 = 4 << 20
BSTR = 32768 + 256
WS_POS = 13 << 20
WS_FLAG = 14 << 20
WS_EPOCH = WS_FLAG + 65536
WS_POOL = 15 << 20
PSTR = 25088
WS_DIAG = 24 << 20

CAPS = [320, 320] + [256] * 14
BASES = [sum(CAPS[:g]) * 4 for g in range(17)]
L_SRC = 0
L_INF = BASES[16]
L_CNT = 2 * L_INF
L_WX = L_CNT + 384
L_WD = L_WX + 128
L_WH2 = L_WD + 544 + 96
L_TAB = L_WH2 + 8192
L_LUT = L_TAB + 4096
L_HIMG = L_LUT + 65536
L_OH = L_HIMG + 16384
K_LDS = L_OH + 32768
L_ST0 = 0
L_HIST = 32768
L_ST1 = L_LUT
L_WT = L_LUT + PSTR
L_INFO = L_WT + 24576
assert L_LUT < 65536 and L_OH % 64 == 0 and L_HIMG % 128 == 0 and K_LDS <= 163840, K_LDS
assert L_HIST + 1024 <= L_CNT and L_INFO + 2048 <= L_HIMG and L_WH2 % 128 == 0, (L_WH2, L_TAB)


def f2u(x):
    return struct.unpack("<I", struct.pack("<f", x))[0]


LOG2E = 1.4426950408889634
NLOG2E = hex(f2u(-LOG2E))
PLOG2E = hex(f2u(LOG2E))
NLN2 = hex(f2u(-0.6931471805599453))

OPT = dict(faithful_sq=1, prio=2, pk=0, diag=0, abl_lut=0, abl_g=0, abl_trans=0, startprio=0, bwide=1, st_pay='sc1', st_b='sc1', ormfma=0, pbshadow=1, glate=1, gspread=1, pf=0, safe=0, bar0=1, lutpos=1, bal=1, st_out='sc1', st_pos='sc1')


def stamp(a, base, i):
    if OPT["diag"]:
        a("s_waitcnt lgkmcnt(0)")
        a(f"s_memrealtime s[{base+8}:{base+9}]")
        a("s_waitcnt lgkmcnt(0)")
        a(f"s_mov_b32 s{base+i}, s{base+8}")


def stamps_out(a, base, kidx, swave):
    if OPT["diag"] == 3:
        a("s_waitcnt vmcnt(0)")
        stamp(a, base, 7)
        OPT["_n"] = OPT.get("_n", 0) + 1
        a("s_and_b32 s4, s2, 15")
        a("s_cmp_lg_u32 s4, 0")
        a(f"s_cbranch_scc1 DBG_SKIP{OPT['_n']}")
        a(f"s_load_dwordx2 s[4:5], s[0:1], 72")
        a("s_waitcnt lgkmcnt(0)")
        a(f"s_not_b32 s{base}, s{base}")
        a("s_mov_b64 exec, 1")
        a("v_mov_b32 v0, 0")
        for i in range(8):
            a(f"v_mov_b32 v1, s{base+i}")
            a(f"global_atomic_umax v0, v1, s[4:5] offset:{4*i}")
        a.label(f"DBG_SKIP{OPT['_n']}")
    elif OPT["diag"]:
        a("s_waitcnt vmcnt(0)")
        stamp(a, base, 7)
        a("s_mov_b64 exec, 1")
        a(f"s_lshl_b32 s{base+8}, s2, 4")
        a(f"s_add_u32 s{base+8}, s{base+8}, s{swave}")
        a(f"s_lshl_b32 s{base+8}, s{base+8}, 5")
        a(f"s_add_u32 s{base+8}, s{base+8}, {WS_DIAG + kidx * (1 << 20)}")
        a(f"v_mov_b32 v0, s{base+8}")
        for i in range(8):
            a(f"v_mov_b32 v1, s{base+i}")
            a(f"global_store_dword v0, v1, s[16:17] offset:{4*i}")


def vr(b, n):
    return f"v[{b}:{b+n-1}]"


assert BASES[:4] == [0, 1280, 2560, 3584]

ACC0, ACC1, RAWA, RAWB, X0, OH, T, LA, CC, WE0, WE1, XE, VV, PS = 96, 112, 64, 80, 48, 40, 36, 32, 28, 16, 22, 10, 8, 4
vINF, vOHA, vTRA, vLB, vGA = 7, 3, 2, 1, 0
sB, sW, sREM, sJ, sFL, sNODE = 18, 19, 20, 21, 22, 23
sM = 24
sLO, sHI = 40, 42
SRD_B, SRD_POS = 44, 48
sSEL, sBASE, sT0, sT1, sT2, sT3, sLONG = 52, 53, 54, 55, 56, 57, 58
SRD_O = 60


def P(a, p):
    if OPT["prio"] == 1:
        a(f"s_setprio {p}")


def prog_prio(a, tag):
    if OPT["prio"] == 2:
        a("s_setprio 3")
        a(f"s_cmp_gt_u32 s{sREM}, {OPT.get('p3', 160)}")
        a(f"s_cbranch_scc1 K2_PP{tag}")
        a("s_setprio 2")
        a(f"s_cmp_gt_u32 s{sREM}, {OPT.get('p2', 96)}")
        a(f"s_cbranch_scc1 K2_PP{tag}")
        a("s_setprio 1")
        a(f"s_cmp_gt_u32 s{sREM}, {OPT.get('p1', 32)}")
        a(f"s_cbranch_scc1 K2_PP{tag}")
        a("s_setprio 0")
        a.label(f"K2_PP{tag}")


def G_reads(a, dst, imm):
    for g in range(4):
        a(f"ds_read_b128 {vr(dst+4*g, 4)}, v{vGA} offset:{L_SRC + imm + 32*g}")


def G_issue(a, dst, younger):
    for g in range(4):
        a(f"s_waitcnt lgkmcnt({3 - g + younger})")
        for r in range(4):
            q = dst + 4 * g + r
            if OPT["abl_g"]:
                a("s_nop 0")
            else:
                a(f"buffer_load_dword v{q}, v{q}, s[{SRD_B}:{SRD_B+3}], 0 offen")


def PA_reads(a):
    a(f"ds_read_addtid_b32 v{PS} offset:{L_SRC}")
    a(f"ds_read_addtid_b32 v{vINF} offset:{L_INF}")


def PA_issue(a):
    a(f"buffer_load_dwordx3 {vr(PS, 3)}, v{PS}, s[{SRD_POS}:{SRD_POS+3}], 0 idxen")
    a("s_add_u32 m0, m0, 256")


def PB_read_pos(a):
    a(f"v_lshrrev_b32 v{LA}, 4, v{vINF}")
    a(f"v_and_b32 v{LA}, 0xfe0, v{LA}")
    a(f"ds_read_b128 {vr(T, 4)}, v{LA} offset:{L_TAB + 16}")


def PB_read_oh(a):
    a(f"ds_read_b64 {vr(XE, 2)}, v{LA} offset:{L_TAB}")
    a(f"ds_read_b64 {vr(XE+4, 2)}, v{LA} offset:{L_TAB + 8}")


def PB_math(a):
    a(f"v_perm_b32 v{XE+3}, v{vINF}, v{vINF}, s{sSEL}")
    for i in range(3):
        a(f"v_sub_f32 v{T+i}, v{T+i}, v{PS+i}")
    a(f"v_xor_b32 v{vOHA}, v{T+3}, v{vLB}")
    a(f"v_cvt_pk_bf16_f32 v{VV}, v{T}, v{T+1}")
    a(f"v_cvt_pk_bf16_f32 v{VV+1}, v{T+2}, 1.0")
    a(f"v_lshlrev_b32 v{T}, 16, v{VV}")
    a(f"v_and_b32 v{T+1}, 0xffff0000, v{VV}")
    a(f"v_lshlrev_b32 v{T+2}, 16, v{VV+1}")
    if OPT["faithful_sq"]:
        for i in range(3):
            a(f"v_mul_f32 v{T+i}, v{T+i}, v{T+i}")
        a(f"v_cvt_pk_bf16_f32 v{T+3}, v{T}, v{T+1}")
        a(f"v_cvt_pk_bf16_f32 v{T+2}, 0, v{T+2}")
        a(f"v_lshlrev_b32 v{T}, 16, v{T+3}")
        a(f"v_and_b32 v{T+1}, 0xffff0000, v{T+3}")
        a(f"v_add_f32 v{T}, v{T}, v{T+1}")
        a(f"v_add_f32 v{T}, v{T}, v{T+2}")
    else:
        a(f"v_mul_f32 v{T}, v{T}, v{T}")
        a(f"v_fmac_f32 v{T}, v{T+1}, v{T+1}")
        a(f"v_fmac_f32 v{T}, v{T+2}, v{T+2}")
    a(f"v_cvt_pk_bf16_f32 v{XE+2}, v{T}, v{T}")


def PB_swap(a):
    a(f"v_permlane32_swap_b32 v{XE}, v{XE+4}")
    a(f"v_permlane32_swap_b32 v{XE+1}, v{XE+5}")


def emit_PB(a):
    PB_read_pos(a)
    PB_read_oh(a)
    a("s_waitcnt lgkmcnt(2)")
    PB_math(a)
    a("s_waitcnt lgkmcnt(0)")
    PB_swap(a)


def emit_masks(a):
    a(f"s_bfm_b64 s[{sT2}:{sT2+1}], s{sREM}, 0")
    a(f"s_cmp_ge_u32 s{sREM}, 64")
    a(f"s_cselect_b32 s{sLO}, -1, s{sT2}")
    a(f"s_cselect_b32 s{sHI+1}, -1, s{sT2+1}")


def lut_half(a, h):
    b = X0 + 8 * h
    for i in range(4):
        a(f"v_cvt_pk_bf16_f32 v{b+i}, v{b+2*i}, v{b+2*i+1}")
    for i in range(4):
        a(f"v_lshlrev_b16 v{b+4+i}, 1, v{b+i}")
        a(f"v_lshlrev_b16_sdwa v{LA+i}, 1, v{b+i} dst_sel:DWORD dst_unused:UNUSED_PAD src0_sel:DWORD src1_sel:WORD_1")
        if not OPT["abl_lut"]:
            a(f"ds_read_u16 v{b+4+i}, v{b+4+i} offset:{L_LUT}")
            a(f"ds_read_u16_d16_hi v{LA+i}, v{LA+i} offset:{L_LUT}")
    for i in range(4):
        a(f"v_pk_max_i16 v{b+i}, v{b+i}, 0")


def lut_merge(a, h):
    if OPT["ormfma"]:
        a(f"v_mfma_f32_32x32x16_bf16 {vr(ACC0, 16)}, {vr(LA, 4)}, {vr(OH+4*h, 4)}, {vr(ACC0, 16)}")
        return
    b = X0 + 8 * h
    P(a, 0)
    for i in range(4):
        a(f"v_or_b32 v{b+4+i}, v{b+4+i}, v{LA+i}")
    P(a, 1)


def valu_half(a, raw, h, extra=()):
    if extra:
        b = Asm()
        valu_half(b, raw, h)
        extra = list(extra)
        n, k = len(b.lines), 0
        for i, l in enumerate(b.lines):
            a(l)
            while k < len(extra) and (k + 1) * n <= (i + 1) * len(extra):
                a(extra[k])
                k += 1
        for l in extra[k:]:
            a(l)
        return
    if OPT["abl_trans"]:
        return
    for qq in range(2):
        xs = [raw + 8 * h + 4 * qq + i for i in range(4)]
        ts = [T + i for i in range(4)]
        for x, t in zip(xs, ts):
            a(f"v_exp_f32 v{t}, v{x}")
        if OPT["pk"]:
            for t in ts[::2]:
                a(f"v_pk_add_f32 {vr(t, 2)}, {vr(t, 2)}, 1.0 op_sel_hi:[1,0]")
        else:
            P(a, 0)
            for t in ts:
                a(f"v_add_f32 v{t}, 1.0, v{t}")
            P(a, 1)
        for t in ts:
            a(f"v_rcp_f32 v{t}, v{t}")
        if OPT["pk"]:
            for x, t in zip(xs[::2], ts[::2]):
                a(f"v_pk_mul_f32 {vr(t, 2)}, {vr(t, 2)}, {vr(x, 2)}")
        else:
            P(a, 0)
            for x, t in zip(xs, ts):
                a(f"v_mul_f32 v{t}, v{x}, v{t}")
            P(a, 1)
        for i in range(2):
            a(f"v_cvt_pk_bf16_f32 v{raw+8*h+2*qq+i}, v{ts[2*i]}, v{ts[2*i+1]}")


def seg3(a, raw, h):
    for acc, op in ((ACC0, X0 + 8 * h), (ACC1, raw + 8 * h), (ACC0, X0 + 8 * h + 4)):
        a(f"v_mfma_f32_32x32x16_bf16 {vr(acc, 16)}, {vr(op, 4)}, {vr(OH+4*h, 4)}, {vr(acc, 16)}")


def emit_tile(a, par):
    L = f"K2_T{par}"
    cur, nxt = (RAWA, RAWB) if par == 0 else (RAWB, RAWA)
    m = sLO if par == 0 else sHI
    zz = WE0 if par == 0 else WE0 + 4
    shadow = OPT["pbshadow"] and par == 1
    prog_prio(a, par)
    a(f"s_cmp_le_u32 s{sREM}, 32")
    a(f"s_cbranch_scc1 {L}_NG1")
    if shadow:
        PB_read_pos(a)
    G_reads(a, nxt, 128 if par == 0 else 256)
    a.label(f"{L}_NG1")
    a(f"s_mov_b64 exec, s[{m}:{m+1}]")
    a(f"ds_write_b64 v{vOHA}, {vr(VV, 2)}")
    a("s_mov_b64 exec, -1")
    for q in range(4):
        a(f"ds_read_b64_tr_b16 {vr(OH+2*q, 2)}, v{vTRA} offset:{512*q}")
    a(f"s_mov_b64 exec, s[{m}:{m+1}]")
    a(f"ds_write_b64 v{vOHA}, {vr(zz, 2)}")
    a("s_mov_b64 exec, -1")
    if par == 0:
        PA_reads(a)
    a("s_waitcnt vmcnt(0)")
    P(a, 0)
    for q in range(16):
        a(f"v_lshlrev_b32 v{X0+q}, 16, v{cur+q}")
    P(a, 1)
    xe = XE if par == 0 else XE + 2
    wo = 2 if par == 0 else 0
    a(f"v_mfma_f32_32x32x16_bf16 {vr(X0, 16)}, {vr(xe, 4)}, {vr(WE0+wo, 4)}, {vr(X0, 16)}")
    a(f"v_mfma_f32_32x32x16_bf16 {vr(cur, 16)}, {vr(xe, 4)}, {vr(WE1+wo, 4)}, {vr(cur, 16)}")
    a(f"s_cmp_le_u32 s{sREM}, 32")
    a(f"s_cbranch_scc1 {L}_NG2")
    younger = 8 if par == 0 else 6
    if shadow:
        PB_read_oh(a)
        younger += 2
        a(f"s_waitcnt lgkmcnt({4 + younger})")
        PB_math(a)
    if not OPT["glate"]:
        G_issue(a, nxt, younger)
        if par == 0:
            a(f"s_cmp_le_u32 s{sREM}, 64")
            a(f"s_cbranch_scc1 {L}_GO")
            a("s_waitcnt lgkmcnt(0)")
            PA_issue(a)
    if shadow or not OPT["glate"]:
        a(f"s_branch {L}_GO")
    a.label(f"{L}_NG2")
    a("s_nop 9")
    a.label(f"{L}_GO")
    lut_half(a, 0)
    valu_half(a, cur, 0)
    a("s_waitcnt lgkmcnt(0)")
    lut_merge(a, 0)
    a(f"s_cmp_le_u32 s{sREM}, 16")
    a(f"s_cbranch_scc1 {L}_HALF")
    lut_half(a, 1)
    if OPT["gspread"]:
        seg3(a, cur, 0)
        if shadow:
            PB_swap(a)
        a(f"s_cmp_le_u32 s{sREM}, 32")
        a(f"s_cbranch_scc1 {L}_LASTV")
        ex = [f"buffer_load_dword v{nxt+q}, v{nxt+q}, s[{SRD_B}:{SRD_B+3}], 0 offen" for q in range(16)]
        valu_half(a, cur, 1, ex)
        if par == 0:
            a(f"s_cmp_le_u32 s{sREM}, 64")
            a(f"s_cbranch_scc1 {L}_NG3")
            PA_issue(a)
            a.label(f"{L}_NG3")
        a("s_waitcnt lgkmcnt(0)")
        lut_merge(a, 1)
        seg3(a, cur, 1)
        a(f"s_sub_u32 s{sREM}, s{sREM}, 32")
        if par == 1:
            a(f"v_add_u32 v{vGA}, 256, v{vGA}")
            if not shadow:
                emit_PB(a)
            emit_masks(a)
            a("s_branch K2_T0")
        else:
            a("s_branch K2_T1")
        a.label(f"{L}_LASTV")
        valu_half(a, cur, 1)
        a("s_waitcnt lgkmcnt(0)")
        lut_merge(a, 1)
        seg3(a, cur, 1)
        a("s_branch K2_LOOP_DONE")
        a.label(f"{L}_HALF")
        seg3(a, cur, 0)
        a("s_branch K2_LOOP_DONE")
        return
    if OPT["glate"]:
        a(f"s_cmp_le_u32 s{sREM}, 32")
        a(f"s_cbranch_scc1 {L}_NG3")
        for q in range(16):
            a(f"buffer_load_dword v{nxt+q}, v{nxt+q}, s[{SRD_B}:{SRD_B+3}], 0 offen")
        if par == 0:
            a(f"s_cmp_le_u32 s{sREM}, 64")
            a(f"s_cbranch_scc1 {L}_NG3")
            PA_issue(a)
        a.label(f"{L}_NG3")
    seg3(a, cur, 0)
    if shadow:
        PB_swap(a)
    valu_half(a, cur, 1)
    a("s_waitcnt lgkmcnt(0)")
    lut_merge(a, 1)
    a(f"s_cmp_le_u32 s{sREM}, 32")
    seg3(a, cur, 1)
    a("s_cbranch_scc1 K2_LOOP_DONE")
    a(f"s_sub_u32 s{sREM}, s{sREM}, 32")
    if par == 1:
        a(f"v_add_u32 v{vGA}, 256, v{vGA}")
        if not shadow:
            emit_PB(a)
        emit_masks(a)
        a("s_branch K2_T0")
    else:
        a("s_branch K2_T1")
    a.label(f"{L}_HALF")
    seg3(a, cur, 0)
    a("s_branch K2_LOOP_DONE")


def lane_id(a, v):
    a(f"v_mbcnt_lo_u32_b32 v{v}, -1, 0")
    a(f"v_mbcnt_hi_u32_b32 v{v}, -1, v{v}")


sTAG, sG, sRK, sVAL, sA0, sA1, sPC = 72, 73, 74, 76, 78, 80, 82
POLL_MAX = 1 << 18


def st1(a, i):
    if OPT["diag"] in (1, 3):
        stamp(a, 86, i)


def append4(a, data, masks, tmp):
    for u in range(4):
        a(f"s_mov_b64 exec, s[{masks+2*u}:{masks+2*u+1}]")
        a(f"v_lshrrev_b32 v{tmp+u}, 10, v{data+2*u+1}")
        a(f"v_and_b32 v{tmp+u}, 0x3c, v{tmp+u}")
        a(f"ds_add_rtn_u32 v{tmp+u}, v{tmp+u}, v48 offset:{L_CNT}")
    for u in range(4):
        a(f"s_mov_b64 exec, s[{masks+2*u}:{masks+2*u+1}]")
        a(f"s_waitcnt lgkmcnt({3 + u})")
        a(f"v_min_u32 v{tmp+u}, {L_INF - 4}, v{tmp+u}")
        a(f"ds_write_b32 v{tmp+u}, v{data+2*u} offset:{L_SRC}")
        a(f"ds_write_b32 v{tmp+u}, v{data+2*u+1} offset:{L_INF}")
    a("s_mov_b64 exec, -1")


def kernel():
    a = Asm()
    vL, vT = 60, 61
    a("s_cmp_ge_u32 s2, 256")
    a("s_cbranch_scc1 K2_END")
    a("s_load_dwordx8 s[4:11], s[0:1], 0")
    a("s_load_dwordx8 s[64:71], s[0:1], 32")
    a("s_load_dwordx2 s[14:15], s[0:1], 64")
    a("s_load_dwordx2 s[16:17], s[0:1], 80")
    stamp(a, 86, 0)
    if OPT["diag"] == 3:
        a("s_mov_b32 s87, 0")
    if OPT.get("calib0"):
        a(f"s_mov_b32 s3, {OPT['calib0']}")
        a.label("K2_CAL0")
        for i in range(16):
            a("s_nop 15")
        a("s_sub_u32 s3, s3, 1")
        a("s_cmp_lg_u32 s3, 0")
        a("s_cbranch_scc1 K2_CAL0")
    a("v_lshrrev_b32 v1, 6, v0")
    a(f"v_mov_b32 v{vT}, v0")
    a(f"v_readfirstlane_b32 s{sW}, v1")
    a(f"s_and_b32 s{sB}, s2, 7")
    a(f"s_lshl_b32 s{sB}, s{sB}, 5")
    a("s_lshr_b32 s3, s2, 3")
    a(f"s_add_u32 s{sB}, s{sB}, s3")
    a(f"s_mul_i32 s3, s{sB}, {CH}")
    a("v_lshl_add_u32 v3, v0, 2, s3")
    a(f"v_cmp_gt_u32 vcc, {CH // 4}, v0")
    a(f"s_mov_b32 s{sT0}, {E}")
    a(f"v_cmp_gt_u32 s[{sVAL}:{sVAL+1}], s{sT0}, v3")
    a("v_lshlrev_b32 v4, 2, v3")
    a("v_lshlrev_b32 v5, 1, v3")
    a(f"s_and_b64 s[{sVAL}:{sVAL+1}], s[{sVAL}:{sVAL+1}], vcc")
    a(f"v_and_b32 v{vL}, 63, v0")
    a(f"v_mov_b32 v6, {WS_EPOCH}")
    a(f"s_cmp_gt_u32 s{sW}, 12")
    a("s_waitcnt lgkmcnt(0)")
    a("s_cbranch_scc1 F_NOEDGE0")
    a(f"s_mov_b64 exec, s[{sVAL}:{sVAL+1}]")
    a("global_load_dwordx4 v[8:11], v4, s[64:65]")
    a("global_load_dwordx4 v[12:15], v4, s[10:11]")
    a("global_load_dwordx2 v[16:17], v5, s[8:9]")
    a("s_mov_b64 exec, -1")
    a.label("F_NOEDGE0")
    a("global_load_dword v18, v6, s[16:17] sc1")
    a(f"s_mul_i32 s{sNODE}, s{sB}, {BN}")
    a(f"s_add_u32 s3, s{sNODE}, s{sW}")
    a(f"v_lshrrev_b32 v32, 3, v{vL}")
    a(f"v_xor_b32 v33, v32, v{vL}")
    a("v_and_b32 v33, 7, v33")
    a("s_lshl_b32 s3, s3, 7")
    a("v_lshl_add_u32 v34, v32, 11, s3")
    a(f"v_min_u32 v34, {(N - 1) * 128}, v34")
    a("v_lshl_add_u32 v34, v33, 4, v34")
    a(f"s_lshl_b32 s{sT1}, s{sW}, 10")
    a(f"s_add_u32 m0, s{sT1}, {L_HIMG}")
    a(f"s_and_b32 s{sT0}, s{sW}, 11")
    a("global_load_lds_dwordx4 v34, s[4:5]")
    a(f"s_lshl_b32 s{sT2}, s{sT0}, 11")
    a(f"s_lshr_b32 s{sT0}, s{sW}, 3")
    a(f"s_lshl_b32 s{sT0}, s{sT0}, 13")
    a(f"s_sub_u32 s{sT2}, s{sT2}, s{sT0}")
    a(f"s_bfe_u32 s{sT0}, s{sW}, 0x10002")
    a(f"s_lshl_b32 s{sT0}, s{sT0}, 6")
    a(f"s_add_u32 s{sT2}, s{sT2}, s{sT0}")
    a(f"v_lshrrev_b32 v33, 2, v{vL}")
    a(f"v_lshl_add_u32 v33, v33, 7, s{sT2}")
    a(f"v_and_b32 v35, 3, v{vL}")
    a("v_lshl_add_u32 v33, v35, 4, v33")
    a(f"s_add_u32 m0, s{sT1}, {L_WT}")
    a(f"v_lshlrev_b32 v62, 4, v{vT}")
    a("global_load_lds_dwordx4 v33, s[66:67]")
    a("global_load_dwordx4 v[44:47], v62, s[70:71]")
    a(f"s_cmp_lt_u32 s{sW}, 13")
    a("s_cbranch_scc1 F_SIDE0_DONE")
    a(f"s_cmp_eq_u32 s{sW}, 15")
    a("s_cbranch_scc1 F_SIDE0_W")
    a(f"v_subrev_u32 v20, {13*64}, v{vT}")
    a(f"v_add_u32 v21, s{sNODE}, v20")
    a(f"v_cmp_gt_u32 vcc, {BN}, v20")
    a(f"s_mov_b32 s3, {N}")
    a(f"v_cmp_gt_u32 s[{sA0}:{sA0+1}], s3, v21")
    a("v_mul_u32_u24 v22, 6, v21")
    a(f"s_and_b64 s[{sA0}:{sA0+1}], s[{sA0}:{sA0+1}], vcc")
    a(f"s_mov_b64 exec, s[{sA0}:{sA0+1}]")
    for i in range(3):
        a(f"global_load_ushort v{8+i}, v22, s[6:7] offset:{2*i}")
    a("s_mov_b64 exec, -1")
    a("s_branch F_SIDE0_DONE")
    a.label("F_SIDE0_W")
    a(f"v_and_b32 v20, 31, v{vL}")
    a("v_lshlrev_b32 v21, 1, v20")
    a("v_add_u32 v21, 0x4000, v21")
    for i, off in enumerate((0, 64, 128, 192)):
        a(f"global_load_ushort v{8+i}, v21, s[66:67] offset:{off}")
    a("v_lshrrev_b32 v21, 3, v20")
    a("v_lshlrev_b32 v21, 5, v21")
    a("v_bfe_u32 v22, v20, 1, 1")
    a("v_lshl_add_u32 v21, v22, 4, v21")
    a("v_bfe_u32 v22, v20, 2, 1")
    a("v_lshl_add_u32 v21, v22, 3, v21")
    a("v_and_b32 v22, 1, v20")
    a("v_lshl_add_u32 v21, v22, 2, v21")
    a("global_load_dword v12, v21, s[68:69]")
    a.label("F_SIDE0_DONE")
    a("v_mov_b64 v[36:37], 0")
    a("v_mov_b64 v[38:39], 0")
    a(f"ds_write_b128 v62, v[36:39] offset:{L_ST0}")
    a(f"ds_write_b128 v62, v[36:39] offset:{L_ST0 + 16384}")
    a(f"ds_write_b128 v62, v[36:39] offset:{L_ST1}")
    a(f"s_cmp_gt_u32 s{sW}, 8")
    a("s_cbranch_scc1 F_Z1")
    a(f"v_cmp_gt_u32 vcc, {(PSTR - 16384) // 16}, v{vT}")
    a("s_mov_b64 exec, vcc")
    a(f"ds_write_b128 v62, v[36:39] offset:{L_ST1 + 16384}")
    a("s_mov_b64 exec, -1")
    a(f"s_cmp_gt_u32 s{sW}, 2")
    a("s_cbranch_scc1 F_Z1")
    a(f"s_cmp_eq_u32 s{sW}, 1")
    a("s_cbranch_scc1 F_ZCNT")
    a(f"s_cmp_eq_u32 s{sW}, 2")
    a("s_cbranch_scc1 F_ZOH")
    a(f"ds_write_b128 v62, v[36:39] offset:{L_HIST}")
    a("s_branch F_Z1")
    a.label("F_ZCNT")
    a(f"v_and_b32 v40, 15, v{vL}")
    a(f"v_cmp_lt_u32 vcc, 47, v{vL}")
    a("v_addc_co_u32 v41, vcc, 0, v40, vcc")
    a("v_min_u32 v42, 2, v41")
    a("v_lshlrev_b32 v42, 8, v42")
    a("v_lshl_add_u32 v42, v41, 10, v42")
    a("s_mov_b32 exec_lo, 0")
    a("s_mov_b32 exec_hi, 0xffff")
    a("v_lshlrev_b32 v42, 2, v42")
    a("v_sub_u32 v42, v40, v42")
    a("s_mov_b32 exec_lo, 0xffff0000")
    a("s_mov_b32 exec_hi, 0")
    a("v_mov_b32 v42, 0")
    a("s_mov_b64 exec, -1")
    a(f"v_lshlrev_b32 v41, 2, v{vL}")
    a(f"ds_write_b32 v41, v42 offset:{L_CNT}")
    a("s_mov_b32 exec_hi, 0")
    a(f"ds_write_b32 v41, v42 offset:{L_CNT + 256}")
    a("s_mov_b64 exec, -1")
    a("s_branch F_Z1")
    a.label("F_ZOH")
    a(f"v_and_b32 v40, 1, v{vL}")
    a("v_lshlrev_b32 v40, 4, v40")
    a("v_mov_b32 v41, 0x3f80")
    a("v_lshlrev_b32 v40, v40, v41")
    a(f"v_bfe_u32 v41, v{vL}, 1, 2")
    for d in range(4):
        a(f"v_cmp_eq_u32 s[{sM+2*d}:{sM+2*d+1}], {d}, v41")
    for d in range(4):
        a(f"v_cndmask_b32 v{52+d}, 0, v40, s[{sM+2*d}:{sM+2*d+1}]")
    a(f"v_lshlrev_b32 v41, 5, v{vL}")
    a(f"ds_write_b128 v41, v[52:55] offset:{L_TAB}")
    a(f"ds_write_b128 v41, v[52:55] offset:{L_TAB + 2048}")
    a.label("F_Z1")
    a("s_mov_b32 s83, 43826197")
    a(f"s_mov_b32 s84, {-BN}")
    a("v_mov_b32 v19, 1")
    a("s_waitcnt lgkmcnt(0)")
    a("s_barrier")
    a(f"v_lshrrev_b32 v40, 5, v{vL}")
    a(f"v_xor_b32 v41, v40, v{vL}")
    a("v_and_b32 v41, 7, v41")
    a(f"v_and_b32 v42, 31, v{vL}")
    a(f"s_lshr_b32 s3, s{sW}, 2")
    a("s_lshl_b32 s3, s3, 12")
    a(f"s_add_u32 s3, s3, {L_HIMG}")
    a("v_lshl_add_u32 v43, v42, 7, s3")
    a("v_lshl_add_u32 v4, v41, 4, v43")
    for s_ in range(1, 4):
        a(f"v_xor_b32 v{4+s_}, {32*s_}, v4")
    a(f"v_bfe_u32 v41, v{vL}, 2, 2")
    a("v_lshl_add_u32 v41, v40, 3, v41")
    a("v_lshl_add_u32 v41, v41, 3, v35")
    a(f"v_bfe_u32 v43, v{vL}, 4, 1")
    a("v_lshl_add_u32 v41, v43, 2, v41")
    a(f"s_and_b32 s{sT0}, s{sW}, 1")
    a(f"s_lshl_b32 s{sT0}, s{sT0}, 12")
    a(f"s_and_b32 s{sT2}, s{sW}, 2")
    a(f"s_lshl_b32 s{sT2}, s{sT2}, 13")
    a(f"s_add_u32 s{sT0}, s{sT0}, s{sT2}")
    a(f"s_add_u32 s{sT0}, s{sT0}, {L_WT}")
    a(f"v_lshl_add_u32 v63, v41, 3, s{sT0}")
    a("v_lshlrev_b32 v59, 3, v41")
    a(f"v_add_u32 v59, {L_WT + 8192}, v59")
    a(f"s_and_b32 s{sT0}, s{sW}, 7")
    a(f"s_lshl_b32 s{sT0}, s{sT0}, 9")
    a(f"s_mov_b32 s{sT2}, {L_WT + 16384}")
    a(f"s_cmp_ge_u32 s{sW}, 8")
    a(f"s_cselect_b32 s{sT2}, {L_WH2}, s{sT2}")
    a(f"s_add_u32 s{sT0}, s{sT0}, s{sT2}")
    a(f"v_lshl_add_u32 v58, v{vL}, 3, s{sT0}")
    a("s_mov_b32 s85, 0x05040100")
    a(f"s_mov_b32 s{sSEL}, 0x07060302")
    a(f"s_cmp_gt_u32 s{sW}, 12")
    a("s_cbranch_scc1 F_SIDE1")
    a(f"s_mov_b64 exec, s[{sVAL}:{sVAL+1}]")
    a("s_waitcnt vmcnt(6)")
    st1(a, 1)
    for i in range(4):
        a(f"v_mul_hi_u32 v{20+i}, v{8+i}, s83")
    for i in range(4):
        a(f"v_mad_i32_i24 v{8+i}, v{20+i}, s84, v{8+i}")
        a(f"v_lshlrev_b32 v{20+i}, 2, v{20+i}")
        a(f"ds_add_rtn_u32 v{24+i}, v{20+i}, v19 offset:{L_HIST}")
    a("s_waitcnt vmcnt(4)")
    for i in range(4):
        a(f"v_lshlrev_b32 v{28+2*i}, 2, v{12+i}")
        if i % 2 == 0:
            a(f"v_lshlrev_b32 v{29+2*i}, 16, v{16+i//2}")
        else:
            a(f"v_and_b32 v{29+2*i}, 0xffff0000, v{16+i//2}")
        a(f"v_and_b32 v{12+i}, 15, v{8+i}")
        a(f"v_lshrrev_b32 v{8+i}, 4, v{8+i}")
        a(f"v_lshl_or_b32 v{29+2*i}, v{12+i}, 12, v{29+2*i}")
        a(f"v_lshl_or_b32 v{29+2*i}, v{8+i}, 9, v{29+2*i}")
        a(f"v_lshlrev_b32 v{12+i}, 5, v{20+i}")
        a(f"v_lshlrev_b32 v{20+i}, 1, v{20+i}")
        a(f"v_add_u32 v{20+i}, {L_INFO}, v{20+i}")
    a("s_mov_b64 exec, -1")
    a("s_waitcnt vmcnt(0)")
    a("s_branch F_SIDE1_DONE")
    a.label("F_SIDE1")
    a("s_waitcnt vmcnt(0)")
    a(f"s_cmp_eq_u32 s{sW}, 15")
    a("s_cbranch_scc1 F_SIDE1_W")
    a(f"s_mov_b64 exec, s[{sA0}:{sA0+1}]")
    for i in range(3):
        a(f"v_lshlrev_b32 v{8+i}, 16, v{8+i}")
    a("v_lshrrev_b32 v22, 4, v20")
    a("v_lshlrev_b32 v11, 3, v22")
    a(f"s_mov_b32 s3, {WS_POS}")
    a("v_lshl_add_u32 v21, v21, 4, s3")
    a("global_store_dwordx4 v21, v[8:11], s[16:17] sc1")
    a("v_and_b32 v20, 15, v20")
    a("v_lshl_add_u32 v20, v20, 3, v22")
    a("v_lshlrev_b32 v20, 5, v20")
    a(f"ds_write_b128 v20, v[8:11] offset:{L_TAB + 16}")
    a("s_mov_b64 exec, -1")
    a("s_branch F_SIDE1_DONE")
    a.label("F_SIDE1_W")
    for r in (9, 11):
        a(f"v_lshlrev_b32 v{r}, 16, v{r}")
        a(f"v_mul_f32 v{r}, {NLOG2E}, v{r}")
        a(f"v_cvt_pk_bf16_f32 v20, v{r}, 0")
        a("v_lshlrev_b32 v20, 16, v20")
        a(f"v_sub_f32 v21, v{r}, v20")
        a(f"v_cvt_pk_bf16_f32 v{r}, v20, v21")
    a(f"v_cmp_gt_u32 s[{sA0}:{sA0+1}], 32, v{vL}")
    for i, r in enumerate((8, 10, 9, 11)):
        a(f"v_cndmask_b32 v{20+i}, 0, v{r}, s[{sA0}:{sA0+1}]")
    a(f"v_lshlrev_b32 v8, 3, v{vL}")
    a(f"v_lshlrev_b32 v9, 2, v{vL}")
    a("s_mov_b32 exec_hi, 3")
    a(f"ds_write_b64 v8, v[20:21] offset:{L_WD}")
    a(f"ds_write_b64 v8, v[22:23] offset:{L_WD + 272}")
    a("s_mov_b32 exec_hi, 0")
    a(f"ds_write_b32 v9, v12 offset:{L_WX}")
    a("s_mov_b64 exec, -1")
    a.label("F_SIDE1_DONE")
    a("v_perm_b32 v52, v45, v44, s85")
    a("v_perm_b32 v53, v47, v46, s85")
    a(f"v_perm_b32 v54, v45, v44, s{sSEL}")
    a(f"v_perm_b32 v55, v47, v46, s{sSEL}")
    a("ds_write_b64 v58, v[52:53]")
    a("ds_write_b64 v58, v[54:55] offset:4096")
    a(f"v_readfirstlane_b32 s{sTAG}, v18")
    a("s_waitcnt lgkmcnt(0)")
    a("s_barrier")
    st1(a, 2)
    a(f"s_add_u32 s{sTAG}, s{sTAG}, 0x20000")
    a(f"s_and_b32 s{sTAG}, s{sTAG}, 0xfffe0000")
    a(f"s_cmp_gt_u32 s{sW}, 3")
    a("s_cbranch_scc1 F_NOINFO")
    a(f"v_lshlrev_b32 v40, 2, v{vT}")
    a(f"ds_read_b32 v41, v40 offset:{L_HIST}")
    a("v_mov_b32 v43, 0")
    a(f"v_lshlrev_b32 v40, 3, v{vT}")
    a(f"v_add_u32 v40, {L_INFO}, v40")
    a("s_waitcnt lgkmcnt(0)")
    a("v_add_u32 v41, 15, v41")
    a("v_lshrrev_b32 v41, 4, v41")
    a("v_sub_u32 v41, v41, 1 clamp")
    a("v_cmp_lt_u32 vcc, 0, v41")
    a("s_mov_b64 exec, vcc")
    a(f"ds_add_rtn_u32 v43, v36, v41 offset:{L_CNT + 320}")
    a("s_mov_b64 exec, -1")
    a("v_lshlrev_b32 v41, 1, v41")
    a("v_add_u32 v41, 0x10001, v41")
    a(f"s_mov_b32 s3, {L_ST1 - 128}")
    a("s_waitcnt lgkmcnt(0)")
    a("v_lshl_or_b32 v42, v43, 17, v41")
    a("v_lshl_add_u32 v43, v43, 7, s3")
    a("ds_write_b64 v40, v[42:43]")
    a.label("F_NOINFO")
    for s_ in range(4):
        a(f"ds_read_b128 {vr(64+4*s_, 4)}, v{4+s_}")
        for q in range(2):
            a(f"ds_read_b64_tr_b16 {vr(80+4*s_+2*q, 2)}, v63 offset:{s_*1024 + q*256}")
    a(f"s_cmp_lt_u32 s{sW}, 12")
    a("s_cbranch_scc1 F_NOB1")
    a(f"s_sub_u32 s3, s{sW}, 15")
    a("s_lshl_b32 s3, s3, 12")
    a("s_waitcnt lgkmcnt(8)")
    for s_ in range(4):
        a(f"v_add_u32 v{4+s_}, s3, v{4+s_}")
        a(f"ds_read_b128 {vr(36+4*s_, 4)}, v{4+s_}")
    slots = (52, 0, 4)
    a("s_waitcnt lgkmcnt(4)")

    def rd(k):
        s_, t = k >> 1, k & 1
        for q in range(2):
            a(f"ds_read_b64_tr_b16 {vr(slots[k % 3]+2*q, 2)}, v59 offset:{t*4096 + s_*1024 + q*256}")
    for k in range(3):
        rd(k)
    for k in range(8):
        s_, t = k >> 1, k & 1
        a(f"s_waitcnt lgkmcnt({min(4, 2*(7-k))})")
        d = 96 + 16 * t
        c = "0" if s_ == 0 else vr(d, 16)
        a(f"v_mfma_f32_32x32x16_bf16 {vr(d, 16)}, {vr(36+4*s_, 4)}, {vr(slots[k % 3], 4)}, {c}")
        if k + 3 < 8:
            rd(k + 3)
    a.label("F_NOB1")
    a("s_waitcnt lgkmcnt(0)")
    a("s_barrier")
    a(f"s_cmp_gt_u32 s{sW}, 12")
    a("s_cbranch_scc1 F_NOSCAT")
    a(f"s_mov_b64 exec, s[{sVAL}:{sVAL+1}]")
    for i in range(4):
        a(f"ds_read_b64 {vr(36+2*i, 2)}, v{20+i}")
    for i in range(4):
        a(f"v_lshlrev_b32 v{8+i}, 4, v{24+i}")
        a(f"v_cmp_gt_u32 s[{sM+2*i}:{sM+2*i+1}], 16, v{24+i}")
    for i in range(4):
        a("s_waitcnt lgkmcnt(3)")
        a(f"v_bfe_u32 v{36+2*i}, v{36+2*i}, v{8+i}, 9")
        a(f"v_cndmask_b32 v{37+2*i}, v{37+2*i}, v{12+i}, s[{sM+2*i}:{sM+2*i+1}]")
        a(f"v_or_b32 v{29+2*i}, v{29+2*i}, v{36+2*i}")
        a(f"v_lshl_add_u32 v{37+2*i}, v{24+i}, 3, v{37+2*i}")
        a(f"ds_write_b64 v{37+2*i}, {vr(28+2*i, 2)}")
    a("s_mov_b64 exec, -1")
    a.label("F_NOSCAT")
    a(f"s_cmp_lt_u32 s{sW}, 12")
    a("s_cbranch_scc1 F_NOB2")
    a(f"s_mov_b32 s{SRD_O}, s16")
    a(f"s_mov_b32 s{SRD_O+1}, s17")
    a(f"s_mov_b32 s{SRD_O+2}, {N*128}")
    a(f"s_mov_b32 s{SRD_O+3}, 0x20000")
    a(f"s_sub_u32 s3, s{sW}, 12")
    a(f"s_lshl2_add_u32 s3, s3, s{sNODE}")
    a("s_lshl_b32 s3, s3, 7")
    a(f"v_lshrrev_b32 v40, 5, v{vL}")
    a("v_lshl_add_u32 v40, v40, 13, s3")
    a(f"v_and_b32 v41, 31, v{vL}")
    a("v_lshl_add_u32 v40, v41, 2, v40")
    a("s_mov_b32 s83, 0xffff0000")
    a("s_mov_b32 s84, 0x80000000")
    a("s_movk_i32 s85, 0x1000")
    a(f"s_cmp_eq_u32 s{sW}, 12")
    a(f"s_cselect_b32 s{sT0}, -1, 0")
    for g in range(4):
        R = range(4)
        for i in R:
            a(f"v_cvt_pk_bf16_f32 v{44+i}, v{96+4*g+i}, 0")
        for i in R:
            a(f"v_mul_f32 v{48+i}, {NLOG2E}, v{112+4*g+i}")
        for i in R:
            a(f"v_sub_u32 v{52+i}, 0x8000, v{44+i}")
        for i in R:
            a(f"v_and_b32 v{i}, 0x7fffffff, v{48+i}")
        for i in R:
            a(f"v_add_u32 v{52+i}, v{52+i}, v{i}")
        for i in R:
            a(f"v_max_i32 v{52+i}, 0, v{52+i}")
        for i in R:
            a(f"v_and_or_b32 v{52+i}, v{52+i}, s83, v{44+i}")
        for i in R:
            a(f"v_and_or_b32 v{96+4*g+i}, v{48+i}, s84, v{52+i}")
        for i in R:
            if i == 2:
                a(f"s_mov_b32 exec_hi, {'s' + str(sT0) if g < 2 else '0'}")
            if i == 3 and g < 2:
                a("s_mov_b32 exec_hi, 0")
            a(f"buffer_store_dword v{96+4*g+i}, v40, s[{SRD_O}:{SRD_O+3}], {'s85' if i >= 2 else '0'} offen offset:{g*128 + (i & 1)*2048} sc1")
        a("s_mov_b32 exec_hi, -1")
    a.label("F_NOB2")
    a(f"v_lshrrev_b32 v40, 3, v{vT}")
    a(f"s_lshl_b32 s3, s{sB}, 7")
    a(f"s_add_u32 s3, s3, {WS_PAY0}")
    a(f"v_and_b32 v41, 7, v{vT}")
    a("v_lshl_add_u32 v41, v41, 4, s3")
    a(f"s_mov_b32 s3, {BSTR}")
    a("v_mad_u32_u24 v40, v40, s3, v41")
    a(f"v_add_u32 v41, {128*BSTR}, v40")
    a(f"s_mul_i32 s3, s{sB}, {PSTR}")
    a(f"s_add_u32 s3, s3, {WS_POOL}")
    a("v_add_u32 v42, s3, v62")
    a("v_mov_b32 v36, 0")
    a("s_waitcnt lgkmcnt(0)")
    a("s_barrier")
    st1(a, 3)
    a(f"ds_read_b128 v[8:11], v62 offset:{L_ST0}")
    a(f"ds_read_b128 v[12:15], v62 offset:{L_ST0 + 16384}")
    a(f"ds_read_b32 v43, v36 offset:{L_CNT + 320}")
    a(f"ds_read_b128 v[16:19], v62 offset:{L_ST1}")
    a("s_waitcnt lgkmcnt(3)")
    a(f"v_xor_b32 v8, s{sTAG}, v8")
    a(f"v_xor_b32 v10, s{sTAG}, v10")
    a("global_store_dwordx4 v40, v[8:11], s[16:17] sc1")
    a("s_waitcnt lgkmcnt(2)")
    a(f"v_xor_b32 v12, s{sTAG}, v12")
    a(f"v_xor_b32 v14, s{sTAG}, v14")
    a("global_store_dwordx4 v41, v[12:15], s[16:17] sc1")
    a("s_waitcnt lgkmcnt(0)")
    a("v_lshlrev_b32 v43, 3, v43")
    a(f"v_cmp_gt_u32 vcc, v43, v{vT}")
    a(f"v_xor_b32 v16, s{sTAG}, v16")
    a(f"v_xor_b32 v18, s{sTAG}, v18")
    a("s_and_b64 exec, exec, vcc")
    a("s_cbranch_execz F_POOL_DONE")
    a("global_store_dwordx4 v42, v[16:19], s[16:17] sc1")
    a(f"v_add_u32 v44, 1024, v{vT}")
    a("v_cmp_gt_u32 vcc, v43, v44")
    a("s_and_b64 exec, exec, vcc")
    a("s_cbranch_execz F_POOL_DONE")
    a(f"ds_read_b128 v[20:23], v62 offset:{L_ST1 + 16384}")
    a("v_add_u32 v42, 0x4000, v42")
    a("s_waitcnt lgkmcnt(0)")
    a(f"v_xor_b32 v20, s{sTAG}, v20")
    a(f"v_xor_b32 v22, s{sTAG}, v22")
    a("global_store_dwordx4 v42, v[20:23], s[16:17] sc1")
    a.label("F_POOL_DONE")
    a("s_mov_b64 exec, -1")
    a("s_barrier")
    for s_ in range(4):
        c = "0" if s_ == 0 else vr(96, 16)
        a(f"v_mfma_f32_32x32x16_bf16 {vr(96, 16)}, {vr(64+4*s_, 4)}, {vr(80+4*s_, 4)}, {c}")
    a("v_mov_b64 v[12:13], 0")
    a("v_mov_b64 v[14:15], 0")
    a(f"v_mul_u32_u24 v20, 0x80008, v{vT}")
    a("v_add_u32 v20, 0x10000, v20")
    for k in range(1, 4):
        a(f"v_add_u32 v{20+k}, {hex(0x20002 * k)}, v20")
    a(f"v_mfma_f32_32x32x16_bf16 {vr(112, 16)}, v[12:15], v[12:15], 0")
    a("s_mov_b32 s3, 0x00800080")
    for k in range(4):
        a(f"v_add_u32 v{24+k}, 0x9f809f80, v{20+k}")
        a(f"v_pk_sub_u16 v{20+k}, v{20+k}, s3 clamp")
        a(f"v_or_b32 v{20+k}, 0x80008000, v{20+k}")
    a(f"v_add_u32 v28, {L_LUT}, v62")
    a("ds_write_b128 v28, v[20:23]")
    a(f"v_cmp_gt_u32 vcc, 864, v{vT}")
    a(f"v_lshlrev_b32 v29, 17, v{vT}")
    a(f"v_add_u32 v29, {hex((118*128) << 16)}, v29")
    a("s_mov_b64 exec, vcc")
    a("ds_write_b128 v28, v[24:27] offset:16384")
    a("s_mov_b64 exec, -1")
    a(f"v_cmp_lt_u32 vcc, 95, v{vT}")
    a("v_add_u32 v30, 0x10000, v29")
    a(f"v_mul_f32 v31, {PLOG2E}, v29")
    a("s_mov_b64 exec, vcc")
    a("ds_write_b128 v28, v[12:15] offset:32768")
    a("s_mov_b64 exec, -1")
    a(f"v_mul_f32 v32, {PLOG2E}, v30")
    a("v_exp_f32 v31, v31")
    a("v_exp_f32 v32, v32")
    a(f"v_cmp_lt_u32 vcc, 1007, v{vT}")
    a("v_mov_b32 v33, 0x7fc07fc0")
    a("v_add_f32 v31, 1.0, v31")
    a("v_add_f32 v32, 1.0, v32")
    a("v_cndmask_b32 v20, 0, v33, vcc")
    a("v_rcp_f32 v31, v31")
    a("v_rcp_f32 v32, v32")
    for k in range(1, 4):
        a(f"v_mov_b32 v{20+k}, v20")
    a("ds_write_b128 v28, v[20:23] offset:49152")
    a("v_mul_f32 v31, v29, v31")
    a("v_mul_f32 v32, v30, v32")
    a("v_cvt_pk_bf16_f32 v31, -v31, -v32")
    a(f"v_lshlrev_b32 v33, 2, v{vT}")
    a(f"v_add_u32 v33, {L_LUT + 118*256}, v33")
    a("ds_write_b32 v33, v31")
    a(f"s_mov_b32 s{sT2}, {NLOG2E}")
    a(f"s_mov_b32 s{sT3}, {NLOG2E}")
    a(f"s_and_b32 s{sT0}, s{sW}, 3")
    a(f"s_cmp_lg_u32 s{sT0}, 1")
    a("s_cbranch_scc1 F_NOSC")
    for i in range(8):
        a(f"v_pk_mul_f32 {vr(96+2*i, 2)}, {vr(96+2*i, 2)}, s[{sT2}:{sT3}]")
    a.label("F_NOSC")
    a(f"s_lshl_b32 s{sT0}, s{sT0}, 9")
    a(f"s_lshr_b32 s{sT1}, s{sW}, 2")
    a(f"s_lshl_b32 s3, s{sT1}, 13")
    a(f"s_add_u32 s{sT0}, s{sT0}, s3")
    a(f"s_add_u32 s{sT0}, s{sT0}, {L_OH}")
    a(f"v_lshl_add_u32 v40, v{vL}, 3, s{sT0}")
    for i in range(8):
        a(f"v_cvt_pk_bf16_f32 v{32+i}, v{96+2*i}, v{97+2*i}")
    for g in range(4):
        a(f"ds_write_b64 v40, {vr(32+2*g, 2)} offset:{2048*g}")
    a(f"v_mfma_f32_32x32x16_bf16 {vr(96, 16)}, v[12:15], v[12:15], 0")
    a(f"s_and_b32 s{sRK}, s{sW}, 3")
    a(f"s_bitcmp1_b32 s{sW}, 2")
    a(f"s_cselect_b32 s3, 3, 0")
    a(f"s_xor_b32 s{sRK}, s{sRK}, s3")
    a(f"s_lshl2_add_u32 s{sRK}, s{sT1}, s{sRK}")
    a(f"v_and_b32 v35, 31, v{vL}")
    a(f"v_bfe_u32 v34, v{vL}, 1, 2")
    a(f"v_lshlrev_b32 v{vLB}, 6, v35")
    a(f"v_lshl_add_u32 v{vLB}, v34, 3, v{vLB}")
    a(f"v_lshrrev_b32 v36, 5, v{vL}")
    a(f"v_bfe_u32 v34, v{vL}, 2, 2")
    a("v_lshl_add_u32 v34, v36, 2, v34")
    a(f"v_lshlrev_b32 v{vTRA}, 6, v34")
    a("v_lshrrev_b32 v34, 1, v34")
    a(f"v_xor_b32 v34, v34, v{vL}")
    a("v_and_b32 v34, 3, v34")
    a(f"v_lshl_add_u32 v{vTRA}, v34, 3, v{vTRA}")
    a(f"v_and_b32 v34, 16, v{vL}")
    a(f"v_lshl_add_u32 v{vTRA}, v34, 1, v{vTRA}")
    a(f"v_lshlrev_b32 v{vGA}, 4, v36")
    a("v_lshlrev_b32 v35, 3, v35")
    a("v_mov_b32 v34, 256")
    a(f"v_cmp_gt_u32 vcc, 32, v{vL}")
    a("v_cndmask_b32 v8, v34, v35, vcc")
    a("v_cndmask_b32_e64 v9, v35, v34, vcc")
    a(f"s_mov_b32 s{SRD_B}, s16")
    a(f"s_and_b32 s{SRD_B+1}, s17, 0xffff")
    a(f"s_or_b32 s{SRD_B+1}, s{SRD_B+1}, 0x80000000")
    a(f"s_mov_b32 s{SRD_B+2}, 0x100000")
    a(f"s_mov_b32 s{SRD_B+3}, 0xc00000")
    a(f"s_add_u32 s{SRD_POS}, s16, {WS_POS}")
    a(f"s_addc_u32 s{SRD_POS+1}, s17, 0")
    a(f"s_and_b32 s{SRD_POS+1}, s{SRD_POS+1}, 0xffff")
    a(f"s_or_b32 s{SRD_POS+1}, s{SRD_POS+1}, 0x40000")
    a(f"s_mov_b32 s{SRD_POS+2}, {N*16}")
    a(f"s_mov_b32 s{SRD_POS+3}, 0x20000")
    a(f"s_mov_b32 s{sSEL}, 0x03020302")
    a(f"s_mov_b64 s[{sLO}:{sLO+1}], 0")
    a(f"s_mov_b64 s[{sHI}:{sHI+1}], 0")
    a(f"s_mov_b32 s{sFL}, 0")
    a(f"s_mov_b32 s{sPC}, 0")

    def line_addr():
        a(f"s_mul_i32 s3, s{sB}, {BSTR}")
        a(f"s_lshl_b32 s{sT0}, s{sW}, 11")
        a(f"s_add_u32 s3, s3, s{sT0}")
        a(f"s_add_u32 s3, s3, {WS_PAY0}")
        a(f"v_lshl_add_u32 v52, v{vL}, 4, s3")
        a(f"s_mul_i32 s3, s{sW}, {16*PSTR}")
        a(f"s_add_u32 s3, s3, {WS_POOL}")
        a(f"v_and_b32 v53, 7, v{vL}")
        a("v_lshl_add_u32 v53, v53, 4, s3")
        a(f"v_lshrrev_b32 v54, 3, v{vL}")
        a(f"s_movk_i32 s3, {PSTR}")
        a("v_mad_u32_u24 v53, v54, s3, v53")
    line_addr()
    a(f"v_lshlrev_b32 v50, 2, v{vL}")
    a("v_and_b32 v51, 63, v50")
    a(f"v_and_b32 v49, 48, v{vL}")
    a("v_mov_b32 v48, 4")
    a(f"v_lshlrev_b32 v47, 4, v{vL}")
    a(f"s_lshl_b32 s3, s{sW}, 11")
    a(f"s_add_u32 s3, s3, {WS_FLAG}")
    a("v_lshl_add_u32 v46, v51, 5, s3")
    a("s_mov_b32 s83, 0x20000")
    a(f"s_or_b32 s84, s{sTAG}, 0x1abcd")
    a("s_waitcnt vmcnt(0)")
    st1(a, 4)
    a(f"s_cmp_lt_u32 s{sW}, 12")
    a("s_cbranch_scc1 F_POLL0")
    a("s_mov_b64 exec, 1")
    a(f"ds_add_rtn_u32 v44, v12, v48 offset:{L_CNT + 324}")
    a(f"s_lshl_b32 s3, s{sB}, 7")
    a(f"s_add_u32 s3, s3, {WS_FLAG}")
    a("v_mov_b32 v45, s3")
    a("v_mov_b32 v43, s84")
    a("s_waitcnt lgkmcnt(0)")
    a("v_cmp_eq_u32 vcc, 12, v44")
    a("s_mov_b64 exec, vcc")
    a("s_cbranch_execz F_NOFLAG")
    a("global_store_dword v45, v43, s[16:17] sc1")
    a.label("F_NOFLAG")
    a("s_mov_b64 exec, -1")
    a.label("F_POLL0")
    a("global_load_dwordx4 v[80:83], v52, s[16:17] sc1")
    a("global_load_dwordx4 v[84:87], v52, s[16:17] offset:1024 sc1")
    a(f"s_add_u32 s{sPC}, s{sPC}, 1")
    a(f"s_cmp_gt_u32 s{sPC}, {POLL_MAX}")
    a("s_cbranch_scc1 K2_END")
    a("s_waitcnt vmcnt(0)")
    for r in (80, 82, 84, 86):
        a(f"v_xor_b32 v{r}, s{sTAG}, v{r}")
    a("v_or3_b32 v44, v80, v82, v84")
    a("v_or_b32 v44, v44, v86")
    a("v_cmp_gt_u32 vcc, s83, v44")
    a("s_cmp_eq_u64 vcc, -1")
    a("s_cbranch_scc0 F_POLL0")
    st1(a, 5)
    a("global_load_dword v76, v46, s[16:17] sc1")
    a("v_bfe_u32 v54, v81, 1, 8")
    a("v_bfe_u32 v55, v85, 1, 8")
    a("v_bfe_u32 v56, v83, 1, 8")
    a("v_bfe_u32 v57, v87, 1, 8")
    a(f"v_cmp_lt_u32 s[{sA0}:{sA0+1}], 0, v54")
    a(f"v_cmp_lt_u32 s[{sA1}:{sA1+1}], 0, v55")
    a("v_lshl_add_u32 v56, v56, 7, v53")
    a("v_lshl_add_u32 v57, v57, 7, v53")
    a(f"v_add_u32 v57, {8*PSTR}, v57")
    for u in range(4):
        a(f"v_cmp_ne_u32 s[{sM+2*u}:{sM+2*u+1}], 0, v{81+2*u}")
    a(f"s_mov_b64 exec, s[{sA0}:{sA0+1}]")
    a("global_load_dwordx4 v[88:91], v56, s[16:17] sc1")
    a(f"s_mov_b64 exec, s[{sA1}:{sA1+1}]")
    a("global_load_dwordx4 v[92:95], v57, s[16:17] sc1")
    append4(a, 80, sM, 64)
    a(f"s_mov_b32 s{sJ}, 1")
    a.label("F_LEVEL")
    a(f"s_or_b64 s[{sT2}:{sT3}], s[{sA0}:{sA0+1}], s[{sA1}:{sA1+1}]")
    a("s_cbranch_scc0 F_LEVEL_DONE")
    a("s_waitcnt vmcnt(0)")
    for r in (88, 90, 92, 94):
        a(f"v_xor_b32 v{r}, s{sTAG}, v{r}")
    a("v_or_b32 v44, v88, v90")
    a("v_or_b32 v45, v92, v94")
    a(f"v_cmp_le_u32 vcc, s83, v44")
    a(f"v_cmp_le_u32 s[{sT2}:{sT3}], s83, v45")
    a(f"s_and_b64 vcc, vcc, s[{sA0}:{sA0+1}]")
    a(f"s_and_b64 s[{sT2}:{sT3}], s[{sT2}:{sT3}], s[{sA1}:{sA1+1}]")
    a(f"s_or_b64 vcc, vcc, s[{sT2}:{sT3}]")
    a("s_cbranch_scc1 F_LEVEL_LOAD")
    for u in range(4):
        a(f"v_cmp_ne_u32 s[{sM+2*u}:{sM+2*u+1}], 0, v{89+2*u}")
    for u in range(4):
        m = sA0 if u < 2 else sA1
        a(f"s_and_b64 s[{sM+2*u}:{sM+2*u+1}], s[{sM+2*u}:{sM+2*u+1}], s[{m}:{m+1}]")
    append4(a, 88, sM, 64)
    a(f"v_cmp_lt_u32 s[{sA0}:{sA0+1}], s{sJ}, v54")
    a(f"v_cmp_lt_u32 s[{sA1}:{sA1+1}], s{sJ}, v55")
    a(f"s_add_u32 s{sJ}, s{sJ}, 1")
    a("v_add_u32 v56, 128, v56")
    a("v_add_u32 v57, 128, v57")
    a(f"s_or_b64 s[{sT2}:{sT3}], s[{sA0}:{sA0+1}], s[{sA1}:{sA1+1}]")
    a("s_cbranch_scc0 F_LEVEL_DONE")
    a.label("F_LEVEL_LOAD")
    a(f"s_mov_b64 exec, s[{sA0}:{sA0+1}]")
    a("global_load_dwordx4 v[88:91], v56, s[16:17] sc1")
    a(f"s_mov_b64 exec, s[{sA1}:{sA1+1}]")
    a("global_load_dwordx4 v[92:95], v57, s[16:17] sc1")
    a("s_mov_b64 exec, -1")
    a(f"s_add_u32 s{sPC}, s{sPC}, 1")
    a(f"s_cmp_gt_u32 s{sPC}, {POLL_MAX}")
    a("s_cbranch_scc1 K2_END")
    a("s_branch F_LEVEL")
    a.label("F_LEVEL_DONE")
    a("s_waitcnt vmcnt(0)")
    a("v_cmp_ne_u32 vcc, s84, v76")
    a("s_cbranch_vccz F_READY")
    a("global_load_dword v76, v46, s[16:17] sc1")
    a(f"s_add_u32 s{sPC}, s{sPC}, 1")
    a(f"s_cmp_gt_u32 s{sPC}, {POLL_MAX}")
    a("s_cbranch_scc1 K2_END")
    a("s_branch F_LEVEL_DONE")
    a.label("F_READY")
    a("s_waitcnt lgkmcnt(0)")
    a("s_barrier")
    st1(a, 6)
    if OPT["diag"] == 2:
        stamp(a, 86, 4)
    a(f"ds_read_b32 v33, v51 offset:{L_CNT}")
    a(f"ds_read_b32 v34, v51 offset:{L_CNT + 192}")
    if OPT["bal"]:
        a(f"ds_read_b32 v35, v51 offset:{L_CNT + 128}")
        a(f"ds_read_b128 v[36:39], v49 offset:{L_CNT}")
        a(f"ds_read_b128 v[40:43], v49 offset:{L_CNT + 128}")
    a(f"ds_read_b64 {vr(WE0, 2)}, v9 offset:{L_WD}")
    a(f"ds_read_b64 {vr(WE0+4, 2)}, v8 offset:{L_WD}")
    a(f"ds_read_b64 {vr(WE1, 2)}, v9 offset:{L_WD + 272}")
    a(f"ds_read_b64 {vr(WE1+4, 2)}, v8 offset:{L_WD + 272}")
    a(f"s_or_b32 s3, s{sB}, s{sW}")
    a("s_cbranch_scc1 F_NOEPOCH")
    a(f"v_mov_b32 v44, {WS_EPOCH}")
    a(f"v_mov_b32 v45, s{sTAG}")
    a("s_mov_b64 exec, 1")
    a("global_store_dword v44, v45, s[16:17] sc1")
    a("s_mov_b64 exec, -1")
    a.label("F_NOEPOCH")
    if OPT["bal"]:
        a("s_waitcnt lgkmcnt(4)")
        a("v_lshl_add_u32 v35, v33, 2, v35")
        for k in range(4):
            a(f"v_lshl_add_u32 v{36+k}, v{36+k}, 2, v{40+k}")
        for k in range(4):
            a(f"v_cmp_gt_u32 s[{sM+2*k}:{sM+2*k+1}], v{36+k}, v35")
        a("v_cmp_gt_u32 vcc, v33, v34")
        a(f"v_cndmask_b32 v36, 0, 1, s[{sM}:{sM+1}]")
        for k in range(1, 4):
            a(f"v_addc_co_u32 v36, s[{sT2}:{sT3}], 0, v36, s[{sM+2*k}:{sM+2*k+1}]")
        a("v_mov_b32 v37, v36")
        a("v_permlane32_swap_b32 v37, v36")
        a("v_add_u32 v36, v36, v37")
        a("v_mov_b32 v37, v36")
        a("v_permlane16_swap_b32 v37, v36")
        a("v_add_u32 v36, v36, v37")
        a(f"v_cmp_eq_u32 s[{sT2}:{sT3}], s{sRK}, v36")
        a(f"s_ff1_i32_b32 s{sG}, s{sT2}")
        if OPT["safe"]:
            a(f"s_and_b32 s{sG}, s{sG}, 15")
    else:
        a("s_waitcnt lgkmcnt(4)")
        a("v_cmp_gt_u32 vcc, v33, v34")
        a(f"s_mov_b32 s{sG}, s{sW}")
    a(f"s_lshl_b32 s3, s{sG}, 11")
    a(f"s_add_u32 s3, s3, {L_OH}")
    a(f"v_lshl_add_u32 v63, v{vL}, 3, s3")
    a(f"v_readlane_b32 s{sREM}, v33, s{sG}")
    a(f"ds_read_b64 {vr(WE0+2, 2)}, v63")
    a(f"ds_read_b64 {vr(WE1+2, 2)}, v63 offset:512")
    a(f"ds_read_b64 {vr(CC, 2)}, v63 offset:1024")
    a(f"ds_read_b64 {vr(CC+2, 2)}, v63 offset:1536")
    a("v_add_u32 v3, s3, v47")
    a("ds_write_b128 v3, v[12:15]")
    a("ds_write_b128 v3, v[12:15] offset:1024")
    a(f"v_add_u32 v{vLB}, s3, v{vLB}")
    a(f"v_add_u32 v{vTRA}, s3, v{vTRA}")
    a(f"s_min_u32 s{sBASE}, s{sG}, 2")
    a(f"s_lshl_b32 s{sBASE}, s{sBASE}, 8")
    a(f"s_lshl_b32 s3, s{sG}, 10")
    a(f"s_add_u32 s{sBASE}, s{sBASE}, s3")
    a(f"v_add_u32 v{vGA}, s{sBASE}, v{vGA}")
    a(f"s_add_u32 s{sNODE}, s{sNODE}, s{sG}")
    a("s_cbranch_vccnz K2_SLOW")
    a.label("K2_START")
    a(f"s_sub_u32 s{sREM}, s{sREM}, s{sBASE}")
    a(f"s_lshr_b32 s{sREM}, s{sREM}, 2")
    a("s_cbranch_scc0 K2_LOOP_DONE")
    a(f"s_and_b32 s{sT0}, s{sREM}, 63")
    a("s_cbranch_scc0 K2_NOFILL")
    a(f"s_bfm_b64 s[{sT2}:{sT3}], s{sT0}, 0")
    a(f"s_andn2_b32 s{sT0}, s{sREM}, 63")
    a(f"s_lshl2_add_u32 m0, s{sT0}, s{sBASE}")
    a(f"s_not_b64 exec, s[{sT2}:{sT3}]")
    a(f"ds_write_addtid_b32 v12 offset:{L_SRC}")
    a(f"ds_write_addtid_b32 v12 offset:{L_INF}")
    a("s_mov_b64 exec, -1")
    a.label("K2_NOFILL")
    a(f"s_mov_b32 m0, s{sBASE}")
    G_reads(a, RAWA, 0)
    PA_reads(a)
    G_issue(a, RAWA, 2)
    a("s_waitcnt lgkmcnt(0)")
    PA_issue(a)
    emit_masks(a)
    a("s_waitcnt vmcnt(0)")
    emit_PB(a)
    if OPT["diag"] == 2:
        stamp(a, 86, 5)
        a("s_getreg_b32 s87, hwreg(HW_REG_HW_ID)")
        a("s_and_b32 s87, s87, 0xff")
        a(f"s_lshl_b32 s88, s{sG}, 8")
        a("s_or_b32 s87, s87, s88")
        a("s_memtime s[94:95]")
        a("s_waitcnt lgkmcnt(0)")
        a("s_mov_b32 s88, s94")
    a.label("K2_T0")
    emit_tile(a, 0)
    a.label("K2_T1")
    emit_tile(a, 1)
    a.label("K2_SLOW")
    a(f"s_mov_b32 s{sJ}, -1")
    a(f"s_mov_b32 s{sFL}, 2")
    a.label("K2_ROUND")
    a("s_setprio 0")
    a("s_waitcnt lgkmcnt(0)")
    a("s_barrier")
    lane_id(a, vL)
    a(f"v_lshlrev_b32 v50, 2, v{vL}")
    a("v_and_b32 v51, 63, v50")
    a(f"s_cmp_lg_u32 s{sW}, 0")
    a("s_cbranch_scc1 K2_NOCNT2")
    a(f"ds_read_b32 v33, v51 offset:{L_CNT + 256}")
    a("v_mov_b32 v34, 0")
    a("s_waitcnt lgkmcnt(0)")
    a(f"ds_write_b32 v51, v33 offset:{L_CNT}")
    a(f"ds_write_b32 v51, v34 offset:{L_CNT + 64}")
    a.label("K2_NOCNT2")
    line_addr()
    a("global_load_dwordx4 v[80:83], v52, s[16:17] sc1")
    a("global_load_dwordx4 v[84:87], v52, s[16:17] offset:1024 sc1")
    a(f"s_and_b32 s{sT1}, s{sFL}, 1")
    a(f"s_xor_b32 s{sT1}, s{sT1}, 1")
    a(f"s_add_u32 s{sJ}, s{sJ}, s{sT1}")
    a("s_waitcnt vmcnt(0) lgkmcnt(0)")
    a("s_barrier")
    a("v_bfe_u32 v54, v81, 1, 8")
    a("v_bfe_u32 v55, v85, 1, 8")
    a("v_bfe_u32 v56, v83, 1, 8")
    a("v_bfe_u32 v57, v87, 1, 8")
    a(f"v_cmp_le_u32 s[{sA0}:{sA0+1}], s{sJ}, v54")
    a(f"v_cmp_le_u32 s[{sA1}:{sA1+1}], s{sJ}, v55")
    a("v_max_u32 v54, v54, v55")
    a(f"v_cmp_lt_u32 s[{sLONG}:{sLONG+1}], s{sJ}, v54")
    a(f"s_cmp_eq_u32 s{sJ}, 0")
    a("s_cbranch_scc1 K2_LEV0")
    a(f"s_sub_u32 s3, s{sJ}, 1")
    a("v_add_u32 v56, s3, v56")
    a("v_add_u32 v57, s3, v57")
    a("v_lshl_add_u32 v56, v56, 7, v53")
    a("v_lshl_add_u32 v57, v57, 7, v53")
    a(f"v_add_u32 v57, {8*PSTR}, v57")
    a(f"s_mov_b64 exec, s[{sA0}:{sA0+1}]")
    a("global_load_dwordx4 v[80:83], v56, s[16:17] sc1")
    a(f"s_mov_b64 exec, s[{sA1}:{sA1+1}]")
    a("global_load_dwordx4 v[84:87], v57, s[16:17] sc1")
    a("s_mov_b64 exec, -1")
    a("s_waitcnt vmcnt(0)")
    a.label("K2_LEV0")
    for r in (80, 82, 84, 86):
        a(f"v_xor_b32 v{r}, s{sTAG}, v{r}")
    a(f"s_bitcmp1_b32 s{sFL}, 0")
    a("s_cbranch_scc1 K2_KEEPM")
    for u in range(4):
        m = sA0 if u < 2 else sA1
        a(f"v_cmp_ne_u32 vcc, 0, v{81+2*u}")
        a(f"s_and_b64 s[{sM+2*u}:{sM+2*u+1}], vcc, s[{m}:{m+1}]")
    a.label("K2_KEEPM")
    a("v_mov_b32 v48, 4")
    a("v_mov_b32 v49, 0")
    a(f"s_mov_b64 s[{sT2}:{sT3}], 0")
    for u in range(4):
        a(f"s_mov_b64 exec, s[{sM+2*u}:{sM+2*u+1}]")
        a(f"v_lshrrev_b32 v64, 10, v{81+2*u}")
        a("v_and_b32 v64, 0x3c, v64")
        a(f"ds_read_b32 v65, v64 offset:{L_CNT + 192}")
        a(f"ds_add_rtn_u32 v64, v64, v48 offset:{L_CNT}")
        a("s_waitcnt lgkmcnt(0)")
        a("v_cmp_lt_u32 vcc, v64, v65")
        a(f"s_andn2_b64 s[{sM+2*u}:{sM+2*u+1}], exec, vcc")
        a("s_mov_b64 exec, vcc")
        a(f"ds_write_b32 v64, v{80+2*u} offset:{L_SRC}")
        a(f"ds_write_b32 v64, v{81+2*u} offset:{L_INF}")
        a(f"s_or_b64 s[{sT2}:{sT3}], s[{sT2}:{sT3}], s[{sM+2*u}:{sM+2*u+1}]")
    a(f"s_mov_b64 exec, s[{sT2}:{sT3}]")
    a("s_cbranch_execz K2_NOF1")
    a(f"ds_write_b32 v49, v48 offset:{L_CNT + 64}")
    a.label("K2_NOF1")
    a(f"s_mov_b64 exec, s[{sLONG}:{sLONG+1}]")
    a("s_cbranch_execz K2_NOF2")
    a(f"ds_write_b32 v49, v48 offset:{L_CNT + 68}")
    a.label("K2_NOF2")
    a("s_mov_b64 exec, -1")
    a("s_waitcnt lgkmcnt(0)")
    a("s_barrier")
    a(f"ds_read_b32 v33, v50 offset:{L_CNT}")
    a(f"ds_read_b32 v34, v51 offset:{L_CNT + 192}")
    a(f"v_lshrrev_b32 v{vGA}, 5, v{vL}")
    a(f"v_lshl_add_u32 v{vGA}, v{vGA}, 4, s{sBASE}")
    a("v_mov_b32 v12, 0")
    a("s_waitcnt lgkmcnt(0)")
    a(f"v_readlane_b32 s{sT0}, v33, 16")
    a(f"v_readlane_b32 s{sT1}, v33, 17")
    a("v_min_u32 v33, v33, v34")
    a(f"s_cmp_lg_u32 s{sT0}, 0")
    a(f"s_cselect_b32 s{sFL}, 1, 0")
    a(f"s_cmp_lg_u32 s{sT1}, 0")
    a(f"s_cselect_b32 s{sT1}, 2, 0")
    a(f"s_or_b32 s{sFL}, s{sFL}, s{sT1}")
    a(f"v_readlane_b32 s{sREM}, v33, s{sG}")
    a("s_nop 1")
    a("s_branch K2_START")
    a.label("K2_LOOP_DONE")
    a(f"s_cmp_lg_u32 s{sFL}, 0")
    a("s_cbranch_scc1 K2_ROUND")
    if OPT['diag'] == 2:
        stamp(a, 86, 6)
    if OPT["diag"] == 2:
        a("s_memtime s[94:95]")
        a("s_waitcnt lgkmcnt(0)")
        a("s_mov_b32 s89, s94")
    vL, vJ, vHF = 4, 5, 6
    lane_id(a, vL)
    a(f"v_and_b32 v{vJ}, 31, v{vL}")
    a(f"v_lshrrev_b32 v{vHF}, 5, v{vL}")
    a(f"v_bfe_u32 v7, v{vL}, 2, 2")
    a(f"v_lshl_add_u32 v7, v{vHF}, 2, v7")
    a(f"v_and_b32 v3, 3, v{vL}")
    a("v_lshl_add_u32 v7, v7, 3, v3")
    a(f"v_bfe_u32 v8, v{vL}, 4, 1")
    a("v_lshl_add_u32 v7, v8, 2, v7")
    a("v_lshlrev_b32 v7, 3, v7")
    BT = 64
    for ks in range(4):
        for tc in range(2):
            for q in range(2):
                a(f"ds_read_b64_tr_b16 {vr(BT+8*ks+4*tc+2*q, 2)}, v7 offset:{L_WH2 + tc*4096 + (16*ks + 8*q)*64}")
    a(f"v_lshlrev_b32 v8, 4, v{vHF}")
    WX = 12
    for ks in range(4):
        a(f"ds_read_b128 {vr(WX+4*ks, 4)}, v8 offset:{L_WX + 32*ks}")
    a(f"v_lshrrev_b32 v9, 2, v{vJ}")
    a(f"s_lshl_b32 s{sT0}, s{sG}, 8")
    a(f"v_lshl_add_u32 v10, v9, 5, s{sT0}")
    a(f"v_lshl_add_u32 v9, v9, 4, s{sG}")
    a(f"v_lshl_add_u32 v11, v{vHF}, 3, v10")
    a("v_lshl_add_u32 v10, v3, 2, v10")
    a(f"ds_read_b64 v[0:1], v11 offset:{L_TAB}")
    a(f"ds_read_b32 v2, v10 offset:{L_TAB + 16}")
    for q in range(16):
        a(f"v_mul_f32 v{ACC1+q}, {NLN2}, v{ACC1+q}")
    SP = 32
    for t in range(2):
        for i in range(8):
            b = (ACC0, ACC1)[t]
            a(f"v_cvt_pk_bf16_f32 v{SP+8*t+i}, v{b+2*i}, v{b+2*i+1}")
    D0, D1, D3 = 96, 112, 48
    a("s_waitcnt lgkmcnt(0)")
    a(f"v_mfma_f32_32x32x8bf16_1k {vr(D0, 16)}, v[0:1], {vr(CC, 2)}, 0")
    a(f"v_mfma_f32_32x32x8bf16_1k {vr(D1, 16)}, v[0:1], {vr(CC+2, 2)}, 0")
    a(f"s_lshl_b32 s{sT0}, s{sG}, 10")
    a(f"s_add_u32 s{sT0}, s{sT0}, {L_HIMG}")
    a(f"v_lshlrev_b32 v10, 2, v{vJ}")
    a("v_xor_b32 v11, v10, v8")
    a(f"v_lshl_add_u32 v11, v{vHF}, 7, v11")
    a(f"v_add_u32 v11, s{sT0}, v11")
    for ks in range(4):
        sp = vr(SP + 4 * ks, 4)
        a(f"v_mfma_f32_32x32x16_bf16 {vr(D0, 16)}, {sp}, {vr(BT+8*ks, 4)}, {vr(D0, 16)}")
        a(f"v_mfma_f32_32x32x16_bf16 {vr(D1, 16)}, {sp}, {vr(BT+8*ks+4, 4)}, {vr(D1, 16)}")
        g = ks
        if g:
            a(f"v_xor_b32 v7, {32*g}, v11")
        a(f"ds_read_b32 v{28+g}, v{7 if g else 11} offset:{256*g}")
    for ks in range(4):
        c = "0" if ks == 0 else vr(D3, 16)
        a(f"v_mfma_f32_32x32x16_bf16 {vr(D3, 16)}, {vr(WX+4*ks, 4)}, {vr(SP+4*ks, 4)}, {c}")
    a(f"s_mov_b32 s{SRD_O}, s14")
    a(f"s_mov_b32 s{SRD_O+1}, s15")
    a(f"s_mov_b32 s{SRD_O+2}, {N*128}")
    a(f"s_mov_b32 s{SRD_O+3}, 0x20000")
    a(f"s_lshl_b32 s{sT0}, s{sNODE}, 7")
    a(f"v_lshl_add_u32 v10, v{vHF}, 11, v10")
    a(f"v_add_u32 v10, s{sT0}, v10")
    a(f"s_mov_b32 s{sT1}, {BN}")
    a(f"v_cmp_gt_u32 s[{sT2}:{sT3}], s{sT1}, v9")
    a(f"s_mul_i32 s{sT1}, s{sB}, {BN}")
    a(f"v_add_u32 v9, s{sT1}, v9")
    a(f"v_cmp_gt_u32 vcc, {N}, v9")
    a(f"s_and_b32 s{sT2}, s{sT2}, vcc_lo")
    a(f"s_and_b32 s{sT2}, s{sT2}, 0x77777777")
    a(f"s_mov_b32 s{sT3}, 0")
    a("v_mul_u32_u24 v9, 6, v9")
    a("v_lshl_add_u32 v9, v3, 1, v9")
    a(f"v_add_u32 v9, {N*128}, v9")
    xs = [(D0, D1)[t] + 4 * g + 3 for g in range(4) for t in range(2)]
    ts = [64 + i for i in range(8)]
    hs = [72 + i for i in range(8)]
    for x, t in zip(xs, ts):
        a(f"v_mul_f32 v{t}, {NLOG2E}, v{x}")
    for t in ts:
        a(f"v_exp_f32 v{t}, v{t}")
    a("s_waitcnt lgkmcnt(0)")
    for g in range(4):
        a(f"v_lshlrev_b32 v{hs[2*g]}, 16, v{28+g}")
        a(f"v_and_b32 v{hs[2*g+1]}, 0xffff0000, v{28+g}")
    for t in ts:
        a(f"v_add_f32 v{t}, 1.0, v{t}")
    for t in ts:
        a(f"v_rcp_f32 v{t}, v{t}")
    a(f"v_add_f32 v2, v2, v{D3}")
    for x, t, h in zip(xs, ts, hs):
        a(f"v_fmac_f32 v{h}, v{x}, v{t}")
    a("v_cvt_pk_bf16_f32 v2, v2, v2")
    for g in range(4):
        a(f"v_cvt_pk_bf16_f32 v{28+g}, v{hs[2*g]}, v{hs[2*g+1]}")
    a("s_movk_i32 s24, 0x1000")
    a("s_movk_i32 s25, 0x2000")
    a("s_movk_i32 s26, 0x3000")
    for g in range(3):
        a(f"buffer_store_dword v{28+g}, v10, s[{SRD_O}:{SRD_O+3}], {'0' if g == 0 else 's' + str(23+g)} offen {OPT['st_out']}")
    a(f"s_mov_b64 exec, s[{sT2}:{sT3}]")
    a("s_cbranch_execz K2_NOPOS")
    a("global_store_short v9, v2, s[14:15] " + OPT.get("st_pos", ""))
    a.label("K2_NOPOS")
    a(f"s_cmp_ge_u32 s{sG}, {BN - 96}")
    a("s_cbranch_scc1 K2_FIN")
    a("s_mov_b64 exec, 0xffffffff")
    a(f"buffer_store_dword v31, v10, s[{SRD_O}:{SRD_O+3}], s26 offen {OPT['st_out']}")
    a.label("K2_FIN")
    if OPT.get("calib"):
        a(f"s_mov_b32 s3, {OPT['calib']}")
        a.label("K2_CAL")
        for i in range(16):
            a("s_nop 15")
        a("s_sub_u32 s3, s3, 1")
        a("s_cmp_lg_u32 s3, 0")
        a("s_cbranch_scc1 K2_CAL")
    stamps_out(a, 86, 0, sW)
    a.label("K2_END")
    a("s_endpgm")
    return a


NAME = "standalone__cheap_equivariant_egnn__graph_kernel"
HEADER = """; EGNN layer on gfx950, one workgroup per CU. Each workgroup bins a chunk of the edges by destination bucket
"""


def make_safe(k):
    out = []
    for l in k.lines:
        if l.startswith("buffer_load_dword ") and f"s[{SRD_B}:{SRD_B+3}]" in l:
            v = l.split()[2].rstrip(",")
            out.append(f"v_min_u32 {v}, {(N - 1) * 4}, {v}")
        out.append(l)
    k.lines = out


def build(aslist):
    s = HEADER
    if aslist:
        s += f"; @launch kernel={NAME} grid=(256,1,1) block=(1024,1,1) lds={K_LDS}\n"
    else:
        s += f"; @launch grid=(256,1,1) block=(1024,1,1) lds={K_LDS}\n"
    s += '.amdgcn_target "amdgcn-amd-amdhsa--gfx950"\n.text\n'
    k = kernel()
    if OPT["safe"]:
        make_safe(k)
    s += f".globl {NAME}\n.p2align 8\n.type {NAME},@function\n{NAME}:\n" + k.render()
    s += f""".section .rodata,"a"
.p2align 6
.amdhsa_kernel {NAME}
  .amdhsa_next_free_vgpr 128
  .amdhsa_next_free_sgpr 96
  .amdhsa_accum_offset 128
  .amdhsa_group_segment_fixed_size 0
  .amdhsa_kernarg_size 88
  .amdhsa_user_sgpr_count 2
  .amdhsa_user_sgpr_kernarg_segment_ptr 1
  .amdhsa_system_sgpr_workgroup_id_x 1
  .amdhsa_float_denorm_mode_32 3
.end_amdhsa_kernel
"""
    return s


if __name__ == "__main__":
    out = sys.argv[1] if len(sys.argv) > 1 else "standalone__cheap_equivariant_egnn__graph.s"
    aslist = 0
    for arg in sys.argv[2:]:
        k, v = arg.split("=")
        if k == "list":
            aslist = int(v)
        else:
            OPT[k] = v if k.startswith('st_') else int(v)
    open(out, "w").write(build(aslist))
    print("wrote", out, "LDS", K_LDS)
```
